```python
import torch

def _softmax(x, axis=-1):
    return torch.softmax(x, dim=axis)
def _gelu(x):
    return torch.nn.functional.gelu(x, approximate="tanh")
def _silu(x):
    return torch.nn.functional.silu(x)
def _sigmoid(x):
    return torch.sigmoid(x)
def _layernorm(x, axis=-1, eps=1e-5):
    m = x.mean(dim=axis, keepdim=True)
    v = x.var(dim=axis, keepdim=True, unbiased=False)
    return (x - m) / torch.sqrt(v + eps)
def _scatter_add(tgt, idx, src, axis=0):
    return tgt.clone().index_add_(axis, idx, src)
def _segment_sum(src, seg, n):
    out = torch.zeros((n,) + src.shape[1:], dtype=src.dtype)
    return out.index_add_(0, seg, src)
def _pad(x, pw):
    flat = tuple(v for pair in reversed(pw) for v in pair)
    return torch.nn.functional.pad(x, flat)

kernel_name = 'gated_mix__sliding_block_cached__dense_activation_relu__decode'

def setup_inputs():

    _w = (lambda a: (lambda t: t.to(torch.bfloat16) if t.is_floating_point() else t)(torch.as_tensor(a)))
    def _A_setup():
        B, Sq, D = 2, 1, 448
        Hq, Hkv, Sk, Dh = 16, 8, 4096, 256
        assert Hq % Hkv == 0, (Hq, Hkv)
        return {
            "x": _w((lambda *s: torch.randn(*s, dtype=torch.bfloat16) * 0.05)(B, Sq, D)),
            "k_cache": _w((lambda *s: torch.randn(*s, dtype=torch.bfloat16) * 6.4)(B, Hkv, Sk, Dh)),
            "v_cache": _w((lambda *s: torch.randn(*s, dtype=torch.bfloat16) * 0.4)(B, Hkv, Sk, Dh)),
            "wq": _w((lambda *s: torch.randn(*s, dtype=torch.bfloat16) * 6.4)(D, Hq * Dh) * (D ** -0.5)),
            "wo": _w((lambda *s: torch.randn(*s, dtype=torch.bfloat16) * 0.4)(Hq * Dh, D) * ((Hq * Dh) ** -0.5)),
        }
    _A_in = _A_setup()

    def _B_setup():
        B, S, D, Dff = 2, 1, 448, 1792
        return {
            "x": _w((lambda *s: torch.randn(*s, dtype=torch.bfloat16) * 0.05)(B, S, D)),
            "w1": _w((lambda *s: torch.randn(*s, dtype=torch.bfloat16) * 0.05)(D, Dff)),
            "w2": _w((lambda *s: torch.randn(*s, dtype=torch.bfloat16) * 0.05)(Dff, D)),
        }
    _B_in = _B_setup()

    return {
        "A_x": _A_in["x"],
        "A_k_cache": _A_in["k_cache"],
        "A_v_cache": _A_in["v_cache"],
        "A_wq": _A_in["wq"],
        "A_wo": _A_in["wo"],
        "B_x": _B_in["x"],
        "B_w1": _B_in["w1"],
        "B_w2": _B_in["w2"],
        "gate_w": _w((lambda *s: torch.randn(*s, dtype=torch.bfloat16) * 0.05)(448) * 16.0),
    }

def reference(A_x, A_k_cache, A_v_cache, A_wq, A_wo, B_x, B_w1, B_w2, gate_w):
    def _A_ref(x, k_cache, v_cache, wq, wo):
        B, Sq, D = x.shape
        Hq, Dh = 16, 256
        Hkv, Sk = k_cache.shape[1], k_cache.shape[2]
        W = min(4096, max(256, Sk // 4))
        rep = Hq // Hkv
        q = (lambda x, *d: x.permute(*d))((x @ wq).reshape(B, Sq, Hq, Dh), 0, 2, 1, 3)
        k = (lambda x, n, axis: torch.repeat_interleave(x, n, dim=axis))(k_cache[:, :, Sk - W:, :], rep, axis=1)
        v = (lambda x, n, axis: torch.repeat_interleave(x, n, dim=axis))(v_cache[:, :, Sk - W:, :], rep, axis=1)
        scores = torch.einsum("bhqd,bhkd->bhqk", q, k) * (Dh ** -0.5)
        p = _softmax(scores, axis=-1)
        o = torch.einsum("bhqk,bhkd->bhqd", p, v)
        return (lambda x, *d: x.permute(*d))(o, 0, 2, 1, 3).reshape(B, Sq, Hq * Dh) @ wo

    def _B_ref(x, w1, w2):
        h = torch.einsum("bsd,df->bsf", x, w1)
        zero = torch.zeros_like(h)
        h = torch.maximum(h, zero)
        return torch.einsum("bsf,fd->bsd", h, w2)

    x = A_x
    g = _sigmoid((x * gate_w).sum(-1, keepdims=True))
    a = _A_ref(x, A_k_cache, A_v_cache, A_wq, A_wo)
    b = _B_ref(x, B_w1, B_w2)
    return g * a + (1 - g) * b
```

```python
NAME = 'gated_mix__sliding_block_cached__dense_activation_relu__decode'
KNAME = NAME + '_kernel'

HEADER = """; Kernarg layout for this problem (96 bytes, ptrs only, base s[0:1]):
"""

class Asm:
    def __init__(self):
        self.lines = []
    def __call__(self, s):
        for ln in s.strip('\n').split('\n'):
            self.lines.append(ln)
    def label(self, name):
        self.lines.append(name + ':')
    def text(self):
        return '\n'.join(self.lines) + '\n'

def wrap(body, grid, block, lds, vgpr=256, sgpr=102, accum=None, kname=KNAME):
    if accum is None:
        accum = (vgpr + 3) // 4 * 4
    s = HEADER
    s += f"; @launch grid=({grid[0]},{grid[1]},{grid[2]}) block=({block[0]},{block[1]},{block[2]}) lds={lds}\n"
    s += '.amdgcn_target "amdgcn-amd-amdhsa--gfx950"\n.text\n'
    s += f".globl {kname}\n.p2align 8\n.type {kname},@function\n{kname}:\n"
    s += body
    s += ".section .rodata,\"a\"\n.p2align 6\n"
    s += f".amdhsa_kernel {kname}\n"
    s += f"  .amdhsa_next_free_vgpr {vgpr}\n  .amdhsa_next_free_sgpr {sgpr}\n  .amdhsa_accum_offset {accum}\n"
    s += "  .amdhsa_group_segment_fixed_size 0\n  .amdhsa_kernarg_size 96\n  .amdhsa_user_sgpr_count 2\n"
    s += "  .amdhsa_user_sgpr_kernarg_segment_ptr 1\n  .amdhsa_system_sgpr_workgroup_id_x 1\n"
    s += ".end_amdhsa_kernel\n"
    return s
```

```python
import re

TRANS = ('v_exp_f32', 'v_log_f32', 'v_rcp_f32', 'v_rsq_f32', 'v_sqrt_f32', 'v_sin_f32', 'v_cos_f32')

def regs_of(op):
    op = op.strip()
    out = set()
    m = re.fullmatch(r'-?\|?([vsa])\[(\d+):(\d+)\]\|?', op)
    if m:
        for i in range(int(m.group(2)), int(m.group(3)) + 1):
            out.add((m.group(1), i))
        return out
    m = re.fullmatch(r'-?\|?([vsa])(\d+)\|?', op)
    if m:
        out.add((m.group(1), int(m.group(2))))
        return out
    m = re.fullmatch(r'abs\(([vsa])(\d+)\)', op)
    if m:
        out.add((m.group(1), int(m.group(2))))
        return out
    if op in ('vcc', 'vcc_lo', 'vcc_hi'):
        return {('s', 'vcc')}
    if op in ('exec', 'exec_lo', 'exec_hi'):
        return {('s', 'exec')}
    if op == 'm0':
        return {('s', 'm0')}
    return out

class I:
    def __init__(self, text):
        self.text = text
        t = text.split(';')[0].strip()
        self.is_label = t.endswith(':')
        self.empty = (t == '') or t.startswith('.')
        self.op = ''
        self.w = set(); self.r = set()
        self.kind = 'other'
        self.states = 1
        self.dpp = False
        self.mfma_c = set(); self.mfma_ab = set()
        self.store_data = set()
        if self.is_label or self.empty:
            self.states = 0
            return
        parts = t.split(None, 1)
        self.op = parts[0]
        args = parts[1] if len(parts) > 1 else ''
        ops = [x.strip() for x in re.split(r',(?![^\[]*\])', args)]
        if ops:
            last = ops[-1].split()
            mods = ' '.join(last[1:]) if last else ''
            ops[-1] = last[0] if last else ''
        else:
            mods = ''
        self.mods = mods
        op = self.op
        R = [regs_of(o) for o in ops]
        if op == 's_nop':
            self.kind = 'nop'; self.states = int(ops[0], 0) + 1
        elif op.startswith('v_mfma'):
            self.kind = 'mfma'
            self.w = R[0]; self.mfma_ab = R[1] | R[2]; self.mfma_c = R[3]
            self.r = self.mfma_ab | self.mfma_c
        elif op.startswith('v_'):
            self.kind = 'valu'
            self.dpp = ('_dpp' in op) or any(k in args for k in ('quad_perm', 'row_ror', 'row_shr', 'row_shl', 'row_mirror', 'row_half_mirror', 'row_bcast', 'row_newbcast'))
            if op.startswith('v_permlane') and 'swap' in op:
                self.w = R[0] | R[1]; self.r = R[0] | R[1]; self.kind2 = 'permlane'
            elif op.startswith('v_cmp'):
                self.w = R[0]; self.r = set().union(*R[1:])
            elif op.startswith('v_readlane') or op.startswith('v_readfirstlane'):
                self.w = R[0]; self.r = set().union(*R[1:])
            elif op.startswith(('v_add_co', 'v_sub_co', 'v_addc_co', 'v_subb_co')):
                self.w = R[0] | R[1]; self.r = set().union(*R[2:])
            else:
                self.w = R[0]; self.r = set().union(*R[1:]) if len(R) > 1 else set()
                if self.dpp: self.dpp_src = R[1]
                if op.startswith(('v_fmac', 'v_dot2c', 'v_mac')) or op.startswith('v_writelane'):
                    self.r |= R[0]
                if op.startswith('v_cndmask') and len(R) == 3:
                    self.r |= {('s', 'vcc')}
                if op.startswith('v_cndmask_b32_e32') or (op.startswith('v_cndmask') and len(ops) == 4 and ops[3] == 'vcc'):
                    self.r |= {('s', 'vcc')}
        elif op.startswith('ds_'):
            self.kind = 'ds'
            if op.startswith(('ds_read', 'ds_bpermute', 'ds_permute', 'ds_swizzle')) or '_rtn' in op:
                self.w = R[0]; self.r = set().union(*R[1:])
            else:
                self.r = set().union(*R)
        elif op.startswith(('global_', 'buffer_', 'flat_')):
            self.kind = 'vmem'
            if '_lds_' in op or ' lds' in (' ' + mods):
                self.r = set().union(*R) | {('s', 'm0')}
                self.kind2 = 'ldsdma'
            elif 'load' in op:
                self.w = R[0]; self.r = set().union(*R[1:])
            elif 'store' in op:
                self.r = set().union(*R)
                if 'x4' in op or 'x3' in op:
                    self.store_data = R[1] if op.startswith('global_') else R[0]
            elif 'atomic' in op:
                self.r = set().union(*R)
                if 'sc0' in mods:
                    self.w = R[0]
            else:
                pass
        elif op.startswith('s_'):
            self.kind = 'salu'
            if op.startswith(('s_cbranch', 's_branch', 's_waitcnt', 's_barrier', 's_endpgm', 's_setprio', 's_sleep')):
                self.kind = 'ctl'
            elif op.startswith('s_cmp'):
                self.r = set().union(*R) if R else set()
            elif op.startswith(('s_load', 's_memtime', 's_memrealtime', 's_getreg')):
                self.w = R[0]; self.r = set().union(*R[1:]) if len(R) > 1 else set()
                self.kind = 'smem'
            else:
                self.w = R[0] if R else set(); self.r = set().union(*R[1:]) if len(R) > 1 else set()
                if 'saveexec' in op:
                    self.w |= {('s', 'exec')}; self.r |= {('s', 'exec')}

def vonly(s): return {x for x in s if x[0] in ('v', 'a')}
def sonly(s): return {x for x in s if x[0] == 's'}

def need(prev, cur):
    n = 0
    pk, ck = prev.kind, cur.kind
    if pk == 'valu':
        pw_v = vonly(prev.w); pw_s = sonly(prev.w)
        if ck == 'mfma' and pw_v & cur.r: n = max(n, 2)
        if ck == 'valu':
            if cur.dpp and pw_v & cur.dpp_src: n = max(n, 2)
            if cur.op.startswith('v_permlane') and pw_v & cur.r: n = max(n, 2)
            if prev.op.replace('_e32', '').replace('_e64', '') in TRANS and pw_v & cur.r: n = max(n, 1)
            if cur.op.startswith(('v_readlane', 'v_readfirstlane')) and pw_v & cur.r: n = max(n, 1)
            if pw_s & cur.r:
                n = max(n, 4 if cur.op.startswith(('v_readlane', 'v_writelane')) else 2)
            if ('s', 'exec') in pw_s: n = max(n, 5 if cur.dpp else 0)
        if ck == 'mfma' and prev.op.replace('_e32', '') in TRANS and pw_v & cur.r: n = max(n, 2)
        if prev.op.startswith('v_dot'):
            if ck == 'valu' and cur.op == prev.op:
                ops = [x.strip() for x in re.split(r',(?![^\[]*\])', cur.text.split(';')[0].strip().split(None, 1)[1])]
                ab = regs_of(ops[1]) | regs_of(ops[2].split()[0])
                if pw_v & ab: n = max(n, 3)
            elif ck in ('valu', 'mfma', 'vmem', 'ds') and pw_v & (cur.r | cur.w): n = max(n, 3)
        if ck == 'vmem' and pw_s & cur.r: n = max(n, 5)
        if ck in ('salu',) and pw_s & cur.r: n = max(n, 1)
    if pk == 'mfma':
        D = prev.w
        if ck == 'mfma':
            if D & cur.mfma_ab: n = max(n, 8)
            if D & cur.mfma_c and cur.mfma_c != D: n = max(n, 6)
            if D & cur.w and cur.w != D: n = max(n, 8)
        elif ck in ('valu', 'vmem', 'ds'):
            if D & (cur.r | cur.w): n = max(n, 8)
            if ck == 'valu' and prev.mfma_c & cur.w: n = max(n, 3)
    if pk in ('salu',) and ('s', 'm0') in prev.w and ck == 'vmem' and getattr(cur, 'kind2', '') == 'ldsdma': n = max(n, 1)
    if pk == 'vmem' and prev.store_data and ck == 'valu' and prev.store_data & cur.w: n = max(n, 2)
    if pk == 'vmem' and prev.store_data and ck in ('ds', 'vmem') and prev.store_data & cur.w: n = max(n, 1)
    return n

def fix(text, window=24):
    lines = text.split('\n')
    tails = {}
    ninserted = 0
    for it in range(3):
        out = []
        alts = [[]]
        newtails = {}
        ninserted = 0
        for ln in lines:
            ins = I(ln)
            if ins.is_label:
                name = ln.split(';')[0].strip()[:-1]
                for t in tails.get(name, []):
                    alts.append(list(t))
                out.append(ln); continue
            if ins.empty:
                out.append(ln); continue
            req = 0
            for hist in alts:
                dist = 0
                for p in reversed(hist[-window:]):
                    k = need(p, ins)
                    if k > dist: req = max(req, k - dist)
                    dist += p.states
                    if dist >= 12: break
            if req > 0:
                nop = I(f'    s_nop {req-1}')
                out.append(nop.text + '   ; hazard pad'); ninserted += req
                for h in alts: h.append(nop)
            out.append(ln)
            for h in alts: h.append(ins)
            if len(alts) > 1:
                alts = [h[-window:] for h in alts]
                uniq = []
                seen = set()
                for h in alts:
                    d = 0; kk = []
                    for p in reversed(h):
                        kk.append(id(p)); d += p.states
                        if d >= 12: break
                    key = tuple(kk)
                    if key not in seen:
                        seen.add(key); uniq.append(h)
                alts = uniq
            if ins.op.startswith('s_cbranch') or ins.op == 's_branch':
                tgt = ln.split(';')[0].split()[1]
                for h in alts:
                    newtails.setdefault(tgt, []).append(list(h[-window:]))
            if ins.op in ('s_branch', 's_endpgm'):
                alts = [[]]
        tails = newtails
    return '\n'.join(out), ninserted
```

```python
import sys, json
from asmgen import *
import hazard

WS_EPOCH = 0x0
WS_QP    = 0x1000
WS_ML    = 0x12000
WS_HP    = 0x20000
WS_FP    = 0x60000
WS_OP    = 0x100000
WS_STAMP = 0x1000000
K_LDS  = 0
WQ_LDS = 32768
X_LDS  = 47104
GW_LDS = 49152
Q_LDS  = 50176
G_LDS  = 51200
MLW_LDS = 51232
LDS_BYTES = 51328

LOG2E = 1.4426950408889634
import struct
def f2u(x): return struct.unpack('<I', struct.pack('<f', x))[0]

DEFAULTS = dict(nt=True, stamps=False, round_scores=True, spin=20000, b1=True, prio=True)

def gen(opts):
    o = dict(DEFAULTS); o.update(opts)
    NT = ' nt' if o['nt'] else ''
    a = Asm()
    nstamp = [0]
    stamp_names = []
    def stamp(name, role):
        if not o['stamps']: return
        idx = STAMP_IDX[name]
        a(f's_memrealtime s[{64+2*idx}:{65+2*idx}]')
    STAMP_IDX = {n: i for i, n in enumerate(['start', 'karg', 'issued', 'kdone', 'qready', 'qk', 'vdone', 'pv', 'opub', 'h2', 'fpub', 'h3', 'end',
                                              'a_wq', 'a_qpub', 'a_poll'])}
    sX, sK, sV, sWQ, sWO, sW1, sW2, sGW, sOUT, sDBG, sWS = 4, 6, 8, 10, 12, 16, 18, 20, 22, 24, 26
    sHKV, sJ, sB, sC = 28, 29, 30, 31
    sT0, sT1, sT2, sT3 = 32, 33, 34, 35
    sP0, sP1 = 36, 38
    sSEL = 40
    sCHA, sCHB = 44, 45
    sSPIN = 46
    sKB, sVB = 48, 50
    sRG, sCT, sU = 52, 53, 54
    sEX = 56
    sOGZ = 58
    sC2 = 59
    vL, vN, vKS, vT = 0, 1, 2, 3

    def tag_insert(regs):
        for i, r in enumerate(regs):
            a(f'v_perm_b32 v{r}, v{r}, v{vT}, s{sSEL+i}')
    def tag_check(base, tmp, dst):
        a(f'v_perm_b32 v{tmp}, v{base+1}, v{base}, s{sCHA}')
        a(f'v_perm_b32 v{tmp+1}, v{base+3}, v{base+2}, s{sCHB}')
        a(f'v_bitop3_b32 v{dst}, v{tmp}, v{tmp+1}, v{vT} bitop3:0x56')
    def allreduce_rows(op, r, t):
        a(f'v_mov_b32 v{t}, v{r}')
        a(f'v_permlane16_swap_b32 v{t}, v{r}')
        a(f'{op} v{r}, v{r}, v{t}')
        a(f'v_mov_b32 v{t}, v{r}')
        a(f'v_permlane32_swap_b32 v{t}, v{r}')
        a(f'{op} v{r}, v{r}, v{t}')
    def xor4(op, r, t):
        a(f'{op}_dpp v{t}, v{r}, v{r} row_shr:4 row_mask:0xf bank_mask:0xa')
        a(f'{op}_dpp v{t}, v{r}, v{r} row_shl:4 row_mask:0xf bank_mask:0x5')
        a(f'v_mov_b32 v{r}, v{t}')

    stamp('start', 'm')
    a(f'''
    s_cmp_ge_u32 s2, 256
    s_cbranch_scc1 L_end
    s_load_dwordx16 s[4:19], s[0:1], 0
    s_load_dwordx8 s[20:27], s[0:1], 64
    v_lshrrev_b32 v4, 6, v0
    v_and_b32 v{vL}, 63, v0
    v_readfirstlane_b32 s3, v4
    v_and_b32 v{vN}, 15, v{vL}
    v_lshrrev_b32 v{vKS}, 4, v{vL}
    s_and_b32 s{sHKV}, s2, 7
    s_lshr_b32 s{sJ}, s2, 3
    s_lshr_b32 s{sB}, s{sJ}, 4
    s_and_b32 s{sC}, s{sJ}, 15
    s_lshr_b32 s{sRG}, s{sJ}, 2
    s_and_b32 s{sCT}, s{sJ}, 3
    s_mov_b32 s{sSEL}, 0x07060500
    s_mov_b32 s{sSEL+1}, 0x07060501
    s_mov_b32 s{sSEL+2}, 0x07060502
    s_mov_b32 s{sSEL+3}, 0x07060503
    s_mov_b32 s{sCHA}, 0x0c0c0400
    s_mov_b32 s{sCHB}, 0x04000c0c
    s_cmp_eq_u32 s3, 4
    s_cbranch_scc1 L_aux
    ''')

    vKoff, vVoff, vWoff, vW1off, vKrd, vQrd = 4, 5, 6, 7, 8, 9
    vM = 10
    vTmp = 14
    vV = 24
    vWO = 56
    vW2 = 72
    vW1 = 80
    vXA = 108
    vKop = 56
    vQop = 88
    vS = 136
    vPA = 140
    vAcc = 156
    NV_MAIN = 168
    a(f'''
    v_lshrrev_b32 v{vTmp}, 5, v{vL}                 ; hi
    v_and_b32 v{vTmp+1}, 31, v{vL}                  ; u
    v_xor_b32 v{vTmp+1}, v{vTmp+1}, v{vTmp}
    v_lshlrev_b32 v{vTmp+1}, 4, v{vTmp+1}
    v_lshl_add_u32 v{vKoff}, v{vTmp}, 9, v{vTmp+1}
    v_lshlrev_b32 v{vTmp}, 4, v{vN}                 ; n*16
    v_lshl_add_u32 v{vVoff}, v{vKS}, 11, v{vTmp}
    v_mul_u32_u24 v{vWoff}, 896, v{vKS}
    v_add_u32 v{vWoff}, v{vWoff}, v{vTmp}
    v_mul_u32_u24 v{vW1off}, 3584, v{vKS}
    v_add_u32 v{vW1off}, v{vW1off}, v{vTmp}
    v_xor_b32 v{vTmp+1}, v{vKS}, v{vN}
    v_lshlrev_b32 v{vTmp+1}, 4, v{vTmp+1}
    v_lshl_add_u32 v{vKrd}, v{vN}, 9, v{vTmp+1}
    s_lshl_b32 s{sT0}, s3, 13                       ; w*8192
    v_add_u32 v{vKrd}, s{sT0}, v{vKrd}              ; + K_LDS(0) + w*8192
    v_lshrrev_b32 v{vTmp+1}, 3, v{vN}               ; n>>3
    v_lshlrev_b32 v{vTmp+1}, 9, v{vTmp+1}
    v_lshl_add_u32 v{vQrd}, v{vKS}, 4, v{vTmp+1}
    v_and_b32 v{vTmp}, 1, v{vL}
    v_cmp_eq_u32 vcc, 1, v{vTmp}
    v_mov_b32 v{vTmp+1}, 0xffff
    v_mov_b32 v{vTmp+2}, 0xffff0000
    v_cndmask_b32 v{vTmp+1}, v{vTmp+1}, v{vTmp+2}, vcc
    v_bfe_u32 v{vTmp+2}, v{vL}, 1, 2
    ''')
    for k in range(4):
        a(f'''
    v_cmp_eq_u32 vcc, {k}, v{vTmp+2}
    v_cndmask_b32 v{vM+k}, 0, v{vTmp+1}, vcc
    ''')
    a(f'''
    s_lshl_b32 s{sT1}, s{sB}, 3
    s_add_u32 s{sT1}, s{sT1}, s{sHKV}
    s_lshl_b32 s{sT1}, s{sT1}, 21
    s_add_u32 s{sT1}, s{sT1}, 1572864
    s_lshl_b32 s{sT2}, s{sC}, 15
    s_add_u32 s{sT1}, s{sT1}, s{sT2}
    s_add_u32 s{sT1}, s{sT1}, s{sT0}
    s_mov_b32 s{sC2}, {hex(f2u(LOG2E/16.0))}
    v_mov_b32 v{vTmp+3}, 0
    s_waitcnt lgkmcnt(0)
    ''')
    stamp('karg', 'm')
    a(f'''
    global_load_dword v{vT}, v{vTmp+3}, s[{sWS}:{sWS+1}] sc1
    s_add_u32 s{sKB}, s{sK}, s{sT1}
    s_addc_u32 s{sKB+1}, s{sK+1}, 0
    s_add_u32 s{sVB}, s{sV}, s{sT1}
    s_addc_u32 s{sVB+1}, s{sV+1}, 0
    ''')
    if o['b1']:
        a('s_barrier')
    a(f's_mov_b32 m0, s{sT0}')
    for m in range(8):
        if m == 4:
            a(f'''
    s_add_u32 s{sT0}, s{sT0}, 4096
    s_mov_b32 m0, s{sT0}
    s_add_u32 s{sKB}, s{sKB}, 4096
    s_addc_u32 s{sKB+1}, s{sKB+1}, 0
    ''')
        t = vTmp + (m & 1)
        a(f'v_xor_b32 v{t}, {m << 5}, v{vKoff}')
        a(f'global_load_lds_dwordx4 v{t}, s[{sKB}:{sKB+1}] offset:{(m & 3) * 1024}{NT}')
    for r in range(4):
        for h in range(2):
            i = r * 2 + h
            a(f'global_load_dwordx4 v[{vV+4*i}:{vV+4*i+3}], v{vVoff}, s[{sVB}:{sVB+1}] offset:{r*512+h*256}{NT}')
    stamp('issued', 'm')
    a(f'''
    s_lshl_b32 s{sT0}, s{sHKV}, 9
    s_lshl_b32 s{sT1}, s{sRG}, 6
    s_add_u32 s{sT0}, s{sT0}, s{sT1}
    s_lshl_b32 s{sT1}, s3, 4
    s_add_u32 s{sT0}, s{sT0}, s{sT1}
    s_mul_i32 s{sT0}, s{sT0}, 896
    s_mul_i32 s{sT1}, s{sCT}, 224
    s_add_u32 s{sT0}, s{sT0}, s{sT1}
    s_add_u32 s{sWO}, s{sWO}, s{sT0}
    s_addc_u32 s{sWO+1}, s{sWO+1}, 0
    s_lshl_b32 s{sU}, s{sRG}, 3
    s_add_u32 s{sU}, s{sU}, s{sHKV}
    s_cmp_lt_u32 s{sU}, 56
    s_cselect_b32 s{sOGZ}, 0x3f800000, 0
    s_min_u32 s{sU}, s{sU}, 55
    s_lshl_b32 s{sT0}, s{sU}, 5
    s_lshl_b32 s{sT2}, s3, 3
    s_add_u32 s{sT0}, s{sT0}, s{sT2}               ; F0 = 32u + 8w
    s_mul_i32 s{sT0}, s{sT0}, 896
    s_add_u32 s{sT0}, s{sT0}, s{sT1}
    s_add_u32 s{sW2}, s{sW2}, s{sT0}
    s_addc_u32 s{sW2+1}, s{sW2+1}, 0
    s_mul_i32 s{sT0}, s{sHKV}, 56
    s_and_b32 s{sT1}, s3, 1
    s_mul_i32 s{sT1}, s{sT1}, 28
    s_add_u32 s{sT0}, s{sT0}, s{sT1}               ; r0
    s_mov_b32 s{sT3}, s{sT0}
    s_mul_i32 s{sT0}, s{sT0}, 3584
    s_max_u32 s{sT1}, s{sJ}, 18
    s_sub_u32 s{sT1}, s{sT1}, 18
    s_lshl_b32 s{sT1}, s{sT1}, 8
    s_add_u32 s{sT0}, s{sT0}, s{sT1}
    s_add_u32 s{sW1}, s{sW1}, s{sT0}
    s_addc_u32 s{sW1+1}, s{sW1+1}, 0
    s_waitcnt vmcnt(8)
    v_add_u32 v{vT}, 0x01010101, v{vT}
    ''')
    stamp('kdone', 'm')
    a('s_barrier')
    stamp('qready', 'm')
    for s in range(8):
        a(f'ds_read_b128 v[{vQop+4*s}:{vQop+4*s+3}], v{vQrd} offset:{Q_LDS + s*64}')
        t = vTmp + (s & 1)
        a(f'v_xor_b32 v{t}, {s << 6}, v{vKrd}')
        a(f'ds_read_b128 v[{vKop+4*s}:{vKop+4*s+3}], v{t}')
    a('s_waitcnt lgkmcnt(0)')
    for s in range(8):
        c = '0' if s == 0 else f'v[{vS}:{vS+3}]'
        a(f'v_mfma_f32_16x16x32_bf16 v[{vS}:{vS+3}], v[{vKop+4*s}:{vKop+4*s+3}], v[{vQop+4*s}:{vQop+4*s+3}], {c}')
    s0, s1, s2_, s3_ = vS, vS+1, vS+2, vS+3
    if o['round_scores']:
        a(f'''
    v_cvt_pk_bf16_f32 v{vTmp}, v{s0}, v{s1}
    v_cvt_pk_bf16_f32 v{vTmp+1}, v{s2_}, v{s3_}
    v_lshlrev_b32 v{s0}, 16, v{vTmp}
    v_and_b32 v{s1}, 0xffff0000, v{vTmp}
    v_lshlrev_b32 v{s2_}, 16, v{vTmp+1}
    v_and_b32 v{s3_}, 0xffff0000, v{vTmp+1}
    ''')
    vMx, vLs = vTmp+2, vTmp+3
    a(f'''
    v_max3_f32 v{vMx}, v{s0}, v{s1}, v{s2_}
    v_max_f32 v{vMx}, v{vMx}, v{s3_}
    ''')
    allreduce_rows('v_max_f32', vMx, vTmp)
    a(f'''
    v_mul_f32 v{vMx}, s{sC2}, v{vMx}
    v_fma_f32 v{s0}, v{s0}, s{sC2}, -v{vMx}
    v_fma_f32 v{s1}, v{s1}, s{sC2}, -v{vMx}
    v_fma_f32 v{s2_}, v{s2_}, s{sC2}, -v{vMx}
    v_fma_f32 v{s3_}, v{s3_}, s{sC2}, -v{vMx}
    v_exp_f32 v{s0}, v{s0}
    v_exp_f32 v{s1}, v{s1}
    v_exp_f32 v{s2_}, v{s2_}
    v_exp_f32 v{s3_}, v{s3_}
    v_add_f32 v{vLs}, v{s0}, v{s1}
    v_add_f32 v{vTmp+4}, v{s2_}, v{s3_}
    v_add_f32 v{vLs}, v{vLs}, v{vTmp+4}
    ''')
    for r in range(4):
        a(f'v_cvt_pk_bf16_f32 v{vTmp+4+r}, v{vS+r}, v{vS+r}')
    allreduce_rows('v_add_f32', vLs, vTmp)
    for r in range(4):
        for k in range(4):
            a(f'v_and_b32 v{vPA+4*r+k}, v{vTmp+4+r}, v{vM+k}')
    a(f'''
    v_lshrrev_b32 v{vTmp}, 3, v{vN}
    v_lshlrev_b32 v{vTmp}, 3, v{vTmp}
    s_lshl_b32 s{sT0}, s3, 4
    v_add_u32 v{vTmp}, s{sT0}, v{vTmp}
    s_mov_b32 exec_lo, 0x101
    s_mov_b32 exec_hi, 0
    ds_write_b64 v{vTmp}, v[{vMx}:{vLs}] offset:{MLW_LDS}
    s_mov_b64 exec, -1
    ''')
    assert vLs == vMx + 1 and vMx % 2 == 0
    stamp('qk', 'm')
    a(f'''
    s_cmp_lt_u32 s{sJ}, 18
    s_cbranch_scc1 L_m_now1
    s_cmp_lt_u32 s3, 2
    s_cbranch_scc1 L_m_now1
    ''')
    for g in range(7):
        a(f'global_load_dwordx4 v[{vW1+4*g}:{vW1+4*g+3}], v{vW1off}, s[{sW1}:{sW1+1}]{NT}')
        if g < 6:
            a(f's_add_u32 s{sW1}, s{sW1}, {4*3584}\ns_addc_u32 s{sW1+1}, s{sW1+1}, 0')
    def issue_wo():
        a(f'''
    s_mov_b32 exec_lo, 0x3fff3fff
    s_mov_b32 exec_hi, 0x3fff3fff
    global_load_dwordx4 v[{vWO}:{vWO+3}], v{vWoff}, s[{sWO}:{sWO+1}]{NT}
    global_load_dwordx4 v[{vWO+4}:{vWO+7}], v{vWoff}, s[{sWO}:{sWO+1}] offset:3584{NT}
    s_add_u32 s{sWO}, s{sWO}, 7168
    s_addc_u32 s{sWO+1}, s{sWO+1}, 0
    global_load_dwordx4 v[{vWO+8}:{vWO+11}], v{vWoff}, s[{sWO}:{sWO+1}]{NT}
    global_load_dwordx4 v[{vWO+12}:{vWO+15}], v{vWoff}, s[{sWO}:{sWO+1}] offset:3584{NT}
    s_mov_b64 exec, -1
    ''')
    issue_wo()
    a(f'''
    v_bfe_u32 v{vTmp}, v{vL}, 3, 1
    v_mul_u32_u24 v{vTmp}, 896, v{vTmp}
    v_lshl_add_u32 v{vTmp}, v{vKS}, 1, v{vTmp}
    s_lshl_b32 s{sT0}, s{sT3}, 1
    v_add_u32 v{vTmp}, s{sT0}, v{vTmp}
    ''')
    for g in range(7):
        a(f'ds_read_u16 v{vTmp+1+g}, v{vTmp} offset:{X_LDS + 8*g}')
    a('s_waitcnt lgkmcnt(0)')
    for g in range(7):
        a(f'v_lshl_or_b32 v{vTmp+1+g}, v{vTmp+1+g}, 16, v{vTmp+1+g}')
    for g in range(7):
        for k in range(4):
            a(f'v_and_b32 v{vXA+4*g+k}, v{vTmp+1+g}, v{vM+k}')
    a(f'''
    s_waitcnt vmcnt(11)
    s_branch L_m_pv
L_m_now1:
    ''')
    issue_wo()
    a('''
    s_waitcnt vmcnt(4)
L_m_pv:
    ''')
    stamp('vdone', 'm')
    for r in range(4):
        for h in range(2):
            c = '0' if r == 0 else f'v[{vAcc+4*h}:{vAcc+4*h+3}]'
            i = r*2+h
            a(f'v_mfma_f32_16x16x32_bf16 v[{vAcc+4*h}:{vAcc+4*h+3}], v[{vPA+4*r}:{vPA+4*r+3}], v[{vV+4*i}:{vV+4*i+3}], {c}')
    a(f'''
    s_mov_b32 exec_lo, 0x3fff3fff
    s_mov_b32 exec_hi, 0x3fff3fff
    global_load_dwordx4 v[{vW2}:{vW2+3}], v{vWoff}, s[{sW2}:{sW2+1}]{NT}
    global_load_dwordx4 v[{vW2+4}:{vW2+7}], v{vWoff}, s[{sW2}:{sW2+1}] offset:3584{NT}
    s_mov_b64 exec, -1
    v_lshrrev_b32 v{vTmp}, 5, v{vL}
    v_lshlrev_b32 v{vTmp}, 10, v{vTmp}
    v_lshl_add_u32 v{vTmp}, v{vN}, 5, v{vTmp}
    v_and_b32 v{vTmp+1}, 1, v{vKS}
    v_lshl_add_u32 v{vTmp}, v{vTmp+1}, 4, v{vTmp}
    s_lshl_b32 s{sT0}, s3, 13
    v_add_u32 v{vTmp}, s{sT0}, v{vTmp}
    ds_write_b128 v{vTmp}, v[{vAcc}:{vAcc+3}]
    ds_write_b128 v{vTmp}, v[{vAcc+4}:{vAcc+7}] offset:512
    s_waitcnt lgkmcnt(0)
    s_barrier
    ''')
    stamp('pv', 'm')
    a(f'''
    s_cmp_ge_u32 s3, 2
    s_cbranch_scc1 L_m_ffn1
    ''')
    vO = vPA
    vMl = vV
    a(f'''
    s_lshl_b32 s{sT0}, s3, 10
    v_lshlrev_b32 v{vTmp}, 4, v{vL}
    v_add_u32 v{vTmp}, s{sT0}, v{vTmp}              ; h*1024 + l*16
    s_lshl_b32 s{sT0}, s3, 3
    v_mov_b32 v{vTmp+1}, s{sT0}                     ; h*8
    ''')
    for ww in range(4):
        a(f'ds_read_b64 v[{vMl+2*ww}:{vMl+2*ww+1}], v{vTmp+1} offset:{MLW_LDS + 16*ww}')
    for ww in range(4):
        a(f'ds_read_b128 v[{vO+4*ww}:{vO+4*ww+3}], v{vTmp} offset:{8192*ww}')
    a(f'''
    s_lshl_b32 s{sT0}, s{sHKV}, 1
    s_add_u32 s{sT0}, s{sT0}, s3                    ; hkv*2+h
    s_lshl_b32 s{sT1}, s{sT0}, 15
    s_lshl_b32 s{sT2}, s{sB}, 10
    s_add_u32 s{sT1}, s{sT1}, s{sT2}
    s_lshl_b32 s{sT2}, s{sC}, 6
    s_add_u32 s{sT1}, s{sT1}, s{sT2}
    s_add_u32 s{sT1}, s{sT1}, {WS_OP}
    v_lshrrev_b32 v{vTmp+2}, 2, v{vL}
    v_lshlrev_b32 v{vTmp+2}, 11, v{vTmp+2}
    v_and_b32 v{vTmp+3}, 3, v{vL}
    v_lshl_add_u32 v{vTmp+2}, v{vTmp+3}, 4, v{vTmp+2}
    v_add_u32 v{vTmp+2}, s{sT1}, v{vTmp+2}
    s_lshl_b32 s{sT0}, s{sT0}, 1
    s_add_u32 s{sT0}, s{sT0}, s{sB}
    s_lshl_b32 s{sT0}, s{sT0}, 8
    s_lshl_b32 s{sT2}, s{sC}, 4
    s_add_u32 s{sT0}, s{sT0}, s{sT2}
    s_add_u32 s{sT0}, s{sT0}, {WS_ML}
    v_mov_b32 v{vTmp+3}, s{sT0}
    s_waitcnt lgkmcnt(0)
    v_max3_f32 v{vTmp+4}, v{vMl}, v{vMl+2}, v{vMl+4}
    v_max_f32 v{vTmp+4}, v{vTmp+4}, v{vMl+6}        ; M
    ''')
    for ww in range(4):
        a(f'v_sub_f32 v{vMl+2*ww}, v{vMl+2*ww}, v{vTmp+4}')
    for ww in range(4):
        a(f'v_exp_f32 v{vMl+2*ww}, v{vMl+2*ww}')
    for k in range(4):
        a(f'v_mul_f32 v{vO+k}, v{vMl}, v{vO+k}')
    a(f'v_mul_f32 v{vTmp+5}, v{vMl}, v{vMl+1}')
    for ww in range(1, 4):
        for k in range(4):
            a(f'v_fmac_f32 v{vO+k}, v{vMl+2*ww}, v{vO+4*ww+k}')
        a(f'v_fmac_f32 v{vTmp+5}, v{vMl+2*ww}, v{vMl+2*ww+1}')
    tag_insert([vO, vO+1, vO+2, vO+3])
    a(f'global_store_dwordx4 v{vTmp+2}, v[{vO}:{vO+3}], s[{sWS}:{sWS+1}] sc1')
    a(f'''
    v_mov_b32 v{vO+4}, v{vTmp+4}
    v_mov_b32 v{vO+5}, v{vTmp+5}
    v_mov_b32 v{vO+6}, v{vTmp+4}
    v_mov_b32 v{vO+7}, v{vTmp+5}
    ''')
    tag_insert([vO+4, vO+5, vO+6, vO+7])
    a(f'''
    s_mov_b64 exec, 1
    global_store_dwordx4 v{vTmp+3}, v[{vO+4}:{vO+7}], s[{sWS}:{sWS+1}] sc1
    s_mov_b64 exec, -1
    s_branch L_m_h2
L_m_ffn1:
    s_cmp_lt_u32 s{sJ}, 18
    s_cbranch_scc1 L_m_h2
    s_waitcnt vmcnt(6)
    ''')
    for g in range(7):
        c = '0' if g == 0 else f'v[{vAcc}:{vAcc+3}]'
        a(f'v_mfma_f32_16x16x32_bf16 v[{vAcc}:{vAcc+3}], v[{vXA+4*g}:{vXA+4*g+3}], v[{vW1+4*g}:{vW1+4*g+3}], {c}')
    a(f'''
    s_sub_u32 s{sT0}, s{sJ}, 18
    s_lshl_b32 s{sT0}, s{sT0}, 14                   ; *32*512
    s_lshl_b32 s{sT1}, s{sHKV}, 1
    s_and_b32 s{sT2}, s3, 1
    s_add_u32 s{sT1}, s{sT1}, s{sT2}
    s_lshl_b32 s{sT1}, s{sT1}, 4
    s_add_u32 s{sT0}, s{sT0}, s{sT1}
    s_add_u32 s{sT0}, s{sT0}, {WS_HP}
    v_and_b32 v{vTmp+1}, 1, v{vKS}
    v_lshl_add_u32 v{vTmp+1}, v{vN}, 1, v{vTmp+1}   ; 2n + (g4&1)
    v_lshlrev_b32 v{vTmp+1}, 9, v{vTmp+1}
    v_lshrrev_b32 v{vTmp+2}, 5, v{vL}
    v_lshl_add_u32 v{vTmp+1}, v{vTmp+2}, 8, v{vTmp+1}
    v_add_u32 v{vTmp+1}, s{sT0}, v{vTmp+1}
    ''')
    tag_insert([vAcc, vAcc+1, vAcc+2, vAcc+3])
    a(f'global_store_dwordx4 v{vTmp+1}, v[{vAcc}:{vAcc+3}], s[{sWS}:{sWS+1}] sc1')
    a('L_m_h2:')
    stamp('opub', 'm')
    vDa, vDb, vMa, vMb, vH = vV, vV+4, vV+8, vV+12, vV+16
    vAd, vAm, vAh = vV+20, vV+21, vV+22
    a(f'''
    s_lshr_b32 s{sT0}, s{sRG}, 2
    s_lshl_b32 s{sT1}, s{sHKV}, 1
    s_add_u32 s{sT0}, s{sT0}, s{sT1}                ; hkv*2+h
    s_and_b32 s{sT1}, s{sRG}, 3
    s_lshl_b32 s{sT1}, s{sT1}, 2
    s_add_u32 s{sT1}, s{sT1}, s3                    ; dblk
    s_lshl_b32 s{sT2}, s{sT0}, 15
    s_lshl_b32 s{sT1}, s{sT1}, 11
    s_add_u32 s{sT2}, s{sT2}, s{sT1}
    s_add_u32 s{sT2}, s{sT2}, {WS_OP}
    v_bfe_u32 v{vTmp}, v{vL}, 3, 1                  ; b
    v_bfe_u32 v{vTmp+1}, v{vL}, 2, 1                ; cb
    v_lshl_add_u32 v{vTmp+1}, v{vKS}, 1, v{vTmp+1}
    v_lshlrev_b32 v{vAd}, 10, v{vTmp}
    v_lshl_add_u32 v{vAd}, v{vTmp+1}, 6, v{vAd}
    v_and_b32 v{vTmp+2}, 3, v{vL}
    v_lshl_add_u32 v{vAd}, v{vTmp+2}, 4, v{vAd}
    v_add_u32 v{vAd}, s{sT2}, v{vAd}
    s_lshl_b32 s{sT0}, s{sT0}, 9
    s_add_u32 s{sT0}, s{sT0}, {WS_ML}
    v_lshlrev_b32 v{vAm}, 8, v{vTmp}
    v_lshl_add_u32 v{vAm}, v{vTmp+1}, 4, v{vAm}
    v_add_u32 v{vAm}, s{sT0}, v{vAm}
    s_lshl_b32 s{sT0}, s{sU}, 3
    s_lshl_b32 s{sT1}, s3, 1
    s_add_u32 s{sT0}, s{sT0}, s{sT1}
    s_lshl_b32 s{sT0}, s{sT0}, 9
    s_add_u32 s{sT0}, s{sT0}, {WS_HP}
    v_and_b32 v{vTmp+1}, 1, v{vKS}
    v_lshlrev_b32 v{vAh}, 9, v{vTmp+1}
    v_lshl_add_u32 v{vAh}, v{vTmp}, 8, v{vAh}
    v_and_b32 v{vTmp+1}, 7, v{vL}
    v_lshl_add_u32 v{vAh}, v{vTmp+1}, 4, v{vAh}
    v_lshrrev_b32 v{vTmp+1}, 5, v{vL}
    v_lshl_add_u32 v{vAh}, v{vTmp+1}, 7, v{vAh}
    v_add_u32 v{vAh}, s{sT0}, v{vAh}
    v_lshlrev_b32 v{vTmp+1}, 2, v{vTmp+1}
    ds_read_b32 v{vS}, v{vTmp+1} offset:{G_LDS}
    ds_read_b32 v{vS+1}, v{vTmp+1} offset:{G_LDS+8}
    s_mov_b32 s{sSPIN}, {o['spin']}
L_h2_loop:
    global_load_dwordx4 v[{vMa}:{vMa+3}], v{vAm}, s[{sWS}:{sWS+1}] sc1
    global_load_dwordx4 v[{vMb}:{vMb+3}], v{vAm}, s[{sWS}:{sWS+1}] offset:128 sc1
    global_load_dwordx4 v[{vDa}:{vDa+3}], v{vAd}, s[{sWS}:{sWS+1}] sc1
    global_load_dwordx4 v[{vDb}:{vDb+3}], v{vAd}, s[{sWS}:{sWS+1}] offset:512 sc1
    global_load_dwordx4 v[{vH}:{vH+3}], v{vAh}, s[{sWS}:{sWS+1}] sc1
    s_waitcnt vmcnt(0)
    ''')
    tag_check(vMa, vTmp, vTmp+2)
    tag_check(vMb, vTmp, vTmp+3)
    tag_check(vDa, vTmp, vTmp+4)
    tag_check(vDb, vTmp, vTmp+5)
    tag_check(vH, vTmp, vTmp+6)
    a(f'''
    v_or3_b32 v{vTmp+2}, v{vTmp+2}, v{vTmp+3}, v{vTmp+4}
    v_or3_b32 v{vTmp+2}, v{vTmp+2}, v{vTmp+5}, v{vTmp+6}
    v_cmp_ne_u32 vcc, 0, v{vTmp+2}
    s_cbranch_vccz L_h2_ok
    s_sub_u32 s{sSPIN}, s{sSPIN}, 1
    s_cmp_lg_u32 s{sSPIN}, 0
    s_cbranch_scc1 L_h2_loop
L_h2_ok:
    ''')
    stamp('h2', 'm')
    vMxx, vWa, vWb, vLp, vX = vTmp, vTmp+1, vTmp+2, vTmp+3, vTmp+4
    tt = vTmp+8; tt2 = vTmp+9
    a(f'v_max_f32 v{vMxx}, v{vMa}, v{vMb}')
    xor4('v_max_f32', vMxx, tt)
    allreduce_rows('v_max_f32', vMxx, tt)
    a(f'''
    v_sub_f32 v{vWa}, v{vMa}, v{vMxx}
    v_sub_f32 v{vWb}, v{vMb}, v{vMxx}
    v_exp_f32 v{vWa}, v{vWa}
    v_exp_f32 v{vWb}, v{vWb}
    v_mul_f32 v{vLp}, v{vWa}, v{vMa+1}
    v_fmac_f32 v{vLp}, v{vWb}, v{vMb+1}
    ''')
    for k in range(4):
        a(f'v_mul_f32 v{vX+k}, v{vWa}, v{vDa+k}')
    for k in range(4):
        a(f'v_fmac_f32 v{vX+k}, v{vWb}, v{vDb+k}')
    xor4('v_add_f32', vLp, tt)
    allreduce_rows('v_add_f32', vLp, tt)
    a(f'''
    v_permlane32_swap_b32 v{vX}, v{vX+2}
    v_permlane32_swap_b32 v{vX+1}, v{vX+3}
    v_add_f32 v{vX}, v{vX}, v{vX+2}
    v_add_f32 v{vX+1}, v{vX+1}, v{vX+3}
    v_rcp_f32 v{vLp}, v{vLp}
    v_permlane16_swap_b32 v{vX}, v{vX+1}
    v_add_f32 v{vX}, v{vX}, v{vX+1}
    ''')
    xor4('v_add_f32', vX, tt)
    a(f'''
    v_mul_f32 v{vX}, v{vX}, v{vLp}
    v_cvt_pk_bf16_f32 v{vX}, v{vX}, v{vX}
    ''')
    vAo = vPA
    for g in range(4):
        for k in range(4):
            a(f'v_and_b32_dpp v{vAo+4*g+k}, v{vX}, v{vM+k} quad_perm:[{g},{g},{g},{g}] row_mask:0xf bank_mask:0xf')
    a(f'''
    v_permlane32_swap_b32 v{vH}, v{vH+2}
    v_permlane32_swap_b32 v{vH+1}, v{vH+3}
    v_add_f32 v{vH}, v{vH}, v{vH+2}
    v_add_f32 v{vH+1}, v{vH+1}, v{vH+3}
    v_add_f32_dpp v{vH}, v{vH}, v{vH} quad_perm:[1,0,3,2] row_mask:0xf bank_mask:0xf
    v_add_f32_dpp v{vH+1}, v{vH+1}, v{vH+1} quad_perm:[1,0,3,2] row_mask:0xf bank_mask:0xf
    v_add_f32_dpp v{vH}, v{vH}, v{vH} quad_perm:[2,3,0,1] row_mask:0xf bank_mask:0xf
    v_add_f32_dpp v{vH+1}, v{vH+1}, v{vH+1} quad_perm:[2,3,0,1] row_mask:0xf bank_mask:0xf
    v_add_f32_dpp v{vH}, v{vH}, v{vH} row_half_mirror row_mask:0xf bank_mask:0xf
    v_add_f32_dpp v{vH+1}, v{vH+1}, v{vH+1} row_half_mirror row_mask:0xf bank_mask:0xf
    v_permlane16_swap_b32 v{vH}, v{vH+1}
    v_max_f32 v{vH}, 0, v{vH}
    v_max_f32 v{vH+1}, 0, v{vH+1}
    v_cvt_pk_bf16_f32 v{vH}, v{vH}, v{vH}
    v_cvt_pk_bf16_f32 v{vH+1}, v{vH+1}, v{vH+1}
    ''')
    vAh2 = vXA
    for g in range(2):
        for k in range(4):
            a(f'v_and_b32 v{vAh2+4*g+k}, v{vH+g}, v{vM+k}')
    accA, accB = vAcc, vAcc+4
    for g in range(4):
        c = '0' if g == 0 else f'v[{accA}:{accA+3}]'
        a(f'v_mfma_f32_16x16x32_bf16 v[{accA}:{accA+3}], v[{vAo+4*g}:{vAo+4*g+3}], v[{vWO+4*g}:{vWO+4*g+3}], {c}')
    for g in range(2):
        c = '0' if g == 0 else f'v[{accB}:{accB+3}]'
        a(f'v_mfma_f32_16x16x32_bf16 v[{accB}:{accB+3}], v[{vAh2+4*g}:{vAh2+4*g+3}], v[{vW2+4*g}:{vW2+4*g+3}], {c}')
    a(f'''
    s_waitcnt lgkmcnt(0)
    v_mul_f32 v{vS+1}, s{sOGZ}, v{vS+1}
    v_lshrrev_b32 v{vTmp}, 5, v{vL}
    v_lshlrev_b32 v{vTmp}, 9, v{vTmp}
    v_lshl_add_u32 v{vTmp}, v{vN}, 5, v{vTmp}
    v_and_b32 v{vTmp+1}, 1, v{vKS}
    v_lshl_add_u32 v{vTmp}, v{vTmp+1}, 4, v{vTmp}
    s_lshl_b32 s{sT0}, s3, 13
    v_add_u32 v{vTmp}, s{sT0}, v{vTmp}
    ''')
    for k in range(4):
        a(f'v_mul_f32 v{accA+k}, v{vS}, v{accA+k}')
    for k in range(4):
        a(f'v_fmac_f32 v{accA+k}, v{vS+1}, v{accB+k}')
    a(f'''
    ds_write_b128 v{vTmp}, v[{accA}:{accA+3}] offset:4096
    s_waitcnt lgkmcnt(0)
    s_barrier
    s_cmp_lg_u32 s3, 0
    s_cbranch_scc1 L_m_done
    v_and_b32 v{vTmp}, 31, v{vL}
    v_lshrrev_b32 v{vTmp+1}, 5, v{vL}
    v_lshlrev_b32 v{vTmp+2}, 9, v{vTmp+1}
    v_lshl_add_u32 v{vTmp+2}, v{vTmp}, 4, v{vTmp+2}
    ''')
    for ww in range(4):
        a(f'ds_read_b128 v[{vO+4*ww}:{vO+4*ww+3}], v{vTmp+2} offset:{8192*ww+4096}')
    a(f'''
    v_mul_u32_u24 v{vTmp+1}, 112, v{vTmp+1}
    v_add_u32 v{vTmp+1}, v{vTmp+1}, v{vTmp}
    v_lshlrev_b32 v{vTmp+1}, 10, v{vTmp+1}
    s_mul_i32 s{sT0}, s{sCT}, {28*1024}
    s_lshl_b32 s{sT1}, s{sHKV}, 3
    s_add_u32 s{sT1}, s{sT1}, s{sRG}
    s_lshl_b32 s{sT1}, s{sT1}, 4
    s_add_u32 s{sT0}, s{sT0}, s{sT1}
    s_add_u32 s{sT0}, s{sT0}, {WS_FP}
    v_add_u32 v{vTmp+1}, s{sT0}, v{vTmp+1}
    s_waitcnt lgkmcnt(0)
    ''')
    for k in range(4):
        a(f'v_add_f32 v{vO+k}, v{vO+k}, v{vO+4+k}')
        a(f'v_add_f32 v{vO+8+k}, v{vO+8+k}, v{vO+12+k}')
    for k in range(4):
        a(f'v_add_f32 v{vO+k}, v{vO+k}, v{vO+8+k}')
    tag_insert([vO, vO+1, vO+2, vO+3])
    a(f'''
    s_mov_b32 exec_lo, 0x0fffffff
    s_mov_b32 exec_hi, 0x0fffffff
    global_store_dwordx4 v{vTmp+1}, v[{vO}:{vO+3}], s[{sWS}:{sWS+1}] sc1
    s_mov_b64 exec, -1
    ''')
    stamp('fpub', 'm')
    vF = vV
    a(f'''
    s_cmp_ge_u32 s2, 224
    s_cbranch_scc1 L_m_done
    s_lshl_b32 s{sT0}, s2, 10
    s_add_u32 s{sT0}, s{sT0}, {WS_FP}
    v_lshlrev_b32 v{vTmp}, 4, v{vL}
    v_add_u32 v{vTmp}, s{sT0}, v{vTmp}
    s_mov_b32 s{sSPIN}, {o['spin']}
L_h3_loop:
    global_load_dwordx4 v[{vF}:{vF+3}], v{vTmp}, s[{sWS}:{sWS+1}] sc1
    s_waitcnt vmcnt(0)
    ''')
    tag_check(vF, vTmp+2, vTmp+4)
    a(f'''
    v_cmp_ne_u32 vcc, 0, v{vTmp+4}
    s_cbranch_vccz L_h3_ok
    s_sub_u32 s{sSPIN}, s{sSPIN}, 1
    s_cmp_lg_u32 s{sSPIN}, 0
    s_cbranch_scc1 L_h3_loop
L_h3_ok:
    ''')
    stamp('h3', 'm')
    a(f'''
    v_permlane32_swap_b32 v{vF}, v{vF+2}
    v_permlane32_swap_b32 v{vF+1}, v{vF+3}
    v_add_f32 v{vF}, v{vF}, v{vF+2}
    v_add_f32 v{vF+1}, v{vF+1}, v{vF+3}
    v_permlane16_swap_b32 v{vF}, v{vF+1}
    v_add_f32 v{vF}, v{vF}, v{vF+1}
    v_add_f32_dpp v{vF}, v{vF}, v{vF} row_ror:8 row_mask:0xf bank_mask:0xf
    v_add_f32_dpp v{vF}, v{vF}, v{vF} row_ror:4 row_mask:0xf bank_mask:0xf
    v_add_f32_dpp v{vF}, v{vF}, v{vF} row_ror:2 row_mask:0xf bank_mask:0xf
    v_add_f32_dpp v{vF}, v{vF}, v{vF} row_ror:1 row_mask:0xf bank_mask:0xf
    v_cvt_pk_bf16_f32 v{vF}, v{vF}, v{vF}
    s_lshl_b32 s{sT0}, s2, 3
    v_lshlrev_b32 v{vTmp}, 1, v{vKS}
    v_add_u32 v{vTmp}, s{sT0}, v{vTmp}
    s_mov_b32 exec_lo, 0x00010001
    s_mov_b32 exec_hi, 0x00010001
    global_store_short v{vTmp}, v{vF}, s[{sOUT}:{sOUT+1}]
    s_mov_b64 exec, -1
    s_cmp_lg_u32 s2, 0
    s_cbranch_scc1 L_m_done
    v_mov_b32 v{vTmp}, 0
    s_mov_b64 exec, 1
    global_store_dword v{vTmp}, v{vT}, s[{sWS}:{sWS+1}] sc1
    s_mov_b64 exec, -1
L_m_done:
    ''')
    stamp('end', 'm')
    a('s_branch L_fin')

    a('L_aux:')
    if o['prio']:
        a('s_setprio 3')
    vA16, vWq, vTr, vXr = 4, 5, 6, 7
    vE = vT
    vXB = 8
    vWA = 36
    vD0, vD1 = 68, 72
    vt = 76
    vP = 96
    a(f'''
    v_lshlrev_b32 v{vA16}, 4, v{vL}                 ; l*16
    v_lshrrev_b32 v{vt}, 2, v{vL}
    v_and_b32 v{vt+1}, 3, v{vL}
    v_lshlrev_b32 v{vt+1}, 4, v{vt+1}
    v_lshl_add_u32 v{vWq}, v{vt}, 13, v{vt+1}       ; (l>>2)*8192 + (l&3)*16
    v_lshrrev_b32 v{vt}, 2, v{vN}
    v_lshlrev_b32 v{vt}, 6, v{vt}
    v_and_b32 v{vt+1}, 3, v{vN}
    v_lshl_add_u32 v{vt}, v{vt+1}, 3, v{vt}
    v_lshl_add_u32 v{vTr}, v{vKS}, 9, v{vt}
    s_and_b32 s{sT0}, s{sJ}, 1                      ; rh
    s_lshr_b32 s{sT1}, s{sJ}, 1                     ; ct32
    v_lshrrev_b32 v{vt}, 3, v{vN}
    v_mul_u32_u24 v{vt}, 896, v{vt}
    v_lshl_add_u32 v{vXr}, v{vKS}, 4, v{vt}
    s_mul_i32 s{sT2}, s{sT0}, 448
    v_add_u32 v{vXr}, s{sT2}, v{vXr}
    s_mul_i32 s{sT2}, s{sT0}, {224*8192}
    s_lshl_b32 s{sT3}, s{sHKV}, 10
    s_add_u32 s{sT2}, s{sT2}, s{sT3}
    s_lshl_b32 s{sT3}, s{sT1}, 6
    s_add_u32 s{sT2}, s{sT2}, s{sT3}
    v_mov_b32 v{vt+2}, 0
    s_waitcnt lgkmcnt(0)
    ''')
    stamp('karg', 'a')
    a(f'''
    global_load_dword v{vE}, v{vt+2}, s[{sWS}:{sWS+1}] sc1
    s_add_u32 s{sWQ}, s{sWQ}, s{sT2}
    s_addc_u32 s{sWQ+1}, s{sWQ+1}, 0
    s_mov_b32 m0, {X_LDS}
    s_nop 0
    global_load_lds_dwordx4 v{vA16}, s[{sX}:{sX+1}]
    s_mov_b32 exec_lo, -1
    s_mov_b32 exec_hi, 0x0000ffff
    global_load_lds_dwordx4 v{vA16}, s[{sX}:{sX+1}] offset:1024
    s_mov_b32 m0, {GW_LDS}
    s_mov_b32 exec_hi, 0x00ffffff
    global_load_lds_dwordx4 v{vA16}, s[{sGW}:{sGW+1}]
    s_mov_b64 exec, -1
    ''')
    for s in range(14):
        a(f's_mov_b32 m0, {WQ_LDS + s*1024}')
        if s > 0:
            a(f's_add_u32 s{sWQ}, s{sWQ}, {16*8192}\ns_addc_u32 s{sWQ+1}, s{sWQ+1}, 0')
        else:
            a('s_nop 0')
        a(f'global_load_lds_dwordx4 v{vWq}, s[{sWQ}:{sWQ+1}]{NT}')
    if o['b1']:
        a('s_barrier')
    stamp('issued', 'a')
    a('s_waitcnt vmcnt(14)')
    a(f'v_add_u32 v{vT}, 0x01010101, v{vE}')
    for s in range(7):
        a(f'ds_read_b128 v[{vXB+4*s}:{vXB+4*s+3}], v{vXr} offset:{X_LDS + 64*s}')
    for s in range(7):
        wa = vWA + 16*(s & 1)
        a(f's_waitcnt vmcnt({14 - 2*s - 2})')
        for cg in range(2):
            for hf in range(2):
                a(f'ds_read_b64_tr_b16 v[{wa+8*cg+2*hf}:{wa+8*cg+2*hf+1}], v{vTr} offset:{WQ_LDS + s*2048 + hf*256 + cg*32}')
        a('s_waitcnt lgkmcnt(0)')
        for cg in range(2):
            d = vD0 if cg == 0 else vD1
            c = '0' if s == 0 else f'v[{d}:{d+3}]'
            a(f'v_mfma_f32_16x16x32_bf16 v[{d}:{d+3}], v[{wa+8*cg}:{wa+8*cg+3}], v[{vXB+4*s}:{vXB+4*s+3}], {c}')
    stamp('a_wq', 'a')
    a(f'''
    s_lshl_b32 s{sT2}, s{sHKV}, 1
    s_add_u32 s{sT2}, s{sT2}, s{sT0}
    s_lshl_b32 s{sT2}, s{sT2}, 12
    s_lshl_b32 s{sT3}, s{sT1}, 7
    s_add_u32 s{sT2}, s{sT2}, s{sT3}
    s_add_u32 s{sT2}, s{sT2}, {WS_QP}
    v_bfe_u32 v{vt}, v{vL}, 3, 1
    v_lshlrev_b32 v{vt}, 11, v{vt}
    v_and_b32 v{vt+1}, 1, v{vL}
    v_lshl_add_u32 v{vt}, v{vt+1}, 6, v{vt}
    v_lshl_add_u32 v{vt}, v{vKS}, 4, v{vt}
    v_add_u32 v{vt}, s{sT2}, v{vt}
    v_cmp_eq_u32 vcc, 1, v{vt+1}
    ''')
    for k in range(4):
        a(f'v_cndmask_b32 v{vD0+k}, v{vD0+k}, v{vD1+k}, vcc')
    tag_insert([vD0, vD0+1, vD0+2, vD0+3])
    a(f'''
    s_mov_b32 exec_lo, 0x03030303
    s_mov_b32 exec_hi, 0x03030303
    global_store_dwordx4 v{vt}, v[{vD0}:{vD0+3}], s[{sWS}:{sWS+1}] sc1
    s_mov_b64 exec, -1
    ''')
    stamp('a_qpub', 'a')
    g0 = vXB
    a(f'''
    v_mov_b32 v{vt+4}, 0
    v_mov_b32 v{vt+5}, 0
    s_mov_b32 exec_lo, -1
    s_mov_b32 exec_hi, 0x00ffffff
    ds_read_b128 v[{g0}:{g0+3}], v{vA16} offset:{X_LDS}
    ds_read_b128 v[{g0+4}:{g0+7}], v{vA16} offset:{X_LDS+896}
    ds_read_b128 v[{g0+8}:{g0+11}], v{vA16} offset:{GW_LDS}
    s_waitcnt lgkmcnt(0)
    ''')
    for k in range(4):
        a(f'v_dot2_f32_bf16 v{vt+4}, v{g0+k}, v{g0+8+k}, v{vt+4}')
        a(f'v_dot2_f32_bf16 v{vt+5}, v{g0+4+k}, v{g0+8+k}, v{vt+5}')
    a('s_mov_b64 exec, -1')
    for r in (vt+4, vt+5):
        for n in (8, 4, 2, 1):
            a(f'v_add_f32_dpp v{r}, v{r}, v{r} row_ror:{n} row_mask:0xf bank_mask:0xf')
    allreduce_rows('v_add_f32', vt+4, vt+6)
    allreduce_rows('v_add_f32', vt+5, vt+6)
    a(f'''
    v_and_b32 v{vt+6}, 1, v{vL}
    v_cmp_eq_u32 vcc, 1, v{vt+6}
    v_cndmask_b32 v{vt+4}, v{vt+4}, v{vt+5}, vcc
    v_cvt_pk_bf16_f32 v{vt+4}, v{vt+4}, v{vt+4}
    v_lshlrev_b32 v{vt+4}, 16, v{vt+4}
    v_mul_f32 v{vt+4}, {hex(f2u(-LOG2E))}, v{vt+4}
    v_exp_f32 v{vt+4}, v{vt+4}
    v_add_f32 v{vt+4}, 1.0, v{vt+4}
    v_rcp_f32 v{vt+4}, v{vt+4}
    v_cvt_pk_bf16_f32 v{vt+4}, v{vt+4}, v{vt+4}
    v_lshlrev_b32 v{vt+4}, 16, v{vt+4}              ; g
    v_sub_f32 v{vt+5}, 1.0, v{vt+4}
    v_cvt_pk_bf16_f32 v{vt+5}, v{vt+5}, v{vt+5}
    v_lshlrev_b32 v{vt+5}, 16, v{vt+5}              ; 1-g
    v_lshlrev_b32 v{vt+6}, 2, v{vt+6}               ; b*4
    s_mov_b64 exec, 3
    ds_write_b32 v{vt+6}, v{vt+4} offset:{G_LDS}
    ds_write_b32 v{vt+6}, v{vt+5} offset:{G_LDS+8}
    s_mov_b64 exec, -1
    s_lshl_b32 s{sT2}, s{sHKV}, 13
    s_lshl_b32 s{sT3}, s{sB}, 11
    s_add_u32 s{sT2}, s{sT2}, s{sT3}
    s_add_u32 s{sT2}, s{sT2}, {WS_QP}
    v_add_u32 v{vt}, s{sT2}, v{vA16}
    v_add_u32 v{vt+1}, 4096, v{vt}
    s_mov_b32 s{sSPIN}, {o['spin']}
L_h1_loop:
    global_load_dwordx4 v[{vP}:{vP+3}], v{vt}, s[{sWS}:{sWS+1}] sc1
    global_load_dwordx4 v[{vP+4}:{vP+7}], v{vt}, s[{sWS}:{sWS+1}] offset:1024 sc1
    global_load_dwordx4 v[{vP+8}:{vP+11}], v{vt+1}, s[{sWS}:{sWS+1}] sc1
    global_load_dwordx4 v[{vP+12}:{vP+15}], v{vt+1}, s[{sWS}:{sWS+1}] offset:1024 sc1
    s_waitcnt vmcnt(0)
    ''')
    for i in range(4):
        tag_check(vP+4*i, vt+2, vt+4+i)
    a(f'''
    v_or3_b32 v{vt+4}, v{vt+4}, v{vt+5}, v{vt+6}
    v_or_b32 v{vt+4}, v{vt+4}, v{vt+7}
    v_cmp_ne_u32 vcc, 0, v{vt+4}
    s_cbranch_vccz L_h1_ok
    s_sub_u32 s{sSPIN}, s{sSPIN}, 1
    s_cmp_lg_u32 s{sSPIN}, 0
    s_cbranch_scc1 L_h1_loop
L_h1_ok:
    ''')
    for part in range(2):
        for k in range(4):
            a(f'v_add_f32 v{vP+4*part+k}, v{vP+4*part+k}, v{vP+8+4*part+k}')
    a(f'''
    v_cvt_pk_bf16_f32 v{vP}, v{vP}, v{vP+1}
    v_cvt_pk_bf16_f32 v{vP+1}, v{vP+2}, v{vP+3}
    v_cvt_pk_bf16_f32 v{vP+2}, v{vP+4}, v{vP+5}
    v_cvt_pk_bf16_f32 v{vP+3}, v{vP+6}, v{vP+7}
    v_lshlrev_b32 v{vt}, 3, v{vL}
    ds_write_b64 v{vt}, v[{vP}:{vP+1}] offset:{Q_LDS}
    ds_write_b64 v{vt}, v[{vP+2}:{vP+3}] offset:{Q_LDS+512}
    s_waitcnt lgkmcnt(0)
    ''')
    stamp('a_poll', 'a')
    a('s_barrier')
    a('L_fin:')
    if o['stamps']:
        a(f'''
    s_waitcnt lgkmcnt(0)
    s_lshl_b32 s{sT0}, s2, 10
    s_lshl_b32 s{sT1}, s3, 7
    s_add_u32 s{sT0}, s{sT0}, s{sT1}
    s_add_u32 s{sT0}, s{sT0}, {WS_STAMP}
    v_mov_b32 v4, s{sT0}
    s_mov_b64 exec, 1
    ''')
        for i in range(16):
            a(f'''
    v_mov_b32 v6, s{64+2*i}
    v_mov_b32 v7, s{65+2*i}
    global_store_dwordx2 v4, v[6:7], s[{sWS}:{sWS+1}] offset:{8*i}
    s_nop 1
    ''')
    a('''
L_end:
    s_endpgm
    ''')
    body, n = hazard.fix(a.text())
    return wrap(body, (256,1,1), (320,1,1), LDS_BYTES, vgpr=NV_MAIN, sgpr=102), list(STAMP_IDX.keys())

if __name__ == '__main__':
    opts = json.loads(sys.argv[2]) if len(sys.argv) > 2 else {}
    s, names = gen(opts)
    open(sys.argv[1], 'w').write(s)
```

```python
import sys, json, struct
from asmgen import *
import hazard

WS_EPOCH = 0x0
WS_QP    = 0x1000
WS_HP    = 0x20000
WS_FP    = 0x60000
WS_OP    = 0x100000
WS_STAMP = 0x1000000
K_LDS  = 0
WQ_LDS = 32768
F5_LDS = WQ_LDS
X_LDS  = 47104
GW_LDS = 49152
Q_LDS  = 50176
G_LDS  = 51200
MX_LDS = 51216
LS_LDS = 51248
LDS_BYTES = 51328

LOG2E = 1.4426950408889634
def f2u(x): return struct.unpack('<I', struct.pack('<f', x))[0]

DEFAULTS = dict(nt=True, stamps=False, round_scores=True, spin=20000, b1=True, prio=True, W=4, ackwait=True)
STAMPS = ['start', 'karg', 'issued', 'kdone', 'qpoll', 'qready', 'qk', 'vdone', 'pv', 'opub', 'h2', 'fpub', 'h3', 'end', 'a_wq', 'a_x']

def gen(opts):
    o = dict(DEFAULTS); o.update(opts)
    NT = ' nt' if o['nt'] else ''
    a = Asm()
    SI = {n: i for i, n in enumerate(STAMPS)}
    def stamp(name):
        if o['stamps']:
            i = SI[name]
            a(f's_memrealtime s[{64+2*i}:{65+2*i}]')
    def note(slot, half, sreg):
        if o['stamps']: a(f's_mov_b32 s{64+2*slot+half}, s{sreg}')
    sX, sK, sV, sWQ, sWO, sW1, sW2, sGW, sOUT, sDBG, sWS = 4, 6, 8, 10, 12, 16, 18, 20, 22, 24, 26
    sHKV, sJ, sB, sC = 28, 29, 30, 31
    sT0, sT1, sT2, sT3 = 32, 33, 34, 35
    sWO2 = 36; sKM = 38; sOI = 39
    sSEL = 40; sCHA, sCHB = 44, 45
    sSPIN = 46; sT4 = 47
    sKB, sVB = 48, 50
    sRG, sCT, sU = 52, 53, 54
    sH3 = 55
    sOGZ = 58; sC2 = 59
    WS = f's[{sWS}:{sWS+1}]'
    vL, vN, vKS, vT = 0, 1, 2, 3

    def tag_insert(regs):
        for i, r in enumerate(regs):
            a(f'v_perm_b32 v{r}, v{r}, v{vT}, s{sSEL+i}')
    def chk(base, ca, cb, dst):
        return [f'v_perm_b32 v{ca}, v{base+1}, v{base}, s{sCHA}', f'v_perm_b32 v{cb}, v{base+3}, v{base+2}, s{sCHB}',
                f'v_bitop3_b32 v{dst}, v{ca}, v{cb}, v{vT} bitop3:0x56']
    def tag_check(base, tmp, dst):
        for ln in chk(base, tmp, tmp+1, dst): a(ln)
    def allreduce_rows(op, r, t):
        a(f'v_mov_b32 v{t}, v{r}')
        a(f'v_permlane16_swap_b32 v{t}, v{r}')
        a(f'{op} v{r}, v{r}, v{t}')
        a(f'v_mov_b32 v{t}, v{r}')
        a(f'v_permlane32_swap_b32 v{t}, v{r}')
        a(f'{op} v{r}, v{r}, v{t}')
    def masks(dst, t):
        a(f'''
    v_and_b32 v{t}, 1, v{vL}
    v_cmp_eq_u32 vcc, 1, v{t}
    v_mov_b32 v{t+1}, 0xffff
    v_mov_b32 v{t+2}, 0xffff0000
    v_cndmask_b32 v{t+1}, v{t+1}, v{t+2}, vcc
    v_bfe_u32 v{t+2}, v{vL}, 1, 2
    ''')
        for k in range(4):
            a(f'''
    v_cmp_eq_u32 vcc, {k}, v{t+2}
    v_cndmask_b32 v{dst+k}, 0, v{t+1}, vcc
    ''')

    stamp('start')
    a(f'''
    s_cmp_ge_u32 s2, 256
    s_cbranch_scc1 L_end
    s_load_dwordx16 s[4:19], s[0:1], 0
    s_load_dwordx8 s[20:27], s[0:1], 64
    v_lshrrev_b32 v4, 6, v0
    v_and_b32 v{vL}, 63, v0
    v_readfirstlane_b32 s3, v4
    v_and_b32 v{vN}, 15, v{vL}
    v_lshrrev_b32 v{vKS}, 4, v{vL}
    s_and_b32 s{sHKV}, s2, 7
    s_lshr_b32 s{sJ}, s2, 3
    s_lshr_b32 s{sB}, s{sJ}, 4
    s_and_b32 s{sC}, s{sJ}, 15
    s_lshr_b32 s{sRG}, s{sJ}, 2
    s_and_b32 s{sCT}, s{sJ}, 3
    s_mov_b32 s{sSEL}, 0x07060500
    s_mov_b32 s{sSEL+1}, 0x07060501
    s_mov_b32 s{sSEL+2}, 0x07060502
    s_mov_b32 s{sSEL+3}, 0x07060503
    s_mov_b32 s{sCHA}, 0x0c0c0400
    s_mov_b32 s{sCHB}, 0x04000c0c
    s_mov_b32 s{sSPIN}, {o['spin']}
    s_cmp_eq_u32 s3, 4
    s_cbranch_scc1 L_aux
    ''')

    vM = 4
    vVoff, vWoff, vQrd, vKrd, vQpoll, vQw = 8, 9, 10, 11, 12, 13
    vOw, vOr, vOP, vAd, vFw, vFr, vFP, vH3, vOut = 14, 15, 16, 17, 18, 19, 20, 21, 22
    vV = 24
    vWO = 56
    vKop = 72
    vQop = 104
    vPA = 72
    vAcc = 88
    vO = 96
    vS = 136
    vTmp = 140
    vMXa, vGf = 160, 161
    NV = 168
    vKoff = vQop
    a(f'''
    v_lshrrev_b32 v{vTmp}, 5, v{vL}                 ; hi
    v_and_b32 v{vTmp+1}, 31, v{vL}                  ; u
    v_xor_b32 v{vTmp+2}, v{vTmp+1}, v{vTmp}
    v_lshlrev_b32 v{vTmp+2}, 4, v{vTmp+2}
    v_lshl_add_u32 v{vKoff}, v{vTmp}, 9, v{vTmp+2}
    v_lshlrev_b32 v{vTmp+3}, 4, v{vN}               ; n*16
    v_lshl_add_u32 v{vVoff}, v{vKS}, 11, v{vTmp+3}
    s_lshl_b32 s{sT0}, s3, 13                       ; w*8192
    s_lshl_b32 s{sT1}, s{sB}, 3
    s_add_u32 s{sT1}, s{sT1}, s{sHKV}
    s_lshl_b32 s{sT1}, s{sT1}, 21
    s_add_u32 s{sT1}, s{sT1}, 1572864
    s_lshl_b32 s{sT2}, s{sC}, 15
    s_add_u32 s{sT1}, s{sT1}, s{sT2}
    s_add_u32 s{sT1}, s{sT1}, s{sT0}
    s_mov_b32 s{sC2}, {hex(f2u(LOG2E/16.0))}
    v_mov_b32 v{vTmp+4}, 0
    s_waitcnt lgkmcnt(0)
    ''')
    stamp('karg')
    a(f'''
    global_load_dword v{vT}, v{vTmp+4}, {WS} sc1
    s_add_u32 s{sKB}, s{sK}, s{sT1}
    s_addc_u32 s{sKB+1}, s{sK+1}, 0
    s_add_u32 s{sVB}, s{sV}, s{sT1}
    s_addc_u32 s{sVB+1}, s{sV+1}, 0
    s_mov_b32 m0, s{sT0}
    s_mov_b32 s{sKM}, s{sT0}
    ''')
    if o['b1']:
        a('s_barrier')
    W = o['W']
    def kload(m):
        if m == 4:
            a(f'''
    s_add_u32 s{sKM}, s{sKM}, 4096
    s_mov_b32 m0, s{sKM}
    s_add_u32 s{sKB}, s{sKB}, 4096
    s_addc_u32 s{sKB+1}, s{sKB+1}, 0
    ''')
        t = vTmp + 11 + (m & 1)
        a(f'v_xor_b32 v{t}, {m << 5}, v{vKoff}')
        a(f'global_load_lds_dwordx4 v{t}, s[{sKB}:{sKB+1}] offset:{(m & 3) * 1024}{NT}')
    def vload(i):
        r, h = i >> 1, i & 1
        a(f'global_load_dwordx4 v[{vV+4*i}:{vV+4*i+3}], v{vVoff}, s[{sVB}:{sVB+1}] offset:{r*512+h*256}{NT}')
    vP = vTmp
    npre = o.get('npre', 4)
    elems = [('K', m) for m in range(8)] + [('V', i) for i in range(npre)] + [('P', 0)] + [('V', i) for i in range(npre, 8)]
    def issue(e):
        k, i = e
        if k == 'K': kload(i)
        elif k == 'V': vload(i)
        else: a(f'global_load_dwordx4 v[{vP}:{vP+3}], v{vQpoll}, {WS} sc1')
    for e in elems[:W]: issue(e)
    stamp('issued')
    t5, t6, t7 = vTmp+5, vTmp+6, vTmp+7
    a(f'''
    v_mul_u32_u24 v{vWoff}, 896, v{vKS}
    v_add_u32 v{vWoff}, v{vWoff}, v{vTmp+3}
    v_xor_b32 v{t5}, v{vKS}, v{vN}
    v_lshlrev_b32 v{t5}, 4, v{t5}
    v_lshl_add_u32 v{vKrd}, v{vN}, 9, v{t5}
    v_add_u32 v{vKrd}, s{sT0}, v{vKrd}
    v_lshrrev_b32 v{t5}, 3, v{vN}
    v_lshlrev_b32 v{t6}, 9, v{t5}
    v_lshl_add_u32 v{vQrd}, v{vKS}, 4, v{t6}
    s_lshl_b32 s{sT1}, s3, 2
    v_lshlrev_b32 v{vMXa}, 4, v{t5}
    v_add_u32 v{vMXa}, s{sT1}, v{vMXa}              ; head*16 + w*4
    ''')
    masks(vM, t6)
    a(f'''
    s_lshl_b32 s{sT1}, s{sHKV}, 13
    s_lshl_b32 s{sT2}, s{sB}, 11
    s_add_u32 s{sT1}, s{sT1}, s{sT2}
    s_lshl_b32 s{sT2}, s3, 9
    s_add_u32 s{sT1}, s{sT1}, s{sT2}
    s_add_u32 s{sT1}, s{sT1}, {WS_QP}
    v_lshlrev_b32 v{vQpoll}, 12, v{vTmp}
    v_lshl_add_u32 v{vQpoll}, v{vTmp+1}, 4, v{vQpoll}
    v_add_u32 v{vQpoll}, s{sT1}, v{vQpoll}
    s_lshl_b32 s{sT1}, s3, 8
    v_lshlrev_b32 v{vQw}, 3, v{vTmp+1}
    v_lshl_add_u32 v{vQw}, v{vTmp}, 2, v{vQw}
    v_add_u32 v{vQw}, s{sT1}, v{vQw}
    v_and_b32 v{t6}, 1, v{vKS}
    v_lshlrev_b32 v{t6}, 4, v{t6}
    v_lshl_add_u32 v{t6}, v{vN}, 5, v{t6}
    v_add_u32 v{t6}, s{sT0}, v{t6}
    v_lshl_add_u32 v{vOw}, v{vTmp}, 10, v{t6}
    v_lshl_add_u32 v{vFw}, v{vTmp}, 9, v{t6}
    s_lshr_b32 s{sT1}, s3, 1                        ; h
    s_and_b32 s{sT2}, s3, 1
    v_lshrrev_b32 v{t6}, 3, v{vL}                   ; l>>3
    s_lshl_b32 s{sT3}, s{sT2}, 3
    v_add_u32 v{t6}, s{sT3}, v{t6}                  ; dblk
    v_and_b32 v{t7}, 3, v{vL}                       ; slot&3
    v_lshlrev_b32 v{vOr}, 6, v{t6}
    v_lshl_add_u32 v{vOr}, v{t7}, 4, v{vOr}
    s_lshl_b32 s{sT3}, s{sT1}, 10
    v_add_u32 v{vOr}, s{sT3}, v{vOr}
    s_lshl_b32 s{sT3}, s{sHKV}, 1
    s_add_u32 s{sT3}, s{sT3}, s{sT1}
    s_lshl_b32 s{sT3}, s{sT3}, 16
    s_lshl_b32 s{sT4}, s{sB}, 11
    s_add_u32 s{sT3}, s{sT3}, s{sT4}
    s_lshl_b32 s{sT4}, s{sC}, 7
    s_add_u32 s{sT3}, s{sT3}, s{sT4}
    s_add_u32 s{sT3}, s{sT3}, {WS_OP}
    v_lshlrev_b32 v{vOP}, 12, v{t6}
    v_and_b32 v{t7}, 7, v{vL}                       ; slot
    v_lshl_add_u32 v{vOP}, v{t7}, 4, v{vOP}
    v_add_u32 v{vOP}, s{sT3}, v{vOP}
    s_lshr_b32 s{sT1}, s{sRG}, 2
    s_lshl_b32 s{sT2}, s{sHKV}, 1
    s_add_u32 s{sT1}, s{sT1}, s{sT2}
    s_and_b32 s{sT2}, s{sRG}, 3
    s_lshl_b32 s{sT2}, s{sT2}, 2
    s_add_u32 s{sT2}, s{sT2}, s3
    s_lshl_b32 s{sT3}, s{sT1}, 16
    s_lshl_b32 s{sT2}, s{sT2}, 12
    s_add_u32 s{sT3}, s{sT3}, s{sT2}
    s_add_u32 s{sT3}, s{sT3}, {WS_OP}
    v_lshlrev_b32 v{vAd}, 11, v{t5}
    v_lshl_add_u32 v{vAd}, v{vKS}, 9, v{vAd}
    v_lshl_add_u32 v{vAd}, v{t7}, 4, v{vAd}
    v_add_u32 v{vAd}, s{sT3}, v{vAd}
    v_lshlrev_b32 v{vFr}, 9, v{vTmp}
    v_lshl_add_u32 v{vFr}, v{vTmp+1}, 4, v{vFr}
    s_lshl_b32 s{sT1}, s{sHKV}, 3
    s_add_u32 s{sT1}, s{sT1}, s{sRG}
    s_lshl_b32 s{sT1}, s{sT1}, 12
    s_lshl_b32 s{sT2}, s{sCT}, 10
    s_add_u32 s{sT1}, s{sT1}, s{sT2}
    s_add_u32 s{sT1}, s{sT1}, {WS_FP}
    v_lshlrev_b32 v{vFP}, 4, v{vL}
    v_add_u32 v{vFP}, s{sT1}, v{vFP}
    s_lshl_b32 s{sT1}, s{sHKV}, 2
    s_lshr_b32 s{sT2}, s{sJ}, 3
    s_add_u32 s{sT1}, s{sT1}, s{sT2}                ; group
    s_and_b32 s{sT2}, s{sT1}, 3
    s_lshl_b32 s{sT2}, s{sT2}, 3
    s_and_b32 s{sT3}, s{sJ}, 7
    s_add_u32 s{sH3}, s{sT2}, s{sT3}
    s_lshr_b32 s{sT2}, s{sT1}, 4                    ; b3
    s_bfe_u32 s{sT3}, s{sT1}, 0x20002               ; ct3
    s_lshl_b32 s{sT4}, s{sT3}, 10
    s_lshl_b32 s{sT1}, s{sT2}, 9
    s_add_u32 s{sT4}, s{sT4}, s{sT1}
    s_lshl_b32 s{sT1}, s{sH3}, 4
    s_add_u32 s{sT4}, s{sT4}, s{sT1}
    s_add_u32 s{sT4}, s{sT4}, {WS_FP}
    v_lshlrev_b32 v{vH3}, 12, v{vL}
    v_add_u32 v{vH3}, s{sT4}, v{vH3}
    s_mul_i32 s{sT2}, s{sT2}, 896
    s_mul_i32 s{sT3}, s{sT3}, 224
    s_add_u32 s{sT2}, s{sT2}, s{sT3}
    s_lshl_b32 s{sT3}, s{sH3}, 3
    s_add_u32 s{sT2}, s{sT2}, s{sT3}
    v_lshlrev_b32 v{vOut}, 1, v{vKS}
    v_add_u32 v{vOut}, s{sT2}, v{vOut}
    s_lshl_b32 s{sT1}, s{sHKV}, 9
    s_lshl_b32 s{sT2}, s{sRG}, 6
    s_add_u32 s{sT1}, s{sT1}, s{sT2}
    s_lshl_b32 s{sT2}, s3, 4
    s_add_u32 s{sT1}, s{sT1}, s{sT2}
    s_mul_i32 s{sT1}, s{sT1}, 896
    s_mul_i32 s{sT2}, s{sCT}, 224
    s_add_u32 s{sT1}, s{sT1}, s{sT2}
    s_add_u32 s{sWO}, s{sWO}, s{sT1}
    s_addc_u32 s{sWO+1}, s{sWO+1}, 0
    s_add_u32 s{sWO2}, s{sWO}, 7168
    s_addc_u32 s{sWO2+1}, s{sWO+1}, 0
    ''')
    idxP = elems.index(('P', 0))
    tagdone = False
    def kop_reads():
        for s in range(8):
            t = vTmp + 4 + (s & 1)
            a(f'v_xor_b32 v{t}, {s << 6}, v{vKrd}')
            a(f'ds_read_b128 v[{vKop+4*s}:{vKop+4*s+3}], v{t}')
    kdone = False
    for i in range(W, len(elems)):
        a(f's_waitcnt vmcnt({W-1})')
        if not tagdone:
            a(f'v_add_u32 v{vT}, 0x01010101, v{vT}'); tagdone = True
        issue(elems[i])
        if i - W >= 7 and not kdone:
            stamp('kdone'); kop_reads(); kdone = True
    if not tagdone:
        a(f's_waitcnt vmcnt({len(elems)})')
        a(f'v_add_u32 v{vT}, 0x01010101, v{vT}')
    if not kdone:
        a(f's_waitcnt vmcnt({len(elems) - 8})')
        stamp('kdone'); kop_reads()
    a(f's_waitcnt vmcnt({len(elems) - 1 - idxP})')
    a('L_h1_chk:')
    tag_check(vP, vTmp+4, vTmp+6)
    a(f'''
    v_cmp_ne_u32 vcc, 0, v{vTmp+6}
    s_cbranch_vccz L_h1_ok
    s_sub_u32 s{sSPIN}, s{sSPIN}, 1
    s_cmp_eq_u32 s{sSPIN}, 0
    s_cbranch_scc1 L_h1_ok
    s_mov_b64 exec, vcc
    global_load_dwordx4 v[{vP}:{vP+3}], v{vQpoll}, {WS} sc1
    s_waitcnt vmcnt(0)
    s_branch L_h1_chk
L_h1_ok:
    s_mov_b64 exec, -1
    ''')
    stamp('qpoll'); note(14, 0, sSPIN)
    a(f'''
    v_permlane32_swap_b32 v{vP}, v{vP+2}
    v_permlane32_swap_b32 v{vP+1}, v{vP+3}
    v_add_f32 v{vP}, v{vP}, v{vP+2}
    v_add_f32 v{vP+1}, v{vP+1}, v{vP+3}
    v_cvt_pk_bf16_f32 v{vP}, v{vP}, v{vP+1}
    ds_write_b32 v{vQw}, v{vP} offset:{Q_LDS}
    s_waitcnt lgkmcnt(0)
    s_barrier
    ''')
    stamp('qready')
    for s in range(8):
        a(f'ds_read_b128 v[{vQop+4*s}:{vQop+4*s+3}], v{vQrd} offset:{Q_LDS + s*64}')
    def wo_load(g):
        base = sWO if g < 2 else sWO2
        off = ' offset:3584' if g & 1 else ''
        a(f'''
    s_mov_b32 exec_lo, 0x3fff3fff
    s_mov_b32 exec_hi, 0x3fff3fff
    global_load_dwordx4 v[{vWO+4*g}:{vWO+4*g+3}], v{vWoff}, s[{base}:{base+1}]{off}{NT}
    s_mov_b64 exec, -1
    ''')
    wo_load(0)
    for s in range(8):
        if not o['stamps']: a(f's_waitcnt lgkmcnt({7 - s})')
        elif s == 0: a('s_waitcnt lgkmcnt(0)')
        c = '0' if s == 0 else f'v[{vS}:{vS+3}]'
        a(f'v_mfma_f32_16x16x32_bf16 v[{vS}:{vS+3}], v[{vKop+4*s}:{vKop+4*s+3}], v[{vQop+4*s}:{vQop+4*s+3}], {c}')
    wo_load(1)
    s0, s1, s2_, s3_ = vS, vS+1, vS+2, vS+3
    if o['round_scores']:
        a(f'''
    v_cvt_pk_bf16_f32 v{vTmp}, v{s0}, v{s1}
    v_cvt_pk_bf16_f32 v{vTmp+1}, v{s2_}, v{s3_}
    v_lshlrev_b32 v{s0}, 16, v{vTmp}
    v_and_b32 v{s1}, 0xffff0000, v{vTmp}
    v_lshlrev_b32 v{s2_}, 16, v{vTmp+1}
    v_and_b32 v{s3_}, 0xffff0000, v{vTmp+1}
    ''')
    vMx, vLs = vTmp+2, vTmp+3
    a(f'''
    v_max3_f32 v{vMx}, v{s0}, v{s1}, v{s2_}
    v_max_f32 v{vMx}, v{vMx}, v{s3_}
    ''')
    allreduce_rows('v_max_f32', vMx, vTmp)
    a(f'''
    s_mov_b32 exec_lo, 0x101
    s_mov_b32 exec_hi, 0
    ds_write_b32 v{vMXa}, v{vMx} offset:{MX_LDS}
    s_mov_b64 exec, -1
    v_and_b32 v{vTmp}, 16, v{vMXa}                  ; head*16
    s_waitcnt lgkmcnt(0)
    s_barrier
    ds_read_b128 v[{vTmp+4}:{vTmp+7}], v{vTmp} offset:{MX_LDS}
    ''')
    wo_load(2)
    a(f'''
    s_waitcnt lgkmcnt(0)
    v_max3_f32 v{vMx}, v{vTmp+4}, v{vTmp+5}, v{vTmp+6}
    v_max_f32 v{vMx}, v{vMx}, v{vTmp+7}
    v_mul_f32 v{vMx}, s{sC2}, v{vMx}
    v_fma_f32 v{s0}, v{s0}, s{sC2}, -v{vMx}
    v_fma_f32 v{s1}, v{s1}, s{sC2}, -v{vMx}
    v_fma_f32 v{s2_}, v{s2_}, s{sC2}, -v{vMx}
    v_fma_f32 v{s3_}, v{s3_}, s{sC2}, -v{vMx}
    v_exp_f32 v{s0}, v{s0}
    v_exp_f32 v{s1}, v{s1}
    v_exp_f32 v{s2_}, v{s2_}
    v_exp_f32 v{s3_}, v{s3_}
    ''')
    for r in range(4):
        a(f'v_cvt_pk_bf16_f32 v{vTmp+4+r}, v{vS+r}, v{vS+r}')
    a(f'''
    v_add_f32 v{vLs}, v{s0}, v{s1}
    v_add_f32 v{vTmp+8}, v{s2_}, v{s3_}
    v_add_f32 v{vLs}, v{vLs}, v{vTmp+8}
    ''')
    def pa(r):
        for k in range(4):
            a(f'v_and_b32 v{vPA+4*r+k}, v{vTmp+4+r}, v{vM+k}')
    def pv(r):
        for h in range(2):
            c = '0' if r == 0 else f'v[{vAcc+4*h}:{vAcc+4*h+3}]'
            i = r*2+h
            a(f'v_mfma_f32_16x16x32_bf16 v[{vAcc+4*h}:{vAcc+4*h+3}], v[{vPA+4*r}:{vPA+4*r+3}], v[{vV+4*i}:{vV+4*i+3}], {c}')
    early = npre // 2
    for r in range(early): pa(r)
    for r in range(early): pv(r)
    for r in range(early, 4): pa(r)
    allreduce_rows('v_add_f32', vLs, vTmp)
    a(f'''
    s_mov_b32 exec_lo, 0x101
    s_mov_b32 exec_hi, 0
    ds_write_b32 v{vMXa}, v{vLs} offset:{LS_LDS}
    s_mov_b64 exec, -1
    ''')
    wo_load(3)
    a(f'''
    s_lshr_b32 s{sT0}, s3, 1
    s_lshl_b32 s{sT1}, s{sT0}, 3
    v_readlane_b32 s{sT2}, v{vMx}, s{sT1}
    s_lshl_b32 s{sT0}, s{sT0}, 4
    v_mov_b32 v{vTmp+9}, s{sT0}                     ; h*16
    v_lshrrev_b32 v{vTmp+8}, 3, v{vN}
    v_lshlrev_b32 v{vTmp+8}, 2, v{vTmp+8}
    ds_read_b32 v{vGf}, v{vTmp+8} offset:{G_LDS}
    v_and_b32 v{vTmp+10}, 4, v{vL}
    v_cmp_ne_u32 vcc, 0, v{vTmp+10}                 ; slot >= 4
    s_mov_b64 s[56:57], vcc
    ''')
    stamp('qk')
    a('s_waitcnt vmcnt(4)')
    stamp('vdone')
    for r in range(early, 4): pv(r)
    a(f'''
    ds_write_b128 v{vOw}, v[{vAcc}:{vAcc+3}]
    ds_write_b128 v{vOw}, v[{vAcc+4}:{vAcc+7}] offset:512
    s_waitcnt lgkmcnt(0)
    s_barrier
    ''')
    stamp('pv')
    for ww in range(4):
        a(f'ds_read_b128 v[{vO+4*ww}:{vO+4*ww+3}], v{vOr} offset:{8192*ww}')
    a(f'''
    ds_read_b128 v[{vTmp+4}:{vTmp+7}], v{vTmp+9} offset:{LS_LDS}
    v_mov_b32 v{vTmp+10}, s{sT2}
    s_waitcnt lgkmcnt(0)
    v_pk_add_f32 v[{vO}:{vO+1}], v[{vO}:{vO+1}], v[{vO+4}:{vO+5}]
    v_pk_add_f32 v[{vO+2}:{vO+3}], v[{vO+2}:{vO+3}], v[{vO+6}:{vO+7}]
    v_pk_add_f32 v[{vTmp+4}:{vTmp+5}], v[{vTmp+4}:{vTmp+5}], v[{vTmp+6}:{vTmp+7}]
    v_pk_add_f32 v[{vO+8}:{vO+9}], v[{vO+8}:{vO+9}], v[{vO+12}:{vO+13}]
    v_pk_add_f32 v[{vO+10}:{vO+11}], v[{vO+10}:{vO+11}], v[{vO+14}:{vO+15}]
    v_add_f32 v{vTmp+4}, v{vTmp+4}, v{vTmp+5}       ; L
    v_pk_add_f32 v[{vO}:{vO+1}], v[{vO}:{vO+1}], v[{vO+8}:{vO+9}]
    v_pk_add_f32 v[{vO+2}:{vO+3}], v[{vO+2}:{vO+3}], v[{vO+10}:{vO+11}]
    v_cndmask_b32 v{vO}, v{vO}, v{vTmp+10}, s[56:57]
    v_cndmask_b32 v{vO+1}, v{vO+1}, v{vTmp+4}, s[56:57]
    v_cndmask_b32 v{vO+2}, v{vO+2}, v{vTmp+10}, s[56:57]
    v_cndmask_b32 v{vO+3}, v{vO+3}, v{vTmp+4}, s[56:57]
    ''')
    tag_insert([vO, vO+1, vO+2, vO+3])
    a(f'global_store_dwordx4 v{vOP}, v[{vO}:{vO+3}], {WS} sc1')
    stamp('opub')
    if o['ackwait']: a('s_waitcnt vmcnt(0)')
    vD = vV
    H2LOADS = ''.join(f'    global_load_dwordx4 v[{vD+4*k}:{vD+4*k+3}], v{vAd}, {WS} offset:{128*k} sc1\n' for k in range(4)) + '    s_waitcnt vmcnt(0)\n'
    a(H2LOADS)
    a('L_h2_comp:')
    t = vTmp
    vW = t
    vMk = vV+16
    vWk = [vV+20, vV+22, vV+24, vV+26]
    vMxx, vLp, vX, tt = t, t+1, t+2, t+6
    vBad = t+7
    c = [t+8, t+9, t+10, t+11]; ca, cb = t+12, t+13
    fill = []
    for k in range(4): fill += chk(vD+4*k, ca, cb, c[k])
    fill += [f'v_or3_b32 v{vBad}, v{c[0]}, v{c[1]}, v{c[2]}', f'v_or_b32 v{vBad}, v{vBad}, v{c[3]}']
    def F(n):
        for _ in range(n):
            if fill: a(fill.pop(0))
    for k in range(4):
        a(f'v_mov_b32_dpp v{vMk+k}, v{vD+4*k} row_shl:4 row_mask:0xf bank_mask:0xf bound_ctrl:0')
    a(f'v_max3_f32 v{vMxx}, v{vMk}, v{vMk+1}, v{vMk+2}')
    a(f'v_max_f32 v{vMxx}, v{vMxx}, v{vMk+3}')
    a(f'v_mov_b32 v{tt}, v{vMxx}')
    F(2)
    a(f'v_permlane16_swap_b32 v{vMxx}, v{tt}')
    a(f'v_max_f32 v{vMxx}, v{vMxx}, v{tt}')
    a(f'v_mov_b32 v{tt}, v{vMxx}')
    F(2)
    a(f'v_permlane32_swap_b32 v{vMxx}, v{tt}')
    a(f'v_max_f32 v{vMxx}, v{vMxx}, v{tt}')
    for k in range(4): a(f'v_sub_f32 v{vWk[k]}, v{vMk+k}, v{vMxx}')
    for k in range(4): a(f'v_exp_f32 v{vWk[k]}, v{vWk[k]}')
    F(32)
    a(f'''
    v_cmp_ne_u32 vcc, 0, v{vBad}
    s_cbranch_vccz L_h2_ok
L_h2_retry:
    s_sub_u32 s{sSPIN}, s{sSPIN}, 1
    s_cmp_eq_u32 s{sSPIN}, 0
    s_cbranch_scc1 L_h2_ok
    s_mov_b64 exec, vcc
    ''')
    a(H2LOADS)
    for k in range(4):
        for ln in chk(vD+4*k, ca, cb, c[k]): a(ln)
    a(f'''
    v_or3_b32 v{vBad}, v{c[0]}, v{c[1]}, v{c[2]}
    v_or_b32 v{vBad}, v{vBad}, v{c[3]}
    v_cmp_ne_u32 vcc, 0, v{vBad}
    s_cbranch_vccnz L_h2_retry
    s_mov_b64 exec, -1
    s_branch L_h2_comp
L_h2_ok:
    s_mov_b64 exec, -1
    ''')
    stamp('h2'); note(14, 1, sSPIN)
    a(f'v_mul_f32_dpp v{vLp}, v{vD+1}, v{vWk[0]} row_shl:4 row_mask:0xf bank_mask:0xf bound_ctrl:0')
    a(f'v_pk_mul_f32 v[{vX}:{vX+1}], v[{vD}:{vD+1}], v[{vWk[0]}:{vWk[0]+1}] op_sel_hi:[1,0]')
    a(f'v_pk_mul_f32 v[{vX+2}:{vX+3}], v[{vD+2}:{vD+3}], v[{vWk[0]}:{vWk[0]+1}] op_sel_hi:[1,0]')
    for k in range(1, 4):
        a(f'v_fmac_f32_dpp v{vLp}, v{vD+4*k+1}, v{vWk[k]} row_shl:4 row_mask:0xf bank_mask:0xf bound_ctrl:0')
        a(f'v_pk_fma_f32 v[{vX}:{vX+1}], v[{vD+4*k}:{vD+4*k+1}], v[{vWk[k]}:{vWk[k]+1}], v[{vX}:{vX+1}] op_sel_hi:[1,0,1]')
        a(f'v_pk_fma_f32 v[{vX+2}:{vX+3}], v[{vD+4*k+2}:{vD+4*k+3}], v[{vWk[k]}:{vWk[k]+1}], v[{vX+2}:{vX+3}] op_sel_hi:[1,0,1]')
    a(f'''
    v_mov_b32 v{tt}, v{vLp}
    v_permlane32_swap_b32 v{vX}, v{vX+2}
    v_permlane32_swap_b32 v{vX+1}, v{vX+3}
    v_permlane16_swap_b32 v{vLp}, v{tt}
    v_add_f32 v{vX}, v{vX}, v{vX+2}
    v_add_f32 v{vX+1}, v{vX+1}, v{vX+3}
    v_add_f32 v{vLp}, v{vLp}, v{tt}
    v_mov_b32 v{tt}, v{vLp}
    v_permlane16_swap_b32 v{vX}, v{vX+1}
    v_permlane32_swap_b32 v{vLp}, v{tt}
    v_add_f32 v{vX}, v{vX}, v{vX+1}
    v_add_f32 v{vLp}, v{vLp}, v{tt}
    v_rcp_f32 v{vLp}, v{vLp}
    v_mul_f32 v{vX}, v{vX}, v{vGf}
    v_mul_f32 v{vX}, v{vX}, v{vLp}
    v_cvt_pk_bf16_f32 v{vX}, v{vX}, v{vX}
    v_mov_b32_dpp v{vX}, v{vX} row_shr:4 row_mask:0xf bank_mask:0xa
    ''')
    vAo = vPA
    for g in range(4):
        for k in range(4):
            a(f'v_and_b32_dpp v{vAo+4*g+k}, v{vX}, v{vM+k} quad_perm:[{g},{g},{g},{g}] row_mask:0xf bank_mask:0xf')
        cc = '0' if g == 0 else f'v[{vAcc}:{vAcc+3}]'
        a(f'v_mfma_f32_16x16x32_bf16 v[{vAcc}:{vAcc+3}], v[{vAo+4*g}:{vAo+4*g+3}], v[{vWO+4*g}:{vWO+4*g+3}], {cc}')
    a(f'''
    ds_write_b128 v{vFw}, v[{vAcc}:{vAcc+3}] offset:4096
    s_waitcnt lgkmcnt(0)
    s_barrier
    s_cmp_lg_u32 s3, 0
    s_cbranch_scc1 L_m_done
    ''')
    for ww in range(4):
        a(f'ds_read_b128 v[{vO+4*ww}:{vO+4*ww+3}], v{vFr} offset:{8192*ww+4096}')
    a(f'''
    ds_read_b128 v[{vO+16}:{vO+19}], v{vFr} offset:{F5_LDS}
    s_waitcnt lgkmcnt(0)
    v_pk_add_f32 v[{vO}:{vO+1}], v[{vO}:{vO+1}], v[{vO+4}:{vO+5}]
    v_pk_add_f32 v[{vO+2}:{vO+3}], v[{vO+2}:{vO+3}], v[{vO+6}:{vO+7}]
    v_pk_add_f32 v[{vO+8}:{vO+9}], v[{vO+8}:{vO+9}], v[{vO+12}:{vO+13}]
    v_pk_add_f32 v[{vO+10}:{vO+11}], v[{vO+10}:{vO+11}], v[{vO+14}:{vO+15}]
    v_pk_add_f32 v[{vO}:{vO+1}], v[{vO}:{vO+1}], v[{vO+16}:{vO+17}]
    v_pk_add_f32 v[{vO+2}:{vO+3}], v[{vO+2}:{vO+3}], v[{vO+18}:{vO+19}]
    v_pk_add_f32 v[{vO}:{vO+1}], v[{vO}:{vO+1}], v[{vO+8}:{vO+9}]
    v_pk_add_f32 v[{vO+2}:{vO+3}], v[{vO+2}:{vO+3}], v[{vO+10}:{vO+11}]
    ''')
    tag_insert([vO, vO+1, vO+2, vO+3])
    a(f'global_store_dwordx4 v{vFP}, v[{vO}:{vO+3}], {WS} sc1')
    stamp('fpub')
    vF = vV
    a(f'''
    s_cmp_ge_u32 s{sH3}, 28
    s_cbranch_scc1 L_m_done
    ''')
    if o['ackwait']: a('s_waitcnt vmcnt(0)')
    a(f'''
L_h3_loop:
    global_load_dwordx4 v[{vF}:{vF+3}], v{vH3}, {WS} sc1
    s_waitcnt vmcnt(0)
    ''')
    tag_check(vF, vTmp+2, vTmp+4)
    a(f'''
    v_cmp_ne_u32 vcc, 0, v{vTmp+4}
    s_cbranch_vccz L_h3_ok
    s_mov_b64 exec, vcc
    s_sub_u32 s{sSPIN}, s{sSPIN}, 1
    s_cmp_lg_u32 s{sSPIN}, 0
    s_cbranch_scc1 L_h3_loop
L_h3_ok:
    s_mov_b64 exec, -1
    ''')
    stamp('h3'); note(15, 0, sSPIN)
    a(f'''
    v_permlane32_swap_b32 v{vF}, v{vF+2}
    v_permlane32_swap_b32 v{vF+1}, v{vF+3}
    v_add_f32 v{vF}, v{vF}, v{vF+2}
    v_add_f32 v{vF+1}, v{vF+1}, v{vF+3}
    v_permlane16_swap_b32 v{vF}, v{vF+1}
    v_add_f32 v{vF}, v{vF}, v{vF+1}
    v_add_f32_dpp v{vF}, v{vF}, v{vF} row_ror:8 row_mask:0xf bank_mask:0xf
    v_add_f32_dpp v{vF}, v{vF}, v{vF} row_ror:4 row_mask:0xf bank_mask:0xf
    v_add_f32_dpp v{vF}, v{vF}, v{vF} row_ror:2 row_mask:0xf bank_mask:0xf
    v_add_f32_dpp v{vF}, v{vF}, v{vF} row_ror:1 row_mask:0xf bank_mask:0xf
    v_cvt_pk_bf16_f32 v{vF}, v{vF}, v{vF}
    s_mov_b32 exec_lo, 0x00010001
    s_mov_b32 exec_hi, 0x00010001
    global_store_short v{vOut}, v{vF}, s[{sOUT}:{sOUT+1}]
    s_cmp_lg_u32 s2, 0
    s_cbranch_scc1 L_m_done
    v_mov_b32 v{vTmp}, 0
    s_mov_b64 exec, 1
    global_store_dword v{vTmp}, v{vT}, {WS} sc1
L_m_done:
    s_mov_b64 exec, -1
    ''')
    stamp('end')
    a('s_branch L_fin')

    a('L_aux:')
    if o['prio']:
        a('s_setprio 3')
    vA16, vWq, vTr, vXr = 4, 5, 6, 7
    vXB = 8
    vWA = 36
    vD0, vD1 = 68, 72
    vt = 76
    aM = 96
    aXA = 100
    aW1 = 128
    aW1off, aHP, aQP, aXd, aW2off, aAh, aFw = 156, 157, 158, 159, 160, 161, 162
    aW2 = 8
    aH = 40
    aA = 56
    a(f'''
    v_lshlrev_b32 v{vA16}, 4, v{vL}
    v_lshrrev_b32 v{vt}, 2, v{vL}
    v_and_b32 v{vt+1}, 3, v{vL}
    v_lshlrev_b32 v{vt+1}, 4, v{vt+1}
    v_lshl_add_u32 v{vWq}, v{vt}, 13, v{vt+1}
    s_and_b32 s{sT0}, s{sJ}, 1                      ; rh
    s_lshr_b32 s{sT1}, s{sJ}, 1                     ; ct32
    s_mul_i32 s{sT2}, s{sT0}, {224*8192}
    s_lshl_b32 s{sT3}, s{sHKV}, 10
    s_add_u32 s{sT2}, s{sT2}, s{sT3}
    s_lshl_b32 s{sT3}, s{sT1}, 6
    s_add_u32 s{sT2}, s{sT2}, s{sT3}
    v_mov_b32 v{vt+2}, 0
    s_waitcnt lgkmcnt(0)
    ''')
    stamp('karg')
    a(f'''
    s_add_u32 s{sWQ}, s{sWQ}, s{sT2}
    s_addc_u32 s{sWQ+1}, s{sWQ+1}, 0
    global_load_dword v{vT}, v{vt+2}, {WS} sc1
    s_mov_b32 m0, {X_LDS}
    s_nop 0
    global_load_lds_dwordx4 v{vA16}, s[{sX}:{sX+1}]
    s_mov_b32 exec_lo, -1
    s_mov_b32 exec_hi, 0x0000ffff
    global_load_lds_dwordx4 v{vA16}, s[{sX}:{sX+1}] offset:1024
    s_mov_b32 m0, {GW_LDS}
    s_mov_b32 exec_hi, 0x00ffffff
    global_load_lds_dwordx4 v{vA16}, s[{sGW}:{sGW+1}]
    s_mov_b64 exec, -1
    ''')
    for s in range(14):
        a(f's_mov_b32 m0, {WQ_LDS + s*1024}')
        if s > 0:
            a(f's_add_u32 s{sWQ}, s{sWQ}, {16*8192}\ns_addc_u32 s{sWQ+1}, s{sWQ+1}, 0')
        else:
            a('s_nop 0')
        a(f'global_load_lds_dwordx4 v{vWq}, s[{sWQ}:{sWQ+1}]{NT}')
    if o['b1']:
        a('s_barrier')
    stamp('issued')
    a(f'''
    v_lshrrev_b32 v{vt}, 2, v{vN}
    v_lshlrev_b32 v{vt}, 6, v{vt}
    v_and_b32 v{vt+1}, 3, v{vN}
    v_lshl_add_u32 v{vt}, v{vt+1}, 3, v{vt}
    v_lshl_add_u32 v{vTr}, v{vKS}, 9, v{vt}
    v_lshrrev_b32 v{vt+3}, 3, v{vN}                 ; b = n>>3
    v_mul_u32_u24 v{vt}, 896, v{vt+3}
    v_lshl_add_u32 v{vXr}, v{vKS}, 4, v{vt}
    s_mul_i32 s{sT2}, s{sT0}, 448
    v_add_u32 v{vXr}, s{sT2}, v{vXr}
    s_lshl_b32 s{sT2}, s{sHKV}, 1
    s_add_u32 s{sT2}, s{sT2}, s{sT0}
    s_lshl_b32 s{sT2}, s{sT2}, 12
    s_lshl_b32 s{sT3}, s{sT1}, 7
    s_add_u32 s{sT2}, s{sT2}, s{sT3}
    s_add_u32 s{sT2}, s{sT2}, {WS_QP}
    v_lshlrev_b32 v{aQP}, 11, v{vt+3}
    v_and_b32 v{vt+1}, 1, v{vL}
    v_lshl_add_u32 v{aQP}, v{vt+1}, 6, v{aQP}
    v_lshl_add_u32 v{aQP}, v{vKS}, 4, v{aQP}
    v_add_u32 v{aQP}, s{sT2}, v{aQP}
    ''')
    masks(aM, vt+4)
    a(f'''
    s_cmp_ge_u32 s{sJ}, 14
    s_cselect_b32 s{sT2}, 1, 0
    s_mul_i32 s{sT3}, s{sT2}, 14
    s_sub_u32 s{sT3}, s{sJ}, s{sT3}
    s_min_u32 s{sT3}, s{sT3}, 13
    s_mul_i32 s{sT4}, s{sHKV}, 56
    s_mul_i32 s{sU}, s{sT2}, 28
    s_add_u32 s{sT4}, s{sT4}, s{sU}                 ; r0
    s_mul_i32 s{sU}, s{sT4}, 3584
    s_lshl_b32 s{sOI}, s{sT3}, 8
    s_add_u32 s{sU}, s{sU}, s{sOI}
    s_add_u32 s{sW1}, s{sW1}, s{sU}
    s_addc_u32 s{sW1+1}, s{sW1+1}, 0
    v_mul_u32_u24 v{aW1off}, 3584, v{vKS}
    v_lshl_add_u32 v{aW1off}, v{vN}, 4, v{aW1off}
    s_lshl_b32 s{sU}, s{sHKV}, 1
    s_add_u32 s{sU}, s{sU}, s{sT2}
    s_mul_i32 s{sU}, s{sU}, 14336
    s_lshl_b32 s{sOI}, s{sT3}, 9
    s_add_u32 s{sU}, s{sU}, s{sOI}
    s_add_u32 s{sU}, s{sU}, {WS_HP}
    v_lshrrev_b32 v{vt+7}, 5, v{vL}
    v_mul_u32_u24 v{aHP}, 7168, v{vt+7}
    v_and_b32 v{vt+8}, 31, v{vL}
    v_lshl_add_u32 v{aHP}, v{vt+8}, 4, v{aHP}
    v_add_u32 v{aHP}, s{sU}, v{aHP}
    v_mul_u32_u24 v{aXd}, 896, v{vt+3}
    v_lshl_add_u32 v{aXd}, v{vKS}, 1, v{aXd}
    s_lshl_b32 s{sU}, s{sT4}, 1
    v_add_u32 v{aXd}, s{sU}, v{aXd}
    s_lshl_b32 s{sU}, s{sRG}, 3
    s_add_u32 s{sU}, s{sU}, s{sHKV}
    s_cmp_lt_u32 s{sU}, 56
    s_cselect_b32 s{sOGZ}, 0x3f800000, 0
    s_min_u32 s{sU}, s{sU}, 55
    s_lshr_b32 s{sT2}, s{sU}, 2
    s_lshl_b32 s{sT2}, s{sT2}, 7
    s_and_b32 s{sT3}, s{sU}, 1
    s_lshl_b32 s{sT3}, s{sT3}, 6
    s_add_u32 s{sT2}, s{sT2}, s{sT3}
    s_bfe_u32 s{sT3}, s{sU}, 0x10001
    s_lshl_b32 s{sT3}, s{sT3}, 2
    s_add_u32 s{sT2}, s{sT2}, s{sT3}
    s_mul_i32 s{sT2}, s{sT2}, 896
    s_mul_i32 s{sT3}, s{sCT}, 224
    s_add_u32 s{sT2}, s{sT2}, s{sT3}
    s_add_u32 s{sW2}, s{sW2}, s{sT2}
    s_addc_u32 s{sW2+1}, s{sW2+1}, 0
    v_mul_u32_u24 v{aW2off}, 896, v{vKS}
    v_lshl_add_u32 v{aW2off}, v{vN}, 4, v{aW2off}
    v_mul_u32_u24 v{aAh}, 14336, v{vKS}
    v_mul_u32_u24 v{vt+8}, 7168, v{vt+3}
    v_add_u32 v{aAh}, v{aAh}, v{vt+8}
    v_and_b32 v{vt+8}, 7, v{vL}
    v_lshl_add_u32 v{aAh}, v{vt+8}, 4, v{aAh}
    s_lshl_b32 s{sT2}, s{sU}, 7
    s_add_u32 s{sT2}, s{sT2}, {WS_HP}
    v_add_u32 v{aAh}, s{sT2}, v{aAh}
    v_and_b32 v{vt+8}, 1, v{vKS}
    v_lshlrev_b32 v{vt+8}, 4, v{vt+8}
    v_lshl_add_u32 v{vt+8}, v{vN}, 5, v{vt+8}
    v_lshl_add_u32 v{aFw}, v{vt+7}, 9, v{vt+8}
    v_cmp_eq_u32 vcc, 1, v{vt+1}
    s_waitcnt vmcnt(14)
    v_add_u32 v{vT}, 0x01010101, v{vT}
    ''')
    stamp('a_x')
    for s in range(7):
        a(f'ds_read_b128 v[{vXB+4*s}:{vXB+4*s+3}], v{vXr} offset:{X_LDS + 64*s}')
    for s in range(7):
        wa = vWA + 16*(s & 1)
        a(f's_waitcnt vmcnt({14 - 2*s - 2})')
        for cg in range(2):
            for hf in range(2):
                a(f'ds_read_b64_tr_b16 v[{wa+8*cg+2*hf}:{wa+8*cg+2*hf+1}], v{vTr} offset:{WQ_LDS + s*2048 + hf*256 + cg*32}')
        a('s_waitcnt lgkmcnt(0)')
        for cg in range(2):
            d = vD0 if cg == 0 else vD1
            c_ = '0' if s == 0 else f'v[{d}:{d+3}]'
            a(f'v_mfma_f32_16x16x32_bf16 v[{d}:{d+3}], v[{wa+8*cg}:{wa+8*cg+3}], v[{vXB+4*s}:{vXB+4*s+3}], {c_}')
    stamp('a_wq')
    for k in range(4):
        a(f'v_cndmask_b32 v{vD0+k}, v{vD0+k}, v{vD1+k}, vcc')
    tag_insert([vD0, vD0+1, vD0+2, vD0+3])
    a(f'''
    s_mov_b32 exec_lo, 0x03030303
    s_mov_b32 exec_hi, 0x03030303
    global_store_dwordx4 v{aQP}, v[{vD0}:{vD0+3}], {WS} sc1
    s_mov_b64 exec, -1
    ''')
    stamp('kdone')
    g0 = vXB
    a(f'''
    v_mov_b32 v{vt+8}, 0
    v_mov_b32 v{vt+9}, 0
    s_mov_b32 exec_lo, -1
    s_mov_b32 exec_hi, 0x00ffffff
    ds_read_b128 v[{g0}:{g0+3}], v{vA16} offset:{X_LDS}
    ds_read_b128 v[{g0+4}:{g0+7}], v{vA16} offset:{X_LDS+896}
    ds_read_b128 v[{g0+8}:{g0+11}], v{vA16} offset:{GW_LDS}
    s_waitcnt lgkmcnt(0)
    ''')
    for k in range(4):
        a(f'v_dot2_f32_bf16 v{vt+8}, v{g0+k}, v{g0+8+k}, v{vt+8}')
        a(f'v_dot2_f32_bf16 v{vt+9}, v{g0+4+k}, v{g0+8+k}, v{vt+9}')
    a('s_mov_b64 exec, -1')
    for g in range(7):
        a(f'ds_read_u16 v{g0+12+g}, v{aXd} offset:{X_LDS + 8*g}')
    for n in (8, 4, 2, 1):
        for r in (vt+8, vt+9):
            a(f'v_add_f32_dpp v{r}, v{r}, v{r} row_ror:{n} row_mask:0xf bank_mask:0xf')
    allreduce_rows('v_add_f32', vt+8, vt+10)
    allreduce_rows('v_add_f32', vt+9, vt+10)
    a(f'''
    v_and_b32 v{vt+10}, 1, v{vL}
    v_cmp_eq_u32 vcc, 1, v{vt+10}
    v_cndmask_b32 v{vt+8}, v{vt+8}, v{vt+9}, vcc
    v_cvt_pk_bf16_f32 v{vt+8}, v{vt+8}, v{vt+8}
    v_lshlrev_b32 v{vt+8}, 16, v{vt+8}
    v_mul_f32 v{vt+8}, {hex(f2u(-LOG2E))}, v{vt+8}
    v_exp_f32 v{vt+8}, v{vt+8}
    v_add_f32 v{vt+8}, 1.0, v{vt+8}
    v_rcp_f32 v{vt+8}, v{vt+8}
    v_cvt_pk_bf16_f32 v{vt+8}, v{vt+8}, v{vt+8}
    v_lshlrev_b32 v{vt+8}, 16, v{vt+8}
    v_sub_f32 v{vt+9}, 1.0, v{vt+8}
    v_cvt_pk_bf16_f32 v{vt+9}, v{vt+9}, v{vt+9}
    v_lshlrev_b32 v{vt+9}, 16, v{vt+9}
    v_lshlrev_b32 v{vt+10}, 2, v{vt+10}
    s_mov_b64 exec, 3
    ds_write_b32 v{vt+10}, v{vt+8} offset:{G_LDS}
    s_mov_b64 exec, -1
    v_readlane_b32 s{sT2}, v{vt+9}, 0
    v_readlane_b32 s{sT3}, v{vt+9}, 1
    v_cmp_gt_u32 vcc, 32, v{vL}
    v_mov_b32 v{vt+11}, s{sT3}
    v_mov_b32 v{vt+12}, s{sT2}
    v_cndmask_b32 v{vt+11}, v{vt+11}, v{vt+12}, vcc
    v_mul_f32 v{vt+11}, s{sOGZ}, v{vt+11}
    s_waitcnt lgkmcnt(0)
    ''')
    for g in range(7):
        a(f'v_lshl_or_b32 v{g0+12+g}, v{g0+12+g}, 16, v{g0+12+g}')
    for g in range(7):
        for k in range(4):
            a(f'v_and_b32 v{aXA+4*g+k}, v{g0+12+g}, v{aM+k}')
    stamp('qpoll')
    a('s_barrier')
    a(f'''
    s_cmp_ge_u32 s{sJ}, 28
    s_cbranch_scc1 L_a_now1
    ''')
    for g in range(7):
        a(f'global_load_dwordx4 v[{aW1+4*g}:{aW1+4*g+3}], v{aW1off}, s[{sW1}:{sW1+1}]{NT}')
        if g < 6:
            a(f's_add_u32 s{sW1}, s{sW1}, {4*3584}\ns_addc_u32 s{sW1+1}, s{sW1+1}, 0')
    a('''
L_a_now1:
    s_barrier
    ''')
    a('s_mov_b32 exec_lo, 0x3fff3fff\ns_mov_b32 exec_hi, 0x3fff3fff')
    for g in range(8):
        a(f'global_load_dwordx4 v[{aW2+4*g}:{aW2+4*g+3}], v{aW2off}, s[{sW2}:{sW2+1}]{NT}')
        if g < 7:
            a(f's_add_u32 s{sW2}, s{sW2}, {8*896}\ns_addc_u32 s{sW2+1}, s{sW2+1}, 0')
    a('s_mov_b64 exec, -1')
    a('s_barrier')
    a(f'''
    s_cmp_ge_u32 s{sJ}, 28
    s_cbranch_scc1 L_a_noffn1
    s_waitcnt vmcnt(8)
    ''')
    stamp('vdone')
    for g in range(7):
        c_ = '0' if g == 0 else f'v[{vD0}:{vD0+3}]'
        a(f'v_mfma_f32_16x16x32_bf16 v[{vD0}:{vD0+3}], v[{aXA+4*g}:{aXA+4*g+3}], v[{aW1+4*g}:{aW1+4*g+3}], {c_}')
    tag_insert([vD0, vD0+1, vD0+2, vD0+3])
    a(f'global_store_dwordx4 v{aHP}, v[{vD0}:{vD0+3}], {WS} sc1')
    stamp('opub')
    a('L_a_noffn1:')
    if o['ackwait']: a('s_waitcnt vmcnt(0)')
    HLOADS = ''
    for k in range(4):
        HLOADS += f'    v_add_u32 v{vt+12}, {4*k*14336}, v{aAh}\n    global_load_dwordx4 v[{aH+4*k}:{aH+4*k+3}], v{vt+12}, {WS} sc1\n'
    HLOADS += '    s_waitcnt vmcnt(0)\n'
    a('L_ah_loop:')
    a(HLOADS)
    cc4 = [vt, vt+1, vt+2, vt+3]
    for k in range(4):
        for ln in chk(aH+4*k, vt+4, vt+5, cc4[k]): a(ln)
    a(f'''
    v_or3_b32 v{vt}, v{vt}, v{vt+1}, v{vt+2}
    v_or_b32 v{vt}, v{vt}, v{vt+3}
    v_cmp_ne_u32 vcc, 0, v{vt}
    s_cbranch_vccz L_ah_ok
    s_mov_b64 exec, vcc
    s_sub_u32 s{sSPIN}, s{sSPIN}, 1
    s_cmp_lg_u32 s{sSPIN}, 0
    s_cbranch_scc1 L_ah_loop
L_ah_ok:
    s_mov_b64 exec, -1
    ''')
    stamp('h2'); note(15, 1, sSPIN)
    a(f'''
    v_pk_add_f32 v[{aH}:{aH+1}], v[{aH}:{aH+1}], v[{aH+4}:{aH+5}]
    v_pk_add_f32 v[{aH+2}:{aH+3}], v[{aH+2}:{aH+3}], v[{aH+6}:{aH+7}]
    v_pk_add_f32 v[{aH+8}:{aH+9}], v[{aH+8}:{aH+9}], v[{aH+12}:{aH+13}]
    v_pk_add_f32 v[{aH+10}:{aH+11}], v[{aH+10}:{aH+11}], v[{aH+14}:{aH+15}]
    v_pk_add_f32 v[{aH}:{aH+1}], v[{aH}:{aH+1}], v[{aH+8}:{aH+9}]
    v_pk_add_f32 v[{aH+2}:{aH+3}], v[{aH+2}:{aH+3}], v[{aH+10}:{aH+11}]
    v_permlane32_swap_b32 v{aH}, v{aH+2}
    v_permlane32_swap_b32 v{aH+1}, v{aH+3}
    v_add_f32 v{aH}, v{aH}, v{aH+2}
    v_add_f32 v{aH+1}, v{aH+1}, v{aH+3}
    v_permlane16_swap_b32 v{aH}, v{aH+1}
    v_add_f32 v{aH}, v{aH}, v{aH+1}
    v_max_f32 v{aH}, 0, v{aH}
    v_cvt_pk_bf16_f32 v{aH}, v{aH}, v{aH}
    ''')
    for g in range(8):
        A = aA + 4*(g & 1)
        tb = aH + 1 + (g & 1)
        a(f'v_mov_b32_dpp v{tb}, v{aH} row_newbcast:{g} row_mask:0xf bank_mask:0x3')
        a(f'v_mov_b32_dpp v{tb}, v{aH} row_newbcast:{8+g} row_mask:0xf bank_mask:0xc')
        for k in range(4):
            a(f'v_and_b32 v{A+k}, v{tb}, v{aM+k}')
        c_ = '0' if g == 0 else f'v[{vD0}:{vD0+3}]'
        a(f'v_mfma_f32_16x16x32_bf16 v[{vD0}:{vD0+3}], v[{A}:{A+3}], v[{aW2+4*g}:{aW2+4*g+3}], {c_}')
    for k in range(4):
        a(f'v_mul_f32 v{vD0+k}, v{vt+11}, v{vD0+k}')
    a(f'''
    ds_write_b128 v{aFw}, v[{vD0}:{vD0+3}] offset:{F5_LDS}
    s_waitcnt lgkmcnt(0)
    ''')
    stamp('fpub')
    a('s_barrier')
    a('L_fin:')
    if o['stamps']:
        a(f'''
    s_waitcnt lgkmcnt(0)
    s_lshl_b32 s{sT0}, s2, 10
    s_lshl_b32 s{sT1}, s3, 7
    s_add_u32 s{sT0}, s{sT0}, s{sT1}
    s_add_u32 s{sT0}, s{sT0}, {WS_STAMP}
    v_mov_b32 v4, s{sT0}
    s_mov_b64 exec, 1
    ''')
        for i in range(16):
            a(f'''
    v_mov_b32 v6, s{64+2*i}
    v_mov_b32 v7, s{65+2*i}
    global_store_dwordx2 v4, v[6:7], {WS} offset:{8*i}
    s_nop 1
    ''')
    a('''
L_end:
    s_endpgm
    ''')
    body, n = hazard.fix(a.text())
    return wrap(body, (256,1,1), (320,1,1), LDS_BYTES, vgpr=NV, sgpr=102), STAMPS

if __name__ == '__main__':
    opts = json.loads(sys.argv[2]) if len(sys.argv) > 2 else {}
    s, names = gen(opts)
    open(sys.argv[1], 'w').write(s)
```

```python
import sys, json, struct
from asmgen import *
import hazard

WS_EPOCH = 0x0
WS_QP    = 0x1000
WS_HP    = 0x20000
WS_FP    = 0x60000
WS_OP    = 0x100000
WS_STAMP = 0x1000000
K_LDS  = 0
WQ_LDS = 32768
F5_LDS = WQ_LDS
X_LDS  = 47104
GW_LDS = 49152
Q_LDS  = 50176
G_LDS  = 51200
MX_LDS = 51216
LS_LDS = 51248
LDS_BYTES = 51328

LOG2E = 1.4426950408889634
def f2u(x): return struct.unpack('<I', struct.pack('<f', x))[0]

DEFAULTS = dict(dbgstamps=False, nt=True, stamps=False, round_scores=True, spin=20000, b1=True, prio=True, W=4, ackwait=True)
STAMPS = ['start', 'karg', 'issued', 'kdone', 'qpoll', 'qready', 'qk', 'vdone', 'pv', 'opub', 'h2', 'fpub', 'h3', 'end', 'a_wq', 'a_x']

def gen(opts):
    o = dict(DEFAULTS); o.update(opts)
    if o['dbgstamps']: o['stamps'] = True
    NT = ' nt' if o['nt'] else ''
    a = Asm()
    SI = {n: i for i, n in enumerate(STAMPS)}
    def stamp(name):
        if o['stamps']:
            i = SI[name]
            a(f's_memrealtime s[{64+2*i}:{65+2*i}]')
    def note(slot, half, sreg):
        if o['stamps']: a(f's_mov_b32 s{64+2*slot+half}, s{sreg}')
    sX, sK, sV, sWQ, sWO, sW1, sW2, sGW, sOUT, sDBG, sWS = 4, 6, 8, 10, 12, 16, 18, 20, 22, 24, 26
    sHKV, sJ, sB, sC = 28, 29, 30, 31
    sT0, sT1, sT2, sT3 = 32, 33, 34, 35
    sWO2 = 36; sKM = 38; sOI = 39
    sSEL = 40; sCHA, sCHB = 44, 45
    sSPIN = 46; sT4 = 47
    sKB, sVB = 48, 50
    sRG, sCT, sU = 52, 53, 54
    sH3 = 55
    sOGZ = 58; sC2 = 59
    WS = f's[{sWS}:{sWS+1}]'
    vL, vN, vKS, vT = 0, 1, 2, 3

    def tag_insert(regs):
        for i, r in enumerate(regs):
            a(f'v_perm_b32 v{r}, v{r}, v{vT}, s{sSEL+i}')
    def chk(base, ca, cb, dst):
        return [f'v_perm_b32 v{ca}, v{base+1}, v{base}, s{sCHA}', f'v_perm_b32 v{cb}, v{base+3}, v{base+2}, s{sCHB}',
                f'v_bitop3_b32 v{dst}, v{ca}, v{cb}, v{vT} bitop3:0x56']
    def tag_check(base, tmp, dst):
        for ln in chk(base, tmp, tmp+1, dst): a(ln)
    def allreduce_rows(op, r, t):
        a(f'v_mov_b32 v{t}, v{r}')
        a(f'v_permlane16_swap_b32 v{t}, v{r}')
        a(f'{op} v{r}, v{r}, v{t}')
        a(f'v_mov_b32 v{t}, v{r}')
        a(f'v_permlane32_swap_b32 v{t}, v{r}')
        a(f'{op} v{r}, v{r}, v{t}')
    def masks(dst, t):
        a(f'''
    v_and_b32 v{t}, 1, v{vL}
    v_cmp_eq_u32 vcc, 1, v{t}
    v_mov_b32 v{t+1}, 0xffff
    v_mov_b32 v{t+2}, 0xffff0000
    v_cndmask_b32 v{t+1}, v{t+1}, v{t+2}, vcc
    v_bfe_u32 v{t+2}, v{vL}, 1, 2
    ''')
        for k in range(4):
            a(f'''
    v_cmp_eq_u32 vcc, {k}, v{t+2}
    v_cndmask_b32 v{dst+k}, 0, v{t+1}, vcc
    ''')

    stamp('start')
    a(f'''
    s_cmp_ge_u32 s2, 256
    s_cbranch_scc1 L_end
    s_load_dwordx16 s[4:19], s[0:1], 0
    s_load_dwordx8 s[20:27], s[0:1], 64
    v_lshrrev_b32 v4, 6, v0
    v_and_b32 v{vL}, 63, v0
    v_readfirstlane_b32 s3, v4
    v_and_b32 v{vN}, 15, v{vL}
    v_lshrrev_b32 v{vKS}, 4, v{vL}
    s_and_b32 s{sHKV}, s2, 7
    s_lshr_b32 s{sJ}, s2, 3
    s_lshr_b32 s{sB}, s{sJ}, 4
    s_and_b32 s{sC}, s{sJ}, 15
    s_lshr_b32 s{sRG}, s{sJ}, 2
    s_and_b32 s{sCT}, s{sJ}, 3
    s_mov_b32 s{sSEL}, 0x07060500
    s_mov_b32 s{sSEL+1}, 0x07060501
    s_mov_b32 s{sSEL+2}, 0x07060502
    s_mov_b32 s{sSEL+3}, 0x07060503
    s_mov_b32 s{sCHA}, 0x0c0c0400
    s_mov_b32 s{sCHB}, 0x04000c0c
    s_mov_b32 s{sSPIN}, {o['spin']}
    s_cmp_eq_u32 s3, 4
    s_cbranch_scc1 L_aux
    ''')

    vM = 4
    vVoff, vWoff, vQrd, vKrd, vQpoll, vQw = 8, 9, 10, 11, 12, 13
    vOw, vOr, vOP, vAd, vFw, vFr, vFP, vH3, vOut = 14, 15, 16, 17, 18, 19, 20, 21, 22
    vV = 24
    vWO = 56
    vKop = 72
    vQop = 104
    vPA = 72
    vAcc = 88
    vO = 96
    vS = 136
    vTmp = 140
    vMXa, vGf = 160, 161
    NV = 168
    vKoff = vQop
    a(f'''
    v_lshrrev_b32 v{vTmp}, 5, v{vL}                 ; hi
    v_and_b32 v{vTmp+1}, 31, v{vL}                  ; u
    v_xor_b32 v{vTmp+2}, v{vTmp+1}, v{vTmp}
    v_lshlrev_b32 v{vTmp+2}, 4, v{vTmp+2}
    v_lshl_add_u32 v{vKoff}, v{vTmp}, 9, v{vTmp+2}
    v_lshlrev_b32 v{vTmp+3}, 4, v{vN}               ; n*16
    v_lshl_add_u32 v{vVoff}, v{vKS}, 11, v{vTmp+3}
    s_lshl_b32 s{sT0}, s3, 13                       ; w*8192
    s_lshl_b32 s{sT1}, s{sB}, 3
    s_add_u32 s{sT1}, s{sT1}, s{sHKV}
    s_lshl_b32 s{sT1}, s{sT1}, 21
    s_add_u32 s{sT1}, s{sT1}, 1572864
    s_lshl_b32 s{sT2}, s{sC}, 15
    s_add_u32 s{sT1}, s{sT1}, s{sT2}
    s_add_u32 s{sT1}, s{sT1}, s{sT0}
    s_mov_b32 s{sC2}, {hex(f2u(LOG2E/16.0))}
    v_mov_b32 v{vTmp+4}, 0
    s_waitcnt lgkmcnt(0)
    ''')
    stamp('karg')
    a(f'''
    global_load_dword v{vT}, v{vTmp+4}, {WS} sc1
    s_add_u32 s{sKB}, s{sK}, s{sT1}
    s_addc_u32 s{sKB+1}, s{sK+1}, 0
    s_add_u32 s{sVB}, s{sV}, s{sT1}
    s_addc_u32 s{sVB+1}, s{sV+1}, 0
    s_mov_b32 m0, s{sT0}
    s_mov_b32 s{sKM}, s{sT0}
    ''')
    if o['b1']:
        a('s_barrier')
    W = o['W']
    def kload(m):
        if m == 4:
            a(f'''
    s_add_u32 s{sKM}, s{sKM}, 4096
    s_mov_b32 m0, s{sKM}
    s_add_u32 s{sKB}, s{sKB}, 4096
    s_addc_u32 s{sKB+1}, s{sKB+1}, 0
    ''')
        t = vTmp + 11 + (m & 1)
        a(f'v_xor_b32 v{t}, {m << 5}, v{vKoff}')
        a(f'global_load_lds_dwordx4 v{t}, s[{sKB}:{sKB+1}] offset:{(m & 3) * 1024}{NT}')
    def vload(i):
        r, h = i >> 1, i & 1
        a(f'global_load_dwordx4 v[{vV+4*i}:{vV+4*i+3}], v{vVoff}, s[{sVB}:{sVB+1}] offset:{r*512+h*256}{NT}')
    vP = vTmp
    npre = o.get('npre', 4)
    elems = [('K', m) for m in range(8)] + [('V', i) for i in range(npre)] + [('P', 0)] + [('V', i) for i in range(npre, 8)]
    def issue(e):
        k, i = e
        if k == 'K': kload(i)
        elif k == 'V': vload(i)
        else: a(f'global_load_dwordx4 v[{vP}:{vP+3}], v{vQpoll}, {WS} sc1')
    for e in elems[:W]: issue(e)
    stamp('issued')
    t5, t6, t7 = vTmp+5, vTmp+6, vTmp+7
    a(f'''
    v_mul_u32_u24 v{vWoff}, 896, v{vKS}
    v_add_u32 v{vWoff}, v{vWoff}, v{vTmp+3}
    v_xor_b32 v{t5}, v{vKS}, v{vN}
    v_lshlrev_b32 v{t5}, 4, v{t5}
    v_lshl_add_u32 v{vKrd}, v{vN}, 9, v{t5}
    v_add_u32 v{vKrd}, s{sT0}, v{vKrd}
    v_lshrrev_b32 v{t5}, 3, v{vN}
    v_lshlrev_b32 v{t6}, 9, v{t5}
    v_lshl_add_u32 v{vQrd}, v{vKS}, 4, v{t6}
    s_lshl_b32 s{sT1}, s3, 2
    v_lshlrev_b32 v{vMXa}, 4, v{t5}
    v_add_u32 v{vMXa}, s{sT1}, v{vMXa}              ; head*16 + w*4
    ''')
    masks(vM, t6)
    a(f'''
    s_lshl_b32 s{sT1}, s{sHKV}, 13
    s_lshl_b32 s{sT2}, s{sB}, 11
    s_add_u32 s{sT1}, s{sT1}, s{sT2}
    s_lshl_b32 s{sT2}, s3, 9
    s_add_u32 s{sT1}, s{sT1}, s{sT2}
    s_add_u32 s{sT1}, s{sT1}, {WS_QP}
    v_lshlrev_b32 v{vQpoll}, 12, v{vTmp}
    v_lshl_add_u32 v{vQpoll}, v{vTmp+1}, 4, v{vQpoll}
    v_add_u32 v{vQpoll}, s{sT1}, v{vQpoll}
    s_lshl_b32 s{sT1}, s3, 8
    v_lshlrev_b32 v{vQw}, 3, v{vTmp+1}
    v_lshl_add_u32 v{vQw}, v{vTmp}, 2, v{vQw}
    v_add_u32 v{vQw}, s{sT1}, v{vQw}
    v_and_b32 v{t6}, 1, v{vKS}
    v_lshlrev_b32 v{t6}, 4, v{t6}
    v_lshl_add_u32 v{t6}, v{vN}, 5, v{t6}
    v_add_u32 v{t6}, s{sT0}, v{t6}
    v_lshl_add_u32 v{vOw}, v{vTmp}, 10, v{t6}
    v_lshl_add_u32 v{vFw}, v{vTmp}, 9, v{t6}
    s_lshr_b32 s{sT1}, s3, 1                        ; h
    s_and_b32 s{sT2}, s3, 1
    v_lshrrev_b32 v{t6}, 3, v{vL}                   ; l>>3
    s_lshl_b32 s{sT3}, s{sT2}, 3
    v_add_u32 v{t6}, s{sT3}, v{t6}                  ; dblk
    v_and_b32 v{t7}, 3, v{vL}                       ; slot&3
    v_lshlrev_b32 v{vOr}, 6, v{t6}
    v_lshl_add_u32 v{vOr}, v{t7}, 4, v{vOr}
    s_lshl_b32 s{sT3}, s{sT1}, 10
    v_add_u32 v{vOr}, s{sT3}, v{vOr}
    s_lshl_b32 s{sT3}, s{sHKV}, 1
    s_add_u32 s{sT3}, s{sT3}, s{sT1}
    s_lshl_b32 s{sT3}, s{sT3}, 16
    s_lshl_b32 s{sT4}, s{sB}, 11
    s_add_u32 s{sT3}, s{sT3}, s{sT4}
    s_lshl_b32 s{sT4}, s{sC}, 7
    s_add_u32 s{sT3}, s{sT3}, s{sT4}
    s_add_u32 s{sT3}, s{sT3}, {WS_OP}
    v_lshlrev_b32 v{vOP}, 12, v{t6}
    v_and_b32 v{t7}, 7, v{vL}                       ; slot
    v_lshl_add_u32 v{vOP}, v{t7}, 4, v{vOP}
    v_add_u32 v{vOP}, s{sT3}, v{vOP}
    s_lshr_b32 s{sT1}, s{sRG}, 2
    s_lshl_b32 s{sT2}, s{sHKV}, 1
    s_add_u32 s{sT1}, s{sT1}, s{sT2}
    s_and_b32 s{sT2}, s{sRG}, 3
    s_lshl_b32 s{sT2}, s{sT2}, 2
    s_add_u32 s{sT2}, s{sT2}, s3
    s_lshl_b32 s{sT3}, s{sT1}, 16
    s_lshl_b32 s{sT2}, s{sT2}, 12
    s_add_u32 s{sT3}, s{sT3}, s{sT2}
    s_add_u32 s{sT3}, s{sT3}, {WS_OP}
    v_lshlrev_b32 v{vAd}, 11, v{t5}
    v_lshl_add_u32 v{vAd}, v{vKS}, 9, v{vAd}
    v_lshl_add_u32 v{vAd}, v{t7}, 4, v{vAd}
    v_add_u32 v{vAd}, s{sT3}, v{vAd}
    v_lshlrev_b32 v{vFr}, 9, v{vTmp}
    v_lshl_add_u32 v{vFr}, v{vTmp+1}, 4, v{vFr}
    s_lshl_b32 s{sT1}, s{sHKV}, 3
    s_add_u32 s{sT1}, s{sT1}, s{sRG}
    s_lshl_b32 s{sT1}, s{sT1}, 12
    s_lshl_b32 s{sT2}, s{sCT}, 10
    s_add_u32 s{sT1}, s{sT1}, s{sT2}
    s_add_u32 s{sT1}, s{sT1}, {WS_FP}
    v_lshlrev_b32 v{vFP}, 4, v{vL}
    v_add_u32 v{vFP}, s{sT1}, v{vFP}
    s_lshl_b32 s{sT1}, s{sHKV}, 2
    s_lshr_b32 s{sT2}, s{sJ}, 3
    s_add_u32 s{sT1}, s{sT1}, s{sT2}                ; group
    s_and_b32 s{sT2}, s{sT1}, 3
    s_lshl_b32 s{sT2}, s{sT2}, 3
    s_and_b32 s{sT3}, s{sJ}, 7
    s_add_u32 s{sH3}, s{sT2}, s{sT3}
    s_lshr_b32 s{sT2}, s{sT1}, 4                    ; b3
    s_bfe_u32 s{sT3}, s{sT1}, 0x20002               ; ct3
    s_lshl_b32 s{sT4}, s{sT3}, 10
    s_lshl_b32 s{sT1}, s{sT2}, 9
    s_add_u32 s{sT4}, s{sT4}, s{sT1}
    s_lshl_b32 s{sT1}, s{sH3}, 4
    s_add_u32 s{sT4}, s{sT4}, s{sT1}
    s_add_u32 s{sT4}, s{sT4}, {WS_FP}
    v_lshlrev_b32 v{vH3}, 12, v{vL}
    v_add_u32 v{vH3}, s{sT4}, v{vH3}
    s_mul_i32 s{sT2}, s{sT2}, 896
    s_mul_i32 s{sT3}, s{sT3}, 224
    s_add_u32 s{sT2}, s{sT2}, s{sT3}
    s_lshl_b32 s{sT3}, s{sH3}, 3
    s_add_u32 s{sT2}, s{sT2}, s{sT3}
    v_lshlrev_b32 v{vOut}, 1, v{vKS}
    v_add_u32 v{vOut}, s{sT2}, v{vOut}
    s_lshl_b32 s{sT1}, s{sHKV}, 9
    s_lshl_b32 s{sT2}, s{sRG}, 6
    s_add_u32 s{sT1}, s{sT1}, s{sT2}
    s_lshl_b32 s{sT2}, s3, 4
    s_add_u32 s{sT1}, s{sT1}, s{sT2}
    s_mul_i32 s{sT1}, s{sT1}, 896
    s_mul_i32 s{sT2}, s{sCT}, 224
    s_add_u32 s{sT1}, s{sT1}, s{sT2}
    s_add_u32 s{sWO}, s{sWO}, s{sT1}
    s_addc_u32 s{sWO+1}, s{sWO+1}, 0
    s_add_u32 s{sWO2}, s{sWO}, 7168
    s_addc_u32 s{sWO2+1}, s{sWO+1}, 0
    ''')
    idxP = elems.index(('P', 0))
    tagdone = False
    def kop_reads():
        for s in range(8):
            t = vTmp + 4 + (s & 1)
            a(f'v_xor_b32 v{t}, {s << 6}, v{vKrd}')
            a(f'ds_read_b128 v[{vKop+4*s}:{vKop+4*s+3}], v{t}')
    kdone = False
    for i in range(W, len(elems)):
        a(f's_waitcnt vmcnt({W-1})')
        if not tagdone:
            a(f'v_add_u32 v{vT}, 0x01010101, v{vT}'); tagdone = True
        issue(elems[i])
        if i - W >= 7 and not kdone:
            stamp('kdone'); kop_reads(); kdone = True
    if not tagdone:
        a(f's_waitcnt vmcnt({len(elems)})')
        a(f'v_add_u32 v{vT}, 0x01010101, v{vT}')
    if not kdone:
        a(f's_waitcnt vmcnt({len(elems) - 8})')
        stamp('kdone'); kop_reads()
    a(f's_waitcnt vmcnt({len(elems) - 1 - idxP})')
    a('L_h1_chk:')
    tag_check(vP, vTmp+4, vTmp+6)
    a(f'''
    v_cmp_ne_u32 vcc, 0, v{vTmp+6}
    s_cbranch_vccz L_h1_ok
    s_sub_u32 s{sSPIN}, s{sSPIN}, 1
    s_cmp_eq_u32 s{sSPIN}, 0
    s_cbranch_scc1 L_h1_ok
    s_mov_b64 exec, vcc
    global_load_dwordx4 v[{vP}:{vP+3}], v{vQpoll}, {WS} sc1
    s_waitcnt vmcnt(0)
    s_branch L_h1_chk
L_h1_ok:
    s_mov_b64 exec, -1
    ''')
    stamp('qpoll'); note(14, 0, sSPIN)
    a(f'''
    v_permlane32_swap_b32 v{vP}, v{vP+2}
    v_permlane32_swap_b32 v{vP+1}, v{vP+3}
    v_add_f32 v{vP}, v{vP}, v{vP+2}
    v_add_f32 v{vP+1}, v{vP+1}, v{vP+3}
    v_cvt_pk_bf16_f32 v{vP}, v{vP}, v{vP+1}
    ds_write_b32 v{vQw}, v{vP} offset:{Q_LDS}
    s_waitcnt lgkmcnt(0)
    s_barrier
    ''')
    stamp('qready')
    for s in range(8):
        a(f'ds_read_b128 v[{vQop+4*s}:{vQop+4*s+3}], v{vQrd} offset:{Q_LDS + s*64}')
    def wo_load(g):
        base = sWO if g < 2 else sWO2
        off = ' offset:3584' if g & 1 else ''
        a(f'''
    s_mov_b32 exec_lo, 0x3fff3fff
    s_mov_b32 exec_hi, 0x3fff3fff
    global_load_dwordx4 v[{vWO+4*g}:{vWO+4*g+3}], v{vWoff}, s[{base}:{base+1}]{off}{NT}
    s_mov_b64 exec, -1
    ''')
    wo_load(0)
    for s in range(8):
        if not o['stamps']: a(f's_waitcnt lgkmcnt({7 - s})')
        elif s == 0: a('s_waitcnt lgkmcnt(0)')
        c = '0' if s == 0 else f'v[{vS}:{vS+3}]'
        a(f'v_mfma_f32_16x16x32_bf16 v[{vS}:{vS+3}], v[{vKop+4*s}:{vKop+4*s+3}], v[{vQop+4*s}:{vQop+4*s+3}], {c}')
    wo_load(1)
    s0, s1, s2_, s3_ = vS, vS+1, vS+2, vS+3
    if o['round_scores']:
        a(f'''
    v_cvt_pk_bf16_f32 v{vTmp}, v{s0}, v{s1}
    v_cvt_pk_bf16_f32 v{vTmp+1}, v{s2_}, v{s3_}
    v_lshlrev_b32 v{s0}, 16, v{vTmp}
    v_and_b32 v{s1}, 0xffff0000, v{vTmp}
    v_lshlrev_b32 v{s2_}, 16, v{vTmp+1}
    v_and_b32 v{s3_}, 0xffff0000, v{vTmp+1}
    ''')
    vMx, vLs = vTmp+2, vTmp+3
    a(f'''
    v_max3_f32 v{vMx}, v{s0}, v{s1}, v{s2_}
    v_max_f32 v{vMx}, v{vMx}, v{s3_}
    ''')
    allreduce_rows('v_max_f32', vMx, vTmp)
    a(f'''
    s_mov_b32 exec_lo, 0x101
    s_mov_b32 exec_hi, 0
    ds_write_b32 v{vMXa}, v{vMx} offset:{MX_LDS}
    s_mov_b64 exec, -1
    v_and_b32 v{vTmp}, 16, v{vMXa}                  ; head*16
    s_waitcnt lgkmcnt(0)
    s_barrier
    ds_read_b128 v[{vTmp+4}:{vTmp+7}], v{vTmp} offset:{MX_LDS}
    ''')
    wo_load(2)
    a(f'''
    s_waitcnt lgkmcnt(0)
    v_max3_f32 v{vMx}, v{vTmp+4}, v{vTmp+5}, v{vTmp+6}
    v_max_f32 v{vMx}, v{vMx}, v{vTmp+7}
    v_mul_f32 v{vMx}, s{sC2}, v{vMx}
    v_fma_f32 v{s0}, v{s0}, s{sC2}, -v{vMx}
    v_fma_f32 v{s1}, v{s1}, s{sC2}, -v{vMx}
    v_fma_f32 v{s2_}, v{s2_}, s{sC2}, -v{vMx}
    v_fma_f32 v{s3_}, v{s3_}, s{sC2}, -v{vMx}
    v_exp_f32 v{s0}, v{s0}
    v_exp_f32 v{s1}, v{s1}
    v_exp_f32 v{s2_}, v{s2_}
    v_exp_f32 v{s3_}, v{s3_}
    ''')
    for r in range(4):
        a(f'v_cvt_pk_bf16_f32 v{vTmp+4+r}, v{vS+r}, v{vS+r}')
    a(f'''
    v_add_f32 v{vLs}, v{s0}, v{s1}
    v_add_f32 v{vTmp+8}, v{s2_}, v{s3_}
    v_add_f32 v{vLs}, v{vLs}, v{vTmp+8}
    ''')
    def pa(r):
        for k in range(4):
            a(f'v_and_b32 v{vPA+4*r+k}, v{vTmp+4+r}, v{vM+k}')
    def pv(r):
        for h in range(2):
            c = '0' if r == 0 else f'v[{vAcc+4*h}:{vAcc+4*h+3}]'
            i = r*2+h
            a(f'v_mfma_f32_16x16x32_bf16 v[{vAcc+4*h}:{vAcc+4*h+3}], v[{vPA+4*r}:{vPA+4*r+3}], v[{vV+4*i}:{vV+4*i+3}], {c}')
    early = npre // 2
    for r in range(early): pa(r)
    for r in range(early): pv(r)
    for r in range(early, 4): pa(r)
    allreduce_rows('v_add_f32', vLs, vTmp)
    a(f'''
    s_mov_b32 exec_lo, 0x101
    s_mov_b32 exec_hi, 0
    ds_write_b32 v{vMXa}, v{vLs} offset:{LS_LDS}
    s_mov_b64 exec, -1
    ''')
    wo_load(3)
    a(f'''
    s_lshr_b32 s{sT0}, s3, 1
    s_lshl_b32 s{sT1}, s{sT0}, 3
    v_readlane_b32 s{sT2}, v{vMx}, s{sT1}
    s_lshl_b32 s{sT0}, s{sT0}, 4
    v_mov_b32 v{vTmp+9}, s{sT0}                     ; h*16
    v_lshrrev_b32 v{vTmp+8}, 3, v{vN}
    v_lshlrev_b32 v{vTmp+8}, 2, v{vTmp+8}
    ds_read_b32 v{vGf}, v{vTmp+8} offset:{G_LDS}
    v_and_b32 v{vTmp+10}, 4, v{vL}
    v_cmp_ne_u32 vcc, 0, v{vTmp+10}                 ; slot >= 4
    s_mov_b64 s[56:57], vcc
    ''')
    stamp('qk')
    a('s_waitcnt vmcnt(4)')
    stamp('vdone')
    for r in range(early, 4): pv(r)
    a(f'''
    ds_write_b128 v{vOw}, v[{vAcc}:{vAcc+3}]
    ds_write_b128 v{vOw}, v[{vAcc+4}:{vAcc+7}] offset:512
    s_waitcnt lgkmcnt(0)
    s_barrier
    ''')
    stamp('pv')
    for ww in range(4):
        a(f'ds_read_b128 v[{vO+4*ww}:{vO+4*ww+3}], v{vOr} offset:{8192*ww}')
    a(f'''
    ds_read_b128 v[{vTmp+4}:{vTmp+7}], v{vTmp+9} offset:{LS_LDS}
    v_mov_b32 v{vTmp+10}, s{sT2}
    s_waitcnt lgkmcnt(0)
    v_pk_add_f32 v[{vO}:{vO+1}], v[{vO}:{vO+1}], v[{vO+4}:{vO+5}]
    v_pk_add_f32 v[{vO+2}:{vO+3}], v[{vO+2}:{vO+3}], v[{vO+6}:{vO+7}]
    v_pk_add_f32 v[{vTmp+4}:{vTmp+5}], v[{vTmp+4}:{vTmp+5}], v[{vTmp+6}:{vTmp+7}]
    v_pk_add_f32 v[{vO+8}:{vO+9}], v[{vO+8}:{vO+9}], v[{vO+12}:{vO+13}]
    v_pk_add_f32 v[{vO+10}:{vO+11}], v[{vO+10}:{vO+11}], v[{vO+14}:{vO+15}]
    v_add_f32 v{vTmp+4}, v{vTmp+4}, v{vTmp+5}       ; L
    v_pk_add_f32 v[{vO}:{vO+1}], v[{vO}:{vO+1}], v[{vO+8}:{vO+9}]
    v_pk_add_f32 v[{vO+2}:{vO+3}], v[{vO+2}:{vO+3}], v[{vO+10}:{vO+11}]
    v_cndmask_b32 v{vO}, v{vO}, v{vTmp+10}, s[56:57]
    v_cndmask_b32 v{vO+1}, v{vO+1}, v{vTmp+4}, s[56:57]
    v_cndmask_b32 v{vO+2}, v{vO+2}, v{vTmp+10}, s[56:57]
    v_cndmask_b32 v{vO+3}, v{vO+3}, v{vTmp+4}, s[56:57]
    ''')
    tag_insert([vO, vO+1, vO+2, vO+3])
    a(f'global_store_dwordx4 v{vOP}, v[{vO}:{vO+3}], {WS} sc1')
    stamp('opub')
    if o['ackwait']: a('s_waitcnt vmcnt(0)')
    vD = vV
    H2LOADS = ''.join(f'    global_load_dwordx4 v[{vD+4*k}:{vD+4*k+3}], v{vAd}, {WS} offset:{128*k} sc1\n' for k in range(4)) + '    s_waitcnt vmcnt(0)\n'
    a(H2LOADS)
    a('L_h2_comp:')
    t = vTmp
    vW = t
    vMk = vV+16
    vWk = [vV+20, vV+22, vV+24, vV+26]
    vMxx, vLp, vX, tt = t, t+1, t+2, t+6
    vBad = t+7
    c = [t+8, t+9, t+10, t+11]; ca, cb = t+12, t+13
    fill = []
    for k in range(4): fill += chk(vD+4*k, ca, cb, c[k])
    fill += [f'v_or3_b32 v{vBad}, v{c[0]}, v{c[1]}, v{c[2]}', f'v_or_b32 v{vBad}, v{vBad}, v{c[3]}']
    def F(n):
        for _ in range(n):
            if fill: a(fill.pop(0))
    for k in range(4):
        a(f'v_mov_b32_dpp v{vMk+k}, v{vD+4*k} row_shl:4 row_mask:0xf bank_mask:0xf bound_ctrl:0')
    a(f'v_max3_f32 v{vMxx}, v{vMk}, v{vMk+1}, v{vMk+2}')
    a(f'v_max_f32 v{vMxx}, v{vMxx}, v{vMk+3}')
    a(f'v_mov_b32 v{tt}, v{vMxx}')
    F(2)
    a(f'v_permlane16_swap_b32 v{vMxx}, v{tt}')
    a(f'v_max_f32 v{vMxx}, v{vMxx}, v{tt}')
    a(f'v_mov_b32 v{tt}, v{vMxx}')
    F(2)
    a(f'v_permlane32_swap_b32 v{vMxx}, v{tt}')
    a(f'v_max_f32 v{vMxx}, v{vMxx}, v{tt}')
    for k in range(4): a(f'v_sub_f32 v{vWk[k]}, v{vMk+k}, v{vMxx}')
    for k in range(4): a(f'v_exp_f32 v{vWk[k]}, v{vWk[k]}')
    F(32)
    a(f'''
    v_cmp_ne_u32 vcc, 0, v{vBad}
    s_cbranch_vccz L_h2_ok
L_h2_retry:
    s_sub_u32 s{sSPIN}, s{sSPIN}, 1
    s_cmp_eq_u32 s{sSPIN}, 0
    s_cbranch_scc1 L_h2_ok
    s_mov_b64 exec, vcc
    ''')
    a(H2LOADS)
    for k in range(4):
        for ln in chk(vD+4*k, ca, cb, c[k]): a(ln)
    a(f'''
    v_or3_b32 v{vBad}, v{c[0]}, v{c[1]}, v{c[2]}
    v_or_b32 v{vBad}, v{vBad}, v{c[3]}
    v_cmp_ne_u32 vcc, 0, v{vBad}
    s_cbranch_vccnz L_h2_retry
    s_mov_b64 exec, -1
    s_branch L_h2_comp
L_h2_ok:
    s_mov_b64 exec, -1
    ''')
    stamp('h2'); note(14, 1, sSPIN)
    a(f'v_mul_f32_dpp v{vLp}, v{vD+1}, v{vWk[0]} row_shl:4 row_mask:0xf bank_mask:0xf bound_ctrl:0')
    a(f'v_pk_mul_f32 v[{vX}:{vX+1}], v[{vD}:{vD+1}], v[{vWk[0]}:{vWk[0]+1}] op_sel_hi:[1,0]')
    a(f'v_pk_mul_f32 v[{vX+2}:{vX+3}], v[{vD+2}:{vD+3}], v[{vWk[0]}:{vWk[0]+1}] op_sel_hi:[1,0]')
    for k in range(1, 4):
        a(f'v_fmac_f32_dpp v{vLp}, v{vD+4*k+1}, v{vWk[k]} row_shl:4 row_mask:0xf bank_mask:0xf bound_ctrl:0')
        a(f'v_pk_fma_f32 v[{vX}:{vX+1}], v[{vD+4*k}:{vD+4*k+1}], v[{vWk[k]}:{vWk[k]+1}], v[{vX}:{vX+1}] op_sel_hi:[1,0,1]')
        a(f'v_pk_fma_f32 v[{vX+2}:{vX+3}], v[{vD+4*k+2}:{vD+4*k+3}], v[{vWk[k]}:{vWk[k]+1}], v[{vX+2}:{vX+3}] op_sel_hi:[1,0,1]')
    a(f'''
    v_mov_b32 v{tt}, v{vLp}
    v_permlane32_swap_b32 v{vX}, v{vX+2}
    v_permlane32_swap_b32 v{vX+1}, v{vX+3}
    v_permlane16_swap_b32 v{vLp}, v{tt}
    v_add_f32 v{vX}, v{vX}, v{vX+2}
    v_add_f32 v{vX+1}, v{vX+1}, v{vX+3}
    v_add_f32 v{vLp}, v{vLp}, v{tt}
    v_mov_b32 v{tt}, v{vLp}
    v_permlane16_swap_b32 v{vX}, v{vX+1}
    v_permlane32_swap_b32 v{vLp}, v{tt}
    v_add_f32 v{vX}, v{vX}, v{vX+1}
    v_add_f32 v{vLp}, v{vLp}, v{tt}
    v_rcp_f32 v{vLp}, v{vLp}
    v_mul_f32 v{vX}, v{vX}, v{vGf}
    v_mul_f32 v{vX}, v{vX}, v{vLp}
    v_cvt_pk_bf16_f32 v{vX}, v{vX}, v{vX}
    v_mov_b32_dpp v{vX}, v{vX} row_shr:4 row_mask:0xf bank_mask:0xa
    ''')
    vAo = vPA
    for g in range(4):
        for k in range(4):
            a(f'v_and_b32_dpp v{vAo+4*g+k}, v{vX}, v{vM+k} quad_perm:[{g},{g},{g},{g}] row_mask:0xf bank_mask:0xf')
        cc = '0' if g == 0 else f'v[{vAcc}:{vAcc+3}]'
        a(f'v_mfma_f32_16x16x32_bf16 v[{vAcc}:{vAcc+3}], v[{vAo+4*g}:{vAo+4*g+3}], v[{vWO+4*g}:{vWO+4*g+3}], {cc}')
    a(f'''
    ds_write_b128 v{vFw}, v[{vAcc}:{vAcc+3}] offset:4096
    s_waitcnt lgkmcnt(0)
    s_barrier
    s_cmp_lg_u32 s3, 0
    s_cbranch_scc1 L_m_done
    ''')
    for ww in range(4):
        a(f'ds_read_b128 v[{vO+4*ww}:{vO+4*ww+3}], v{vFr} offset:{8192*ww+4096}')
    a(f'''
    ds_read_b128 v[{vO+16}:{vO+19}], v{vFr} offset:{F5_LDS}
    s_waitcnt lgkmcnt(0)
    v_pk_add_f32 v[{vO}:{vO+1}], v[{vO}:{vO+1}], v[{vO+4}:{vO+5}]
    v_pk_add_f32 v[{vO+2}:{vO+3}], v[{vO+2}:{vO+3}], v[{vO+6}:{vO+7}]
    v_pk_add_f32 v[{vO+8}:{vO+9}], v[{vO+8}:{vO+9}], v[{vO+12}:{vO+13}]
    v_pk_add_f32 v[{vO+10}:{vO+11}], v[{vO+10}:{vO+11}], v[{vO+14}:{vO+15}]
    v_pk_add_f32 v[{vO}:{vO+1}], v[{vO}:{vO+1}], v[{vO+16}:{vO+17}]
    v_pk_add_f32 v[{vO+2}:{vO+3}], v[{vO+2}:{vO+3}], v[{vO+18}:{vO+19}]
    v_pk_add_f32 v[{vO}:{vO+1}], v[{vO}:{vO+1}], v[{vO+8}:{vO+9}]
    v_pk_add_f32 v[{vO+2}:{vO+3}], v[{vO+2}:{vO+3}], v[{vO+10}:{vO+11}]
    ''')
    tag_insert([vO, vO+1, vO+2, vO+3])
    a(f'global_store_dwordx4 v{vFP}, v[{vO}:{vO+3}], {WS} sc1')
    stamp('fpub')
    vF = vV
    a(f'''
    s_cmp_ge_u32 s{sH3}, 28
    s_cbranch_scc1 L_m_done
    ''')
    if o['ackwait']: a('s_waitcnt vmcnt(0)')
    a(f'''
L_h3_loop:
    global_load_dwordx4 v[{vF}:{vF+3}], v{vH3}, {WS} sc1
    s_waitcnt vmcnt(0)
    ''')
    tag_check(vF, vTmp+2, vTmp+4)
    a(f'''
    v_cmp_ne_u32 vcc, 0, v{vTmp+4}
    s_cbranch_vccz L_h3_ok
    s_mov_b64 exec, vcc
    s_sub_u32 s{sSPIN}, s{sSPIN}, 1
    s_cmp_lg_u32 s{sSPIN}, 0
    s_cbranch_scc1 L_h3_loop
L_h3_ok:
    s_mov_b64 exec, -1
    ''')
    stamp('h3'); note(15, 0, sSPIN)
    a(f'''
    v_permlane32_swap_b32 v{vF}, v{vF+2}
    v_permlane32_swap_b32 v{vF+1}, v{vF+3}
    v_add_f32 v{vF}, v{vF}, v{vF+2}
    v_add_f32 v{vF+1}, v{vF+1}, v{vF+3}
    v_permlane16_swap_b32 v{vF}, v{vF+1}
    v_add_f32 v{vF}, v{vF}, v{vF+1}
    v_add_f32_dpp v{vF}, v{vF}, v{vF} row_ror:8 row_mask:0xf bank_mask:0xf
    v_add_f32_dpp v{vF}, v{vF}, v{vF} row_ror:4 row_mask:0xf bank_mask:0xf
    v_add_f32_dpp v{vF}, v{vF}, v{vF} row_ror:2 row_mask:0xf bank_mask:0xf
    v_add_f32_dpp v{vF}, v{vF}, v{vF} row_ror:1 row_mask:0xf bank_mask:0xf
    v_cvt_pk_bf16_f32 v{vF}, v{vF}, v{vF}
    s_mov_b32 exec_lo, 0x00010001
    s_mov_b32 exec_hi, 0x00010001
    global_store_short v{vOut}, v{vF}, s[{sOUT}:{sOUT+1}]
    s_cmp_lg_u32 s2, 0
    s_cbranch_scc1 L_m_done
    v_mov_b32 v{vTmp}, 0
    s_mov_b64 exec, 1
    global_store_dword v{vTmp}, v{vT}, {WS} sc1
L_m_done:
    s_mov_b64 exec, -1
    ''')
    stamp('end')
    a('s_branch L_fin')

    a('L_aux:')
    if o['prio']:
        a('s_setprio 3')
    vA16, vWq, vTr, vXr = 4, 5, 6, 7
    vXB = 8
    vWA = 36
    vD0, vD1 = 68, 72
    vt = 76
    aM = 96
    aXA = 100
    aW1 = 128
    aW1off, aHP, aQP, aXd, aW2off, aAh, aFw = 156, 157, 158, 159, 160, 161, 162
    aW2 = 8
    aH = 40
    aA = 56
    a(f'''
    v_lshlrev_b32 v{vA16}, 4, v{vL}
    v_lshrrev_b32 v{vt}, 2, v{vL}
    v_and_b32 v{vt+1}, 3, v{vL}
    v_lshlrev_b32 v{vt+1}, 4, v{vt+1}
    v_lshl_add_u32 v{vWq}, v{vt}, 13, v{vt+1}
    s_and_b32 s{sT0}, s{sJ}, 1                      ; rh
    s_lshr_b32 s{sT1}, s{sJ}, 1                     ; ct32
    s_mul_i32 s{sT2}, s{sT0}, {224*8192}
    s_lshl_b32 s{sT3}, s{sHKV}, 10
    s_add_u32 s{sT2}, s{sT2}, s{sT3}
    s_lshl_b32 s{sT3}, s{sT1}, 6
    s_add_u32 s{sT2}, s{sT2}, s{sT3}
    v_mov_b32 v{vt+2}, 0
    s_waitcnt lgkmcnt(0)
    ''')
    stamp('karg')
    a(f'''
    s_add_u32 s{sWQ}, s{sWQ}, s{sT2}
    s_addc_u32 s{sWQ+1}, s{sWQ+1}, 0
    global_load_dword v{vT}, v{vt+2}, {WS} sc1
    s_mov_b32 m0, {X_LDS}
    s_nop 0
    global_load_lds_dwordx4 v{vA16}, s[{sX}:{sX+1}]
    s_mov_b32 exec_lo, -1
    s_mov_b32 exec_hi, 0x0000ffff
    global_load_lds_dwordx4 v{vA16}, s[{sX}:{sX+1}] offset:1024
    s_mov_b32 m0, {GW_LDS}
    s_mov_b32 exec_hi, 0x00ffffff
    global_load_lds_dwordx4 v{vA16}, s[{sGW}:{sGW+1}]
    s_mov_b64 exec, -1
    ''')
    for s in range(14):
        a(f's_mov_b32 m0, {WQ_LDS + s*1024}')
        if s > 0:
            a(f's_add_u32 s{sWQ}, s{sWQ}, {16*8192}\ns_addc_u32 s{sWQ+1}, s{sWQ+1}, 0')
        else:
            a('s_nop 0')
        a(f'global_load_lds_dwordx4 v{vWq}, s[{sWQ}:{sWQ+1}]{NT}')
    if o['b1']:
        a('s_barrier')
    stamp('issued')
    a(f'''
    v_lshrrev_b32 v{vt}, 2, v{vN}
    v_lshlrev_b32 v{vt}, 6, v{vt}
    v_and_b32 v{vt+1}, 3, v{vN}
    v_lshl_add_u32 v{vt}, v{vt+1}, 3, v{vt}
    v_lshl_add_u32 v{vTr}, v{vKS}, 9, v{vt}
    v_lshrrev_b32 v{vt+3}, 3, v{vN}                 ; b = n>>3
    v_mul_u32_u24 v{vt}, 896, v{vt+3}
    v_lshl_add_u32 v{vXr}, v{vKS}, 4, v{vt}
    s_mul_i32 s{sT2}, s{sT0}, 448
    v_add_u32 v{vXr}, s{sT2}, v{vXr}
    s_lshl_b32 s{sT2}, s{sHKV}, 1
    s_add_u32 s{sT2}, s{sT2}, s{sT0}
    s_lshl_b32 s{sT2}, s{sT2}, 12
    s_lshl_b32 s{sT3}, s{sT1}, 7
    s_add_u32 s{sT2}, s{sT2}, s{sT3}
    s_add_u32 s{sT2}, s{sT2}, {WS_QP}
    v_lshlrev_b32 v{aQP}, 11, v{vt+3}
    v_and_b32 v{vt+1}, 1, v{vL}
    v_lshl_add_u32 v{aQP}, v{vt+1}, 6, v{aQP}
    v_lshl_add_u32 v{aQP}, v{vKS}, 4, v{aQP}
    v_add_u32 v{aQP}, s{sT2}, v{aQP}
    ''')
    masks(aM, vt+4)
    a(f'''
    s_cmp_ge_u32 s{sJ}, 14
    s_cselect_b32 s{sT2}, 1, 0
    s_mul_i32 s{sT3}, s{sT2}, 14
    s_sub_u32 s{sT3}, s{sJ}, s{sT3}
    s_min_u32 s{sT3}, s{sT3}, 13
    s_mul_i32 s{sT4}, s{sHKV}, 56
    s_mul_i32 s{sU}, s{sT2}, 28
    s_add_u32 s{sT4}, s{sT4}, s{sU}                 ; r0
    s_mul_i32 s{sU}, s{sT4}, 3584
    s_lshl_b32 s{sOI}, s{sT3}, 8
    s_add_u32 s{sU}, s{sU}, s{sOI}
    s_add_u32 s{sW1}, s{sW1}, s{sU}
    s_addc_u32 s{sW1+1}, s{sW1+1}, 0
    v_mul_u32_u24 v{aW1off}, 3584, v{vKS}
    v_lshl_add_u32 v{aW1off}, v{vN}, 4, v{aW1off}
    s_lshl_b32 s{sU}, s{sHKV}, 1
    s_add_u32 s{sU}, s{sU}, s{sT2}
    s_mul_i32 s{sU}, s{sU}, 14336
    s_lshl_b32 s{sOI}, s{sT3}, 9
    s_add_u32 s{sU}, s{sU}, s{sOI}
    s_add_u32 s{sU}, s{sU}, {WS_HP}
    v_lshrrev_b32 v{vt+7}, 5, v{vL}
    v_mul_u32_u24 v{aHP}, 7168, v{vt+7}
    v_and_b32 v{vt+8}, 31, v{vL}
    v_lshl_add_u32 v{aHP}, v{vt+8}, 4, v{aHP}
    v_add_u32 v{aHP}, s{sU}, v{aHP}
    v_mul_u32_u24 v{aXd}, 896, v{vt+3}
    v_lshl_add_u32 v{aXd}, v{vKS}, 1, v{aXd}
    s_lshl_b32 s{sU}, s{sT4}, 1
    v_add_u32 v{aXd}, s{sU}, v{aXd}
    s_lshl_b32 s{sU}, s{sRG}, 3
    s_add_u32 s{sU}, s{sU}, s{sHKV}
    s_cmp_lt_u32 s{sU}, 56
    s_cselect_b32 s{sOGZ}, 0x3f800000, 0
    s_min_u32 s{sU}, s{sU}, 55
    s_lshr_b32 s{sT2}, s{sU}, 2
    s_lshl_b32 s{sT2}, s{sT2}, 7
    s_and_b32 s{sT3}, s{sU}, 1
    s_lshl_b32 s{sT3}, s{sT3}, 6
    s_add_u32 s{sT2}, s{sT2}, s{sT3}
    s_bfe_u32 s{sT3}, s{sU}, 0x10001
    s_lshl_b32 s{sT3}, s{sT3}, 2
    s_add_u32 s{sT2}, s{sT2}, s{sT3}
    s_mul_i32 s{sT2}, s{sT2}, 896
    s_mul_i32 s{sT3}, s{sCT}, 224
    s_add_u32 s{sT2}, s{sT2}, s{sT3}
    s_add_u32 s{sW2}, s{sW2}, s{sT2}
    s_addc_u32 s{sW2+1}, s{sW2+1}, 0
    v_mul_u32_u24 v{aW2off}, 896, v{vKS}
    v_lshl_add_u32 v{aW2off}, v{vN}, 4, v{aW2off}
    v_mul_u32_u24 v{aAh}, 14336, v{vKS}
    v_mul_u32_u24 v{vt+8}, 7168, v{vt+3}
    v_add_u32 v{aAh}, v{aAh}, v{vt+8}
    v_and_b32 v{vt+8}, 7, v{vL}
    v_lshl_add_u32 v{aAh}, v{vt+8}, 4, v{aAh}
    s_lshl_b32 s{sT2}, s{sU}, 7
    s_add_u32 s{sT2}, s{sT2}, {WS_HP}
    v_add_u32 v{aAh}, s{sT2}, v{aAh}
    v_and_b32 v{vt+8}, 1, v{vKS}
    v_lshlrev_b32 v{vt+8}, 4, v{vt+8}
    v_lshl_add_u32 v{vt+8}, v{vN}, 5, v{vt+8}
    v_lshl_add_u32 v{aFw}, v{vt+7}, 9, v{vt+8}
    v_cmp_eq_u32 vcc, 1, v{vt+1}
    s_waitcnt vmcnt(14)
    v_add_u32 v{vT}, 0x01010101, v{vT}
    ''')
    stamp('a_x')
    for s in range(7):
        a(f'ds_read_b128 v[{vXB+4*s}:{vXB+4*s+3}], v{vXr} offset:{X_LDS + 64*s}')
    for s in range(7):
        wa = vWA + 16*(s & 1)
        a(f's_waitcnt vmcnt({14 - 2*s - 2})')
        for cg in range(2):
            for hf in range(2):
                a(f'ds_read_b64_tr_b16 v[{wa+8*cg+2*hf}:{wa+8*cg+2*hf+1}], v{vTr} offset:{WQ_LDS + s*2048 + hf*256 + cg*32}')
        a('s_waitcnt lgkmcnt(0)')
        for cg in range(2):
            d = vD0 if cg == 0 else vD1
            c_ = '0' if s == 0 else f'v[{d}:{d+3}]'
            a(f'v_mfma_f32_16x16x32_bf16 v[{d}:{d+3}], v[{wa+8*cg}:{wa+8*cg+3}], v[{vXB+4*s}:{vXB+4*s+3}], {c_}')
    stamp('a_wq')
    for k in range(4):
        a(f'v_cndmask_b32 v{vD0+k}, v{vD0+k}, v{vD1+k}, vcc')
    tag_insert([vD0, vD0+1, vD0+2, vD0+3])
    a(f'''
    s_mov_b32 exec_lo, 0x03030303
    s_mov_b32 exec_hi, 0x03030303
    global_store_dwordx4 v{aQP}, v[{vD0}:{vD0+3}], {WS} sc1
    s_mov_b64 exec, -1
    ''')
    stamp('kdone')
    g0 = vXB
    a(f'''
    v_mov_b32 v{vt+8}, 0
    v_mov_b32 v{vt+9}, 0
    s_mov_b32 exec_lo, -1
    s_mov_b32 exec_hi, 0x00ffffff
    ds_read_b128 v[{g0}:{g0+3}], v{vA16} offset:{X_LDS}
    ds_read_b128 v[{g0+4}:{g0+7}], v{vA16} offset:{X_LDS+896}
    ds_read_b128 v[{g0+8}:{g0+11}], v{vA16} offset:{GW_LDS}
    s_waitcnt lgkmcnt(0)
    ''')
    for k in range(4):
        a(f'v_dot2_f32_bf16 v{vt+8}, v{g0+k}, v{g0+8+k}, v{vt+8}')
        a(f'v_dot2_f32_bf16 v{vt+9}, v{g0+4+k}, v{g0+8+k}, v{vt+9}')
    a('s_mov_b64 exec, -1')
    for g in range(7):
        a(f'ds_read_u16 v{g0+12+g}, v{aXd} offset:{X_LDS + 8*g}')
    for n in (8, 4, 2, 1):
        for r in (vt+8, vt+9):
            a(f'v_add_f32_dpp v{r}, v{r}, v{r} row_ror:{n} row_mask:0xf bank_mask:0xf')
    allreduce_rows('v_add_f32', vt+8, vt+10)
    allreduce_rows('v_add_f32', vt+9, vt+10)
    a(f'''
    v_and_b32 v{vt+10}, 1, v{vL}
    v_cmp_eq_u32 vcc, 1, v{vt+10}
    v_cndmask_b32 v{vt+8}, v{vt+8}, v{vt+9}, vcc
    v_cvt_pk_bf16_f32 v{vt+8}, v{vt+8}, v{vt+8}
    v_lshlrev_b32 v{vt+8}, 16, v{vt+8}
    v_mul_f32 v{vt+8}, {hex(f2u(-LOG2E))}, v{vt+8}
    v_exp_f32 v{vt+8}, v{vt+8}
    v_add_f32 v{vt+8}, 1.0, v{vt+8}
    v_rcp_f32 v{vt+8}, v{vt+8}
    v_cvt_pk_bf16_f32 v{vt+8}, v{vt+8}, v{vt+8}
    v_lshlrev_b32 v{vt+8}, 16, v{vt+8}
    v_sub_f32 v{vt+9}, 1.0, v{vt+8}
    v_cvt_pk_bf16_f32 v{vt+9}, v{vt+9}, v{vt+9}
    v_lshlrev_b32 v{vt+9}, 16, v{vt+9}
    v_lshlrev_b32 v{vt+10}, 2, v{vt+10}
    s_mov_b64 exec, 3
    ds_write_b32 v{vt+10}, v{vt+8} offset:{G_LDS}
    s_mov_b64 exec, -1
    v_readlane_b32 s{sT2}, v{vt+9}, 0
    v_readlane_b32 s{sT3}, v{vt+9}, 1
    v_cmp_gt_u32 vcc, 32, v{vL}
    v_mov_b32 v{vt+11}, s{sT3}
    v_mov_b32 v{vt+12}, s{sT2}
    v_cndmask_b32 v{vt+11}, v{vt+11}, v{vt+12}, vcc
    v_mul_f32 v{vt+11}, s{sOGZ}, v{vt+11}
    s_waitcnt lgkmcnt(0)
    ''')
    for g in range(7):
        a(f'v_lshl_or_b32 v{g0+12+g}, v{g0+12+g}, 16, v{g0+12+g}')
    for g in range(7):
        for k in range(4):
            a(f'v_and_b32 v{aXA+4*g+k}, v{g0+12+g}, v{aM+k}')
    stamp('qpoll')
    a('s_barrier')
    a(f'''
    s_cmp_ge_u32 s{sJ}, 28
    s_cbranch_scc1 L_a_now1
    ''')
    for g in range(7):
        a(f'global_load_dwordx4 v[{aW1+4*g}:{aW1+4*g+3}], v{aW1off}, s[{sW1}:{sW1+1}]{NT}')
        if g < 6:
            a(f's_add_u32 s{sW1}, s{sW1}, {4*3584}\ns_addc_u32 s{sW1+1}, s{sW1+1}, 0')
    a('''
L_a_now1:
    s_barrier
    ''')
    a('s_mov_b32 exec_lo, 0x3fff3fff\ns_mov_b32 exec_hi, 0x3fff3fff')
    for g in range(8):
        a(f'global_load_dwordx4 v[{aW2+4*g}:{aW2+4*g+3}], v{aW2off}, s[{sW2}:{sW2+1}]{NT}')
        if g < 7:
            a(f's_add_u32 s{sW2}, s{sW2}, {8*896}\ns_addc_u32 s{sW2+1}, s{sW2+1}, 0')
    a('s_mov_b64 exec, -1')
    a('s_barrier')
    a(f'''
    s_cmp_ge_u32 s{sJ}, 28
    s_cbranch_scc1 L_a_noffn1
    s_waitcnt vmcnt(8)
    ''')
    stamp('vdone')
    for g in range(7):
        c_ = '0' if g == 0 else f'v[{vD0}:{vD0+3}]'
        a(f'v_mfma_f32_16x16x32_bf16 v[{vD0}:{vD0+3}], v[{aXA+4*g}:{aXA+4*g+3}], v[{aW1+4*g}:{aW1+4*g+3}], {c_}')
    tag_insert([vD0, vD0+1, vD0+2, vD0+3])
    a(f'global_store_dwordx4 v{aHP}, v[{vD0}:{vD0+3}], {WS} sc1')
    stamp('opub')
    a('L_a_noffn1:')
    if o['ackwait']: a('s_waitcnt vmcnt(0)')
    HLOADS = ''
    for k in range(4):
        HLOADS += f'    v_add_u32 v{vt+12}, {4*k*14336}, v{aAh}\n    global_load_dwordx4 v[{aH+4*k}:{aH+4*k+3}], v{vt+12}, {WS} sc1\n'
    HLOADS += '    s_waitcnt vmcnt(0)\n'
    a('L_ah_loop:')
    a(HLOADS)
    cc4 = [vt, vt+1, vt+2, vt+3]
    for k in range(4):
        for ln in chk(aH+4*k, vt+4, vt+5, cc4[k]): a(ln)
    a(f'''
    v_or3_b32 v{vt}, v{vt}, v{vt+1}, v{vt+2}
    v_or_b32 v{vt}, v{vt}, v{vt+3}
    v_cmp_ne_u32 vcc, 0, v{vt}
    s_cbranch_vccz L_ah_ok
    s_mov_b64 exec, vcc
    s_sub_u32 s{sSPIN}, s{sSPIN}, 1
    s_cmp_lg_u32 s{sSPIN}, 0
    s_cbranch_scc1 L_ah_loop
L_ah_ok:
    s_mov_b64 exec, -1
    ''')
    stamp('h2'); note(15, 1, sSPIN)
    a(f'''
    v_pk_add_f32 v[{aH}:{aH+1}], v[{aH}:{aH+1}], v[{aH+4}:{aH+5}]
    v_pk_add_f32 v[{aH+2}:{aH+3}], v[{aH+2}:{aH+3}], v[{aH+6}:{aH+7}]
    v_pk_add_f32 v[{aH+8}:{aH+9}], v[{aH+8}:{aH+9}], v[{aH+12}:{aH+13}]
    v_pk_add_f32 v[{aH+10}:{aH+11}], v[{aH+10}:{aH+11}], v[{aH+14}:{aH+15}]
    v_pk_add_f32 v[{aH}:{aH+1}], v[{aH}:{aH+1}], v[{aH+8}:{aH+9}]
    v_pk_add_f32 v[{aH+2}:{aH+3}], v[{aH+2}:{aH+3}], v[{aH+10}:{aH+11}]
    v_permlane32_swap_b32 v{aH}, v{aH+2}
    v_permlane32_swap_b32 v{aH+1}, v{aH+3}
    v_add_f32 v{aH}, v{aH}, v{aH+2}
    v_add_f32 v{aH+1}, v{aH+1}, v{aH+3}
    v_permlane16_swap_b32 v{aH}, v{aH+1}
    v_add_f32 v{aH}, v{aH}, v{aH+1}
    v_max_f32 v{aH}, 0, v{aH}
    v_cvt_pk_bf16_f32 v{aH}, v{aH}, v{aH}
    ''')
    for g in range(8):
        A = aA + 4*(g & 1)
        tb = aH + 1 + (g & 1)
        a(f'v_mov_b32_dpp v{tb}, v{aH} row_newbcast:{g} row_mask:0xf bank_mask:0x3')
        a(f'v_mov_b32_dpp v{tb}, v{aH} row_newbcast:{8+g} row_mask:0xf bank_mask:0xc')
        for k in range(4):
            a(f'v_and_b32 v{A+k}, v{tb}, v{aM+k}')
        c_ = '0' if g == 0 else f'v[{vD0}:{vD0+3}]'
        a(f'v_mfma_f32_16x16x32_bf16 v[{vD0}:{vD0+3}], v[{A}:{A+3}], v[{aW2+4*g}:{aW2+4*g+3}], {c_}')
    for k in range(4):
        a(f'v_mul_f32 v{vD0+k}, v{vt+11}, v{vD0+k}')
    a(f'''
    ds_write_b128 v{aFw}, v[{vD0}:{vD0+3}] offset:{F5_LDS}
    s_waitcnt lgkmcnt(0)
    ''')
    stamp('fpub')
    a('s_barrier')
    a('L_fin:')
    if o['dbgstamps']:
        a(f'''
    s_waitcnt lgkmcnt(0)
    s_cmp_eq_u32 s3, 4
    s_cbranch_scc1 L_end
    v_mov_b32 v4, 0
    s_mov_b64 exec, 1
    ''')
        items = [('start', 1), ('start', 0), ('karg', 0), ('kdone', 1), ('kdone', 0), ('qpoll', 1), ('qpoll', 0), ('vdone', 0),
                 ('opub', 1), ('opub', 0), ('h2', 1), ('h2', 0), ('end', 1), ('end', 0)]
        for slot, (n, comp) in enumerate(items):
            i = SI[n]
            a(f'v_mov_b32 v6, s{64+2*i}')
            if comp: a('v_not_b32 v6, v6')
            a(f'global_atomic_umax v4, v6, s[{sDBG}:{sDBG+1}] offset:{4*slot} sc1')
            a('s_nop 1')
    elif o['stamps']:
        a(f'''
    s_waitcnt lgkmcnt(0)
    s_lshl_b32 s{sT0}, s2, 10
    s_lshl_b32 s{sT1}, s3, 7
    s_add_u32 s{sT0}, s{sT0}, s{sT1}
    s_add_u32 s{sT0}, s{sT0}, {WS_STAMP}
    v_mov_b32 v4, s{sT0}
    s_mov_b64 exec, 1
    ''')
        for i in range(16):
            a(f'''
    v_mov_b32 v6, s{64+2*i}
    v_mov_b32 v7, s{65+2*i}
    global_store_dwordx2 v4, v[6:7], {WS} offset:{8*i}
    s_nop 1
    ''')
    a('''
L_end:
    s_endpgm
    ''')
    body, n = hazard.fix(a.text())
    return wrap(body, (256,1,1), (320,1,1), LDS_BYTES, vgpr=NV, sgpr=102), STAMPS

if __name__ == '__main__':
    opts = json.loads(sys.argv[2]) if len(sys.argv) > 2 else {}
    s, names = gen(opts)
    open(sys.argv[1], 'w').write(s)
```

```python
import sys, json, struct
from asmgen import *
import hazard

WS_EPOCH = 0x0
WS_QP    = 0x1000
WS_HP    = 0x20000
WS_FP    = 0x60000
WS_OP    = 0x100000
WS_ALT   = 0x200000
WS_STAMP = 0x1000000
K_LDS  = 0
WQ_LDS = 32768
F5_LDS = WQ_LDS
X_LDS  = 47104
GW_LDS = 49152
Q_LDS  = 50176
G_LDS  = 51200
MX_LDS = 51216
LS_LDS = 51248
LDS_BYTES = 51328

LOG2E = 1.4426950408889634
def f2u(x): return struct.unpack('<I', struct.pack('<f', x))[0]

DEFAULTS = dict(probe=None, stamps=False, round_scores=True, spin=20000, b1=True, prio=True, W=5, npre=2,
                nt_wq=True, nt_k=True, nt_v=True, nt_wo=True, nt_w1=True, nt_w2=True,
                wo_at=['bq', 'qk', 'pub', 'pub'],
                o_delay='wo0',
                h_delay=None, fast=True, aevery=4, rot='hkv+c', prewrite=True)
STAMPS = ['start', 'karg', 'h2f', 'kdone', 'qpoll', 'qready', 'qk', 'vdone', 'pv', 'opub', 'h2', 'fpub', 'h3', 'end', 'a_wq', 'a_x']

class VM:
    def __init__(self, a): self.a = a; self.ops = []
    def issue(self, name): self.ops.append(name)
    def wait(self, name):
        i = max(k for k, n in enumerate(self.ops) if n == name)
        self.a(f's_waitcnt vmcnt({len(self.ops) - 1 - i})')
    def waitall(self): self.a('s_waitcnt vmcnt(0)')

def gen(opts):
    o = dict(DEFAULTS); o.update(opts)
    if o['probe']: o['stamps'] = True
    def NT(k): return ' nt' if o['nt_' + k] else ''
    a = Asm()
    SI = {n: i for i, n in enumerate(STAMPS)}
    def stamp(name):
        if o['stamps']:
            i = SI[name]
            a(f's_memrealtime s[{64+2*i}:{65+2*i}]')
    def note(slot, half, sreg):
        if o['stamps']: a(f's_mov_b32 s{64+2*slot+half}, s{sreg}')
    sX, sK, sV, sWQ, sWO, sW1, sW2, sGW, sOUT, sDBG, sWS = 4, 6, 8, 10, 12, 16, 18, 20, 22, 24, 26
    sWSB = 14
    sHKV, sJ, sB, sC = 28, 29, 30, 31
    sT0, sT1, sT2, sT3 = 32, 33, 34, 35
    sWO2 = 36; sKM = 38; sOI = 39
    sSEL = 40; sCHA, sCHB = 44, 45
    sSPIN = 46; sT4 = 47
    sKB, sVB = 48, 50
    sRG, sCT, sU = 52, 53, 54
    sH3 = 55
    sMSK = 56
    sC2 = 59; sF1 = 58; sROT = 63
    sEXW = 60
    sHASF2 = 62
    WS = f's[{sWS}:{sWS+1}]'; WSB = f's[{sWSB}:{sWSB+1}]'
    vL, vN, vKS, vT = 0, 1, 2, 3

    def tag_insert(regs):
        for i, r in enumerate(regs):
            a(f'v_perm_b32 v{r}, v{r}, v{vT}, s{sSEL+i}')
    def chk(base, ca, cb, dst):
        return [f'v_perm_b32 v{ca}, v{base+1}, v{base}, s{sCHA}', f'v_perm_b32 v{cb}, v{base+3}, v{base+2}, s{sCHB}',
                f'v_bitop3_b32 v{dst}, v{ca}, v{cb}, v{vT} bitop3:0x56']
    def tag_check(base, tmp, dst):
        for ln in chk(base, tmp, tmp+1, dst): a(ln)
    def allreduce_rows(op, r, t):
        a(f'v_mov_b32 v{t}, v{r}')
        a(f'v_permlane16_swap_b32 v{t}, v{r}')
        a(f'{op} v{r}, v{r}, v{t}')
        a(f'v_mov_b32 v{t}, v{r}')
        a(f'v_permlane32_swap_b32 v{t}, v{r}')
        a(f'{op} v{r}, v{r}, v{t}')
    def masks(dst, t):
        a(f'''
    v_and_b32 v{t}, 1, v{vL}
    v_cmp_eq_u32 vcc, 1, v{t}
    v_mov_b32 v{t+1}, 0xffff
    v_mov_b32 v{t+2}, 0xffff0000
    v_cndmask_b32 v{t+1}, v{t+1}, v{t+2}, vcc
    v_bfe_u32 v{t+2}, v{vL}, 1, 2
    ''')
        for k in range(4):
            a(f'''
    v_cmp_eq_u32 vcc, {k}, v{t+2}
    v_cndmask_b32 v{dst+k}, 0, v{t+1}, vcc
    ''')
    def publish(vm, vaddr, data, name):
        if o['fast']:
            a(f'global_store_dwordx4 v{vaddr}, v[{data}:{data+3}], {WS}'); vm.issue(name + '_a')
        a(f'global_store_dwordx4 v{vaddr}, v[{data}:{data+3}], {WSB} sc1'); vm.issue(name)
    def retry_loop(label, loads, checks, bad, okl):
        a(f'''
{label}:
    s_sub_u32 s{sSPIN}, s{sSPIN}, 1
    s_cmp_eq_u32 s{sSPIN}, 0
    s_cbranch_scc1 {okl}
    s_mov_b64 exec, vcc
    ''')
        if o['fast']:
            a(f'''
    s_and_b32 s{sT0}, s{sSPIN}, {o['aevery']-1}
    s_cmp_eq_u32 s{sT0}, 0
    s_cbranch_scc1 {label}_b
    ''')
            loads(WS)
            a(f's_branch {label}_c\n{label}_b:')
        loads(WSB)
        a(f'{label}_c:\ns_waitcnt vmcnt(0)')
        checks()
        a(f'''
    v_cmp_ne_u32 vcc, 0, v{bad}
    s_cbranch_vccnz {label}
    ''')
    FIRST = WS if o['fast'] else WSB

    stamp('start')
    a(f'''
    s_cmp_ge_u32 s2, 256
    s_cbranch_scc1 L_end
    s_load_dwordx16 s[4:19], s[0:1], 0
    s_load_dwordx8 s[20:27], s[0:1], 64
    v_lshrrev_b32 v4, 6, v0
    v_and_b32 v{vL}, 63, v0
    v_readfirstlane_b32 s3, v4
    v_and_b32 v{vN}, 15, v{vL}
    v_lshrrev_b32 v{vKS}, 4, v{vL}
    s_and_b32 s{sHKV}, s2, 7
    s_lshr_b32 s{sJ}, s2, 3
    s_lshr_b32 s{sB}, s{sJ}, 4
    s_and_b32 s{sC}, s{sJ}, 15
    s_lshr_b32 s{sRG}, s{sJ}, 2
    s_and_b32 s{sCT}, s{sJ}, 3
    s_mov_b32 s{sSEL}, 0x07060500
    s_mov_b32 s{sSEL+1}, 0x07060501
    s_mov_b32 s{sSEL+2}, 0x07060502
    s_mov_b32 s{sSEL+3}, 0x07060503
    s_mov_b32 s{sCHA}, 0x0c0c0400
    s_mov_b32 s{sCHB}, 0x04000c0c
    s_mov_b32 s{sSPIN}, {o['spin']}
    s_cmp_eq_u32 s{sCT}, 3
    s_cselect_b32 s{sEXW}, 0x00ff00ff, -1
    s_mov_b32 s{sEXW+1}, s{sEXW}
    s_cmp_eq_u32 s3, 4
    s_cbranch_scc1 L_aux
    ''')

    vm = VM(a)
    vM = 4
    vVoff, vWoff, vQrd, vKrd, vQpoll, vQw = 8, 9, 10, 11, 12, 13
    vOw, vOr, vOP, vAd, vFw, vFr, vFP, vH3, vOut = 14, 15, 16, 17, 18, 19, 20, 21, 22
    vV = 24
    vWO = 56
    vKop = 72
    vQop = 104
    vPA = 72
    vAcc = 88
    vO = 96
    vS = 136
    vTmp = 140
    vMXa, vGf = 160, 161
    NV = 168
    vKoff = vQop
    a(f'''
    v_lshrrev_b32 v{vTmp}, 5, v{vL}                 ; hi
    v_and_b32 v{vTmp+1}, 31, v{vL}                  ; u
    v_xor_b32 v{vTmp+2}, v{vTmp+1}, v{vTmp}
    v_lshlrev_b32 v{vTmp+2}, 4, v{vTmp+2}
    v_lshl_add_u32 v{vKoff}, v{vTmp}, 9, v{vTmp+2}
    v_lshlrev_b32 v{vTmp+3}, 4, v{vN}               ; n*16
    v_lshl_add_u32 v{vVoff}, v{vKS}, 11, v{vTmp+3}
    s_lshl_b32 s{sT0}, s3, 13                       ; w*8192
    s_lshl_b32 s{sT1}, s{sB}, 3
    s_add_u32 s{sT1}, s{sT1}, s{sHKV}
    s_lshl_b32 s{sT1}, s{sT1}, 21
    s_add_u32 s{sT1}, s{sT1}, 1572864
    s_lshl_b32 s{sT2}, s{sC}, 15
    s_add_u32 s{sT1}, s{sT1}, s{sT2}
    s_add_u32 s{sT1}, s{sT1}, s{sT0}
    s_mov_b32 s{sC2}, {hex(f2u(LOG2E/16.0))}
    v_mov_b32 v{vTmp+4}, 0
    ''')
    a({'hkv+c': f's_add_u32 s{sROT}, s{sHKV}, s{sC}\ns_and_b32 s{sROT}, s{sROT}, 7',
       'c': f's_and_b32 s{sROT}, s{sC}, 7',
       'hkvb': f's_lshl_b32 s{sROT}, s{sB}, 2\ns_xor_b32 s{sROT}, s{sROT}, s{sHKV}',
       None: f's_mov_b32 s{sROT}, 0'}[o['rot']])
    a(f'''
    s_mul_i32 s{sT2}, s{sROT}, {(1 << 10) | (1 << 5)}
    v_xor_b32 v{vKoff}, s{sT2}, v{vKoff}
    s_lshl_b32 s{sT2}, s{sROT}, 8
    v_xor_b32 v{vVoff}, s{sT2}, v{vVoff}
    s_lshl_b32 s{sT2}, s{sROT}, 10
    s_xor_b32 s{sKM}, s{sT0}, s{sT2}
    s_waitcnt lgkmcnt(0)
    ''')
    stamp('karg')
    a(f'''
    global_load_dword v{vT}, v{vTmp+4}, {WS} sc1
    s_add_u32 s{sKB}, s{sK}, s{sT1}
    s_addc_u32 s{sKB+1}, s{sK+1}, 0
    s_add_u32 s{sVB}, s{sV}, s{sT1}
    s_addc_u32 s{sVB+1}, s{sV+1}, 0
    s_add_u32 s{sWSB}, s{sWS}, {WS_ALT}
    s_addc_u32 s{sWSB+1}, s{sWS+1}, 0
    ''')
    vm.issue('E')
    if o['b1']:
        a('s_barrier')
    W = o['W']
    def kload(m):
        t = vTmp + 11 + (m & 1)
        a(f's_xor_b32 m0, s{sKM}, {m << 10}')
        a(f'v_xor_b32 v{t}, {(m << 10) | (m << 5)}, v{vKoff}')
        a(f'global_load_lds_dwordx4 v{t}, s[{sKB}:{sKB+1}]{NT("k")}')
        vm.issue(f'K{m}')
    def vload(i):
        t = vTmp + 11 + (i & 1)
        a(f'v_xor_b32 v{t}, {i << 8}, v{vVoff}')
        a(f'global_load_dwordx4 v[{vV+4*i}:{vV+4*i+3}], v{t}, s[{sVB}:{sVB+1}]{NT("v")}')
        vm.issue(f'V{i}')
    vP = vTmp
    npre = o['npre']
    elems = [('K', m) for m in range(8)] + [('V', i) for i in range(npre)] + [('P', 0)] + [('V', i) for i in range(npre, 8)]
    def issue(e):
        k, i = e
        if k == 'K': kload(i)
        elif k == 'V': vload(i)
        else:
            a(f'global_load_dwordx4 v[{vP}:{vP+3}], v{vQpoll}, {FIRST} sc1'); vm.issue('P')
    for e in elems[:W]: issue(e)
    t5, t6, t7 = vTmp+5, vTmp+6, vTmp+7
    a(f'''
    v_mul_u32_u24 v{vWoff}, 896, v{vKS}
    v_add_u32 v{vWoff}, v{vWoff}, v{vTmp+3}
    s_lshr_b32 s{sT1}, s{sROT}, 1
    v_xor_b32 v{t6}, s{sT1}, v{vN}
    v_xor_b32 v{t5}, v{vKS}, v{t6}
    v_lshlrev_b32 v{t5}, 4, v{t5}
    v_lshl_add_u32 v{vKrd}, v{t6}, 9, v{t5}
    v_add_u32 v{vKrd}, s{sT0}, v{vKrd}
    v_lshrrev_b32 v{t5}, 3, v{vN}
    v_lshlrev_b32 v{t6}, 9, v{t5}
    v_lshl_add_u32 v{vQrd}, v{vKS}, 4, v{t6}
    s_lshl_b32 s{sT1}, s3, 2
    v_lshlrev_b32 v{vMXa}, 4, v{t5}
    v_add_u32 v{vMXa}, s{sT1}, v{vMXa}              ; head*16 + w*4
    ''')
    masks(vM, t6)
    a(f'''
    s_lshl_b32 s{sT1}, s{sHKV}, 13
    s_lshl_b32 s{sT2}, s{sB}, 11
    s_add_u32 s{sT1}, s{sT1}, s{sT2}
    s_lshl_b32 s{sT2}, s3, 9
    s_add_u32 s{sT1}, s{sT1}, s{sT2}
    s_add_u32 s{sT1}, s{sT1}, {WS_QP}
    v_lshlrev_b32 v{vQpoll}, 12, v{vTmp}
    v_lshl_add_u32 v{vQpoll}, v{vTmp+1}, 4, v{vQpoll}
    v_add_u32 v{vQpoll}, s{sT1}, v{vQpoll}
    s_lshl_b32 s{sT1}, s3, 8
    v_lshlrev_b32 v{vQw}, 3, v{vTmp+1}
    v_lshl_add_u32 v{vQw}, v{vTmp}, 2, v{vQw}
    v_add_u32 v{vQw}, s{sT1}, v{vQw}
    v_and_b32 v{t6}, 1, v{vKS}
    v_lshlrev_b32 v{t6}, 4, v{t6}
    v_lshl_add_u32 v{t6}, v{vN}, 5, v{t6}
    v_add_u32 v{t6}, s{sT0}, v{t6}
    v_lshl_add_u32 v{vOw}, v{vTmp}, 10, v{t6}
    s_and_b32 s{sT1}, s{sROT}, 1
    s_lshl_b32 s{sT1}, s{sT1}, 9
    v_xor_b32 v{vOw}, s{sT1}, v{vOw}
    v_lshl_add_u32 v{vFw}, v{vTmp}, 9, v{t6}
    ; publish role of wave w: h = w>>1, dblk = 8*(w&1) + (l>>3), slot = l&7
    s_lshr_b32 s{sT1}, s3, 1                        ; h
    s_and_b32 s{sT2}, s3, 1
    v_lshrrev_b32 v{t6}, 3, v{vL}                   ; l>>3
    s_lshl_b32 s{sT3}, s{sT2}, 3
    v_add_u32 v{t6}, s{sT3}, v{t6}                  ; dblk
    v_and_b32 v{t7}, 3, v{vL}                       ; slot&3
    v_lshlrev_b32 v{vOr}, 6, v{t6}
    v_lshl_add_u32 v{vOr}, v{t7}, 4, v{vOr}
    s_lshl_b32 s{sT3}, s{sT1}, 10
    v_add_u32 v{vOr}, s{sT3}, v{vOr}
    s_lshl_b32 s{sT3}, s{sHKV}, 1
    s_add_u32 s{sT3}, s{sT3}, s{sT1}
    s_lshl_b32 s{sT3}, s{sT3}, 16
    s_lshl_b32 s{sT4}, s{sB}, 11
    s_add_u32 s{sT3}, s{sT3}, s{sT4}
    s_lshl_b32 s{sT4}, s{sC}, 7
    s_add_u32 s{sT3}, s{sT3}, s{sT4}
    s_add_u32 s{sT3}, s{sT3}, {WS_OP}
    v_lshlrev_b32 v{vOP}, 12, v{t6}
    v_and_b32 v{t7}, 7, v{vL}                       ; slot
    v_lshl_add_u32 v{vOP}, v{t7}, 4, v{vOP}
    v_add_u32 v{vOP}, s{sT3}, v{vOP}
    ; H2 address
    s_lshr_b32 s{sT1}, s{sRG}, 2
    s_lshl_b32 s{sT2}, s{sHKV}, 1
    s_add_u32 s{sT1}, s{sT1}, s{sT2}
    s_and_b32 s{sT2}, s{sRG}, 3
    s_lshl_b32 s{sT2}, s{sT2}, 2
    s_add_u32 s{sT2}, s{sT2}, s3
    s_lshl_b32 s{sT3}, s{sT1}, 16
    s_lshl_b32 s{sT2}, s{sT2}, 12
    s_add_u32 s{sT3}, s{sT3}, s{sT2}
    s_add_u32 s{sT3}, s{sT3}, {WS_OP}
    v_lshlrev_b32 v{vAd}, 11, v{t5}
    v_lshl_add_u32 v{vAd}, v{vKS}, 9, v{vAd}
    v_lshl_add_u32 v{vAd}, v{t7}, 4, v{vAd}
    v_add_u32 v{vAd}, s{sT3}, v{vAd}
    v_lshlrev_b32 v{vFr}, 9, v{vTmp}
    v_lshl_add_u32 v{vFr}, v{vTmp+1}, 4, v{vFr}
    s_lshl_b32 s{sT1}, s{sHKV}, 3
    s_add_u32 s{sT1}, s{sT1}, s{sRG}
    s_lshl_b32 s{sT1}, s{sT1}, 12
    s_lshl_b32 s{sT2}, s{sCT}, 10
    s_add_u32 s{sT1}, s{sT1}, s{sT2}
    s_add_u32 s{sT1}, s{sT1}, {WS_FP}
    v_lshlrev_b32 v{vFP}, 4, v{vL}
    v_add_u32 v{vFP}, s{sT1}, v{vFP}
    ; final-stage role: line lam = (j>>3)*8 + xcd (valid < 28), member = j&7 ; b3 = lam/14, r = lam%14 ; ct3 = r>>2 (r<12) or 3 ; m = r&3 or r-12
    s_lshr_b32 s{sT1}, s{sJ}, 3
    s_lshl_b32 s{sT1}, s{sT1}, 3
    s_add_u32 s{sH3}, s{sT1}, s{sHKV}               ; lam
    s_cmp_ge_u32 s{sH3}, 14
    s_cselect_b32 s{sT2}, 1, 0                      ; b3
    s_mul_i32 s{sT3}, s{sT2}, 14
    s_sub_u32 s{sT3}, s{sH3}, s{sT3}
    s_lshl_b32 s{sT4}, s{sT3}, 3
    s_and_b32 s{sT1}, s{sJ}, 7
    s_add_u32 s{sT4}, s{sT4}, s{sT1}
    s_lshr_b32 s{sT1}, s{sT4}, 5                    ; ct3
    s_lshl_b32 s{sT1}, s{sT1}, 10
    s_and_b32 s{sT3}, s{sT4}, 31
    s_lshl_b32 s{sT3}, s{sT3}, 4
    s_add_u32 s{sT1}, s{sT1}, s{sT3}
    s_lshl_b32 s{sT3}, s{sT2}, 9
    s_add_u32 s{sT1}, s{sT1}, s{sT3}
    s_add_u32 s{sT1}, s{sT1}, {WS_FP}
    v_lshlrev_b32 v{vH3}, 12, v{vL}
    v_add_u32 v{vH3}, s{sT1}, v{vH3}
    ; out byte offset: b3*896 + G*8 + r*2
    s_mul_i32 s{sT2}, s{sT2}, 896
    s_lshl_b32 s{sT4}, s{sT4}, 3
    s_add_u32 s{sT2}, s{sT2}, s{sT4}
    v_lshlrev_b32 v{vOut}, 1, v{vKS}
    v_add_u32 v{vOut}, s{sT2}, v{vOut}
    s_lshl_b32 s{sT1}, s{sHKV}, 9
    s_lshl_b32 s{sT2}, s{sRG}, 6
    s_add_u32 s{sT1}, s{sT1}, s{sT2}
    s_lshl_b32 s{sT2}, s3, 4
    s_add_u32 s{sT1}, s{sT1}, s{sT2}
    s_mul_i32 s{sT1}, s{sT1}, 896
    s_lshl_b32 s{sT2}, s{sCT}, 8
    s_add_u32 s{sT1}, s{sT1}, s{sT2}
    s_add_u32 s{sWO}, s{sWO}, s{sT1}
    s_addc_u32 s{sWO+1}, s{sWO+1}, 0
    s_add_u32 s{sWO2}, s{sWO}, 7168
    s_addc_u32 s{sWO2+1}, s{sWO+1}, 0
    ''')
    tagdone = [False]
    def kop_reads():
        for s in range(8):
            t = vTmp + 4 + (s & 1)
            a(f'v_xor_b32 v{t}, {s << 6}, v{vKrd}')
            a(f'ds_read_b128 v[{vKop+4*s}:{vKop+4*s+3}], v{t}')
    kdone = False
    for i in range(W, len(elems)):
        a(f's_waitcnt vmcnt({W-1})')
        if not tagdone[0]:
            a(f'v_add_u32 v{vT}, 0x01010101, v{vT}'); tagdone[0] = True
            issue(elems[i])
            if o['fast'] and o['prewrite']:
                for k in range(4): a(f'v_xor_b32 v{vO+k}, 0x80808080, v{vT}')
                for k in range(4): a(f'v_perm_b32 v{vO+k}, v{vO+k}, v{vO+k}, s{sSEL+k}')
                a(f'global_store_dwordx4 v{vOP}, v[{vO}:{vO+3}], {WS}'); vm.issue('pw')
            continue
        issue(elems[i])
        if i - W >= 7 and not kdone:
            stamp('kdone'); kop_reads(); kdone = True
    if not tagdone[0]:
        vm.wait('E'); a(f'v_add_u32 v{vT}, 0x01010101, v{vT}')
    if not kdone:
        vm.wait('K7'); stamp('kdone'); kop_reads()
    vm.wait('P')
    a('L_h1_chk:')
    tag_check(vP, vTmp+4, vTmp+6)
    a(f'''
    v_cmp_ne_u32 vcc, 0, v{vTmp+6}
    s_cbranch_vccz L_h1_ok
    ''')
    retry_loop('L_h1_r', lambda base: a(f'global_load_dwordx4 v[{vP}:{vP+3}], v{vQpoll}, {base} sc1'),
               lambda: tag_check(vP, vTmp+4, vTmp+6), vTmp+6, 'L_h1_ok')
    a('L_h1_ok:\ns_mov_b64 exec, -1')
    stamp('qpoll'); note(14, 0, sSPIN)
    a(f'''
    v_permlane32_swap_b32 v{vP}, v{vP+2}
    v_permlane32_swap_b32 v{vP+1}, v{vP+3}
    v_add_f32 v{vP}, v{vP}, v{vP+2}
    v_add_f32 v{vP+1}, v{vP+1}, v{vP+3}
    v_cvt_pk_bf16_f32 v{vP}, v{vP}, v{vP+1}
    ds_write_b32 v{vQw}, v{vP} offset:{Q_LDS}
    s_waitcnt lgkmcnt(0)
    s_barrier
    ''')
    stamp('qready')
    wo_done = [False]*4
    def wo_at(where):
        for g in range(4):
            if o['wo_at'][g] == where and not wo_done[g]:
                base = sWO if g < 2 else sWO2
                off = ' offset:3584' if g & 1 else ''
                a(f'''
    s_mov_b64 exec, s[{sEXW}:{sEXW+1}]
    global_load_dwordx4 v[{vWO+4*g}:{vWO+4*g+3}], v{vWoff}, s[{base}:{base+1}]{off}{NT("wo")}
    s_mov_b64 exec, -1
    ''')
                vm.issue(f'wo{g}'); wo_done[g] = True
    for s in range(8):
        a(f'ds_read_b128 v[{vQop+4*s}:{vQop+4*s+3}], v{vQrd} offset:{Q_LDS + s*64}')
    wo_at('bq')
    for s in range(8):
        if not o['stamps']: a(f's_waitcnt lgkmcnt({7 - s})')
        elif s == 0: a('s_waitcnt lgkmcnt(0)')
        c = '0' if s == 0 else f'v[{vS}:{vS+3}]'
        a(f'v_mfma_f32_16x16x32_bf16 v[{vS}:{vS+3}], v[{vKop+4*s}:{vKop+4*s+3}], v[{vQop+4*s}:{vQop+4*s+3}], {c}')
    wo_at('qk')
    s0, s1, s2_, s3_ = vS, vS+1, vS+2, vS+3
    if o['round_scores']:
        a(f'''
    v_cvt_pk_bf16_f32 v{vTmp}, v{s0}, v{s1}
    v_cvt_pk_bf16_f32 v{vTmp+1}, v{s2_}, v{s3_}
    v_lshlrev_b32 v{s0}, 16, v{vTmp}
    v_and_b32 v{s1}, 0xffff0000, v{vTmp}
    v_lshlrev_b32 v{s2_}, 16, v{vTmp+1}
    v_and_b32 v{s3_}, 0xffff0000, v{vTmp+1}
    ''')
    vMx, vLs = vTmp+2, vTmp+3
    a(f'''
    v_max3_f32 v{vMx}, v{s0}, v{s1}, v{s2_}
    v_max_f32 v{vMx}, v{vMx}, v{s3_}
    ''')
    allreduce_rows('v_max_f32', vMx, vTmp)
    a(f'''
    s_mov_b32 exec_lo, 0x101
    s_mov_b32 exec_hi, 0
    ds_write_b32 v{vMXa}, v{vMx} offset:{MX_LDS}
    s_mov_b64 exec, -1
    v_and_b32 v{vTmp}, 16, v{vMXa}                  ; head*16
    s_waitcnt lgkmcnt(0)
    s_barrier
    ds_read_b128 v[{vTmp+4}:{vTmp+7}], v{vTmp} offset:{MX_LDS}
    ''')
    wo_at('b3')
    a(f'''
    s_waitcnt lgkmcnt(0)
    v_max3_f32 v{vMx}, v{vTmp+4}, v{vTmp+5}, v{vTmp+6}
    v_max_f32 v{vMx}, v{vMx}, v{vTmp+7}
    v_mul_f32 v{vMx}, s{sC2}, v{vMx}
    v_fma_f32 v{s0}, v{s0}, s{sC2}, -v{vMx}
    v_fma_f32 v{s1}, v{s1}, s{sC2}, -v{vMx}
    v_fma_f32 v{s2_}, v{s2_}, s{sC2}, -v{vMx}
    v_fma_f32 v{s3_}, v{s3_}, s{sC2}, -v{vMx}
    v_exp_f32 v{s0}, v{s0}
    v_exp_f32 v{s1}, v{s1}
    v_exp_f32 v{s2_}, v{s2_}
    v_exp_f32 v{s3_}, v{s3_}
    ''')
    for r in range(4):
        a(f'v_cvt_pk_bf16_f32 v{vTmp+4+r}, v{vS+r}, v{vS+r}')
    a(f'''
    v_add_f32 v{vLs}, v{s0}, v{s1}
    v_add_f32 v{vTmp+8}, v{s2_}, v{s3_}
    v_add_f32 v{vLs}, v{vLs}, v{vTmp+8}
    ''')
    def pa(r):
        for k in range(4):
            a(f'v_and_b32 v{vPA+4*r+k}, v{vTmp+4+r}, v{vM+k}')
    def pv(r):
        for h in range(2):
            c = '0' if r == 0 else f'v[{vAcc+4*h}:{vAcc+4*h+3}]'
            i = r*2+h
            a(f'v_mfma_f32_16x16x32_bf16 v[{vAcc+4*h}:{vAcc+4*h+3}], v[{vPA+4*r}:{vPA+4*r+3}], v[{vV+4*i}:{vV+4*i+3}], {c}')
    for r in range(4): pa(r)
    allreduce_rows('v_add_f32', vLs, vTmp)
    a(f'''
    s_mov_b32 exec_lo, 0x101
    s_mov_b32 exec_hi, 0
    ds_write_b32 v{vMXa}, v{vLs} offset:{LS_LDS}
    s_mov_b64 exec, -1
    ''')
    wo_at('pv')
    a(f'''
    s_lshr_b32 s{sT0}, s3, 1
    s_lshl_b32 s{sT1}, s{sT0}, 3
    v_readlane_b32 s{sT2}, v{vMx}, s{sT1}
    s_lshl_b32 s{sT0}, s{sT0}, 4
    v_mov_b32 v{vTmp+9}, s{sT0}                     ; h*16
    v_lshrrev_b32 v{vTmp+8}, 3, v{vN}
    v_lshlrev_b32 v{vTmp+8}, 2, v{vTmp+8}
    ds_read_b32 v{vGf}, v{vTmp+8} offset:{G_LDS}
    v_and_b32 v{vTmp+10}, 4, v{vL}
    v_cmp_ne_u32 vcc, 0, v{vTmp+10}                 ; slot >= 4
    s_mov_b64 s[{sMSK}:{sMSK+1}], vcc
    ''')
    stamp('qk')
    for r in range(4):
        vm.wait(f'V{2*r+1}')
        if r == 3: stamp('vdone')
        pv(r)
    a(f'''
    v_xor_b32 v{vTmp+11}, 512, v{vOw}
    ds_write_b128 v{vOw}, v[{vAcc}:{vAcc+3}]
    ds_write_b128 v{vTmp+11}, v[{vAcc+4}:{vAcc+7}]
    s_waitcnt lgkmcnt(0)
    s_barrier
    ''')
    stamp('pv')
    for ww in range(4):
        a(f'ds_read_b128 v[{vO+4*ww}:{vO+4*ww+3}], v{vOr} offset:{8192*ww}')
    MS = f's[{sMSK}:{sMSK+1}]'
    a(f'''
    ds_read_b128 v[{vTmp+4}:{vTmp+7}], v{vTmp+9} offset:{LS_LDS}
    v_mov_b32 v{vTmp+10}, s{sT2}
    s_waitcnt lgkmcnt(0)
    v_pk_add_f32 v[{vO}:{vO+1}], v[{vO}:{vO+1}], v[{vO+4}:{vO+5}]
    v_pk_add_f32 v[{vO+2}:{vO+3}], v[{vO+2}:{vO+3}], v[{vO+6}:{vO+7}]
    v_pk_add_f32 v[{vTmp+4}:{vTmp+5}], v[{vTmp+4}:{vTmp+5}], v[{vTmp+6}:{vTmp+7}]
    v_pk_add_f32 v[{vO+8}:{vO+9}], v[{vO+8}:{vO+9}], v[{vO+12}:{vO+13}]
    v_pk_add_f32 v[{vO+10}:{vO+11}], v[{vO+10}:{vO+11}], v[{vO+14}:{vO+15}]
    v_add_f32 v{vTmp+4}, v{vTmp+4}, v{vTmp+5}       ; L
    v_pk_add_f32 v[{vO}:{vO+1}], v[{vO}:{vO+1}], v[{vO+8}:{vO+9}]
    v_pk_add_f32 v[{vO+2}:{vO+3}], v[{vO+2}:{vO+3}], v[{vO+10}:{vO+11}]
    v_cndmask_b32 v{vO}, v{vO}, v{vTmp+10}, {MS}
    v_cndmask_b32 v{vO+1}, v{vO+1}, v{vTmp+4}, {MS}
    v_cndmask_b32 v{vO+2}, v{vO+2}, v{vTmp+10}, {MS}
    v_cndmask_b32 v{vO+3}, v{vO+3}, v{vTmp+4}, {MS}
    ''')
    tag_insert([vO, vO+1, vO+2, vO+3])
    publish(vm, vOP, vO, 'opub')
    stamp('opub')
    wo_at('pub')
    if o['o_delay']: vm.wait(o['o_delay'])
    vD = vV
    def h2loads(base):
        for k in range(4):
            a(f'global_load_dwordx4 v[{vD+4*k}:{vD+4*k+3}], v{vAd}, {base} offset:{128*k} sc1')
    h2loads(FIRST)
    for k in range(4): vm.issue(f'D{k}')
    wo_at('poll')
    vm.wait('D3')
    stamp('h2f')
    a('L_h2_comp:')
    t = vTmp
    vMk = vV+16
    vWk = [vV+20, vV+22, vV+24, vV+26]
    vMxx, vLp, vX, tt = t, t+1, t+2, t+6
    vBad = t+7
    c = [t+8, t+9, t+10, t+11]; ca, cb = t+12, t+13
    fill = []
    for k in range(4): fill += chk(vD+4*k, ca, cb, c[k])
    fill += [f'v_or3_b32 v{vBad}, v{c[0]}, v{c[1]}, v{c[2]}', f'v_or_b32 v{vBad}, v{vBad}, v{c[3]}']
    def F(n):
        for _ in range(n):
            if fill: a(fill.pop(0))
    for k in range(4):
        a(f'v_mov_b32_dpp v{vMk+k}, v{vD+4*k} row_shl:4 row_mask:0xf bank_mask:0xf bound_ctrl:0')
    a(f'v_max3_f32 v{vMxx}, v{vMk}, v{vMk+1}, v{vMk+2}')
    a(f'v_max_f32 v{vMxx}, v{vMxx}, v{vMk+3}')
    a(f'v_mov_b32 v{tt}, v{vMxx}')
    F(2)
    a(f'v_permlane16_swap_b32 v{vMxx}, v{tt}')
    a(f'v_max_f32 v{vMxx}, v{vMxx}, v{tt}')
    a(f'v_mov_b32 v{tt}, v{vMxx}')
    F(2)
    a(f'v_permlane32_swap_b32 v{vMxx}, v{tt}')
    a(f'v_max_f32 v{vMxx}, v{vMxx}, v{tt}')
    for k in range(4): a(f'v_sub_f32 v{vWk[k]}, v{vMk+k}, v{vMxx}')
    for k in range(4): a(f'v_exp_f32 v{vWk[k]}, v{vWk[k]}')
    F(32)
    a(f'''
    v_cmp_ne_u32 vcc, 0, v{vBad}
    s_cbranch_vccz L_h2_ok
    ''')
    def h2checks():
        for k in range(4):
            for ln in chk(vD+4*k, ca, cb, c[k]): a(ln)
        a(f'v_or3_b32 v{vBad}, v{c[0]}, v{c[1]}, v{c[2]}\nv_or_b32 v{vBad}, v{vBad}, v{c[3]}')
    retry_loop('L_h2_r', h2loads, h2checks, vBad, 'L_h2_ok')
    a('''
    s_mov_b64 exec, -1
    s_branch L_h2_comp
L_h2_ok:
    s_mov_b64 exec, -1
    ''')
    stamp('h2'); note(14, 1, sSPIN)
    a(f'v_mul_f32_dpp v{vLp}, v{vD+1}, v{vWk[0]} row_shl:4 row_mask:0xf bank_mask:0xf bound_ctrl:0')
    a(f'v_pk_mul_f32 v[{vX}:{vX+1}], v[{vD}:{vD+1}], v[{vWk[0]}:{vWk[0]+1}] op_sel_hi:[1,0]')
    a(f'v_pk_mul_f32 v[{vX+2}:{vX+3}], v[{vD+2}:{vD+3}], v[{vWk[0]}:{vWk[0]+1}] op_sel_hi:[1,0]')
    for k in range(1, 4):
        a(f'v_fmac_f32_dpp v{vLp}, v{vD+4*k+1}, v{vWk[k]} row_shl:4 row_mask:0xf bank_mask:0xf bound_ctrl:0')
        a(f'v_pk_fma_f32 v[{vX}:{vX+1}], v[{vD+4*k}:{vD+4*k+1}], v[{vWk[k]}:{vWk[k]+1}], v[{vX}:{vX+1}] op_sel_hi:[1,0,1]')
        a(f'v_pk_fma_f32 v[{vX+2}:{vX+3}], v[{vD+4*k+2}:{vD+4*k+3}], v[{vWk[k]}:{vWk[k]+1}], v[{vX+2}:{vX+3}] op_sel_hi:[1,0,1]')
    a(f'''
    v_mov_b32 v{tt}, v{vLp}
    v_permlane32_swap_b32 v{vX}, v{vX+2}
    v_permlane32_swap_b32 v{vX+1}, v{vX+3}
    v_permlane16_swap_b32 v{vLp}, v{tt}
    v_add_f32 v{vX}, v{vX}, v{vX+2}
    v_add_f32 v{vX+1}, v{vX+1}, v{vX+3}
    v_add_f32 v{vLp}, v{vLp}, v{tt}
    v_mov_b32 v{tt}, v{vLp}
    v_permlane16_swap_b32 v{vX}, v{vX+1}
    v_permlane32_swap_b32 v{vLp}, v{tt}
    v_add_f32 v{vX}, v{vX}, v{vX+1}
    v_add_f32 v{vLp}, v{vLp}, v{tt}
    v_rcp_f32 v{vLp}, v{vLp}
    v_mul_f32 v{vX}, v{vX}, v{vGf}
    v_mul_f32 v{vX}, v{vX}, v{vLp}
    v_cvt_pk_bf16_f32 v{vX}, v{vX}, v{vX}
    v_mov_b32_dpp v{vX}, v{vX} row_shr:4 row_mask:0xf bank_mask:0xa
    ''')
    vAo = vPA
    for g in range(4):
        for k in range(4):
            a(f'v_and_b32_dpp v{vAo+4*g+k}, v{vX}, v{vM+k} quad_perm:[{g},{g},{g},{g}] row_mask:0xf bank_mask:0xf')
    for g in range(4):
        vm.wait(f'wo{g}')
        cc = '0' if g == 0 else f'v[{vAcc}:{vAcc+3}]'
        a(f'v_mfma_f32_16x16x32_bf16 v[{vAcc}:{vAcc+3}], v[{vAo+4*g}:{vAo+4*g+3}], v[{vWO+4*g}:{vWO+4*g+3}], {cc}')
    a(f'''
    ds_write_b128 v{vFw}, v[{vAcc}:{vAcc+3}] offset:4096
    s_waitcnt lgkmcnt(0)
    s_barrier
    s_cmp_lg_u32 s3, 0
    s_cbranch_scc1 L_m_done
    ''')
    for ww in range(4):
        a(f'ds_read_b128 v[{vO+4*ww}:{vO+4*ww+3}], v{vFr} offset:{8192*ww+4096}')
    a(f'''
    ds_read_b128 v[{vO+16}:{vO+19}], v{vFr} offset:{F5_LDS}
    s_waitcnt lgkmcnt(0)
    v_pk_add_f32 v[{vO}:{vO+1}], v[{vO}:{vO+1}], v[{vO+4}:{vO+5}]
    v_pk_add_f32 v[{vO+2}:{vO+3}], v[{vO+2}:{vO+3}], v[{vO+6}:{vO+7}]
    v_pk_add_f32 v[{vO+8}:{vO+9}], v[{vO+8}:{vO+9}], v[{vO+12}:{vO+13}]
    v_pk_add_f32 v[{vO+10}:{vO+11}], v[{vO+10}:{vO+11}], v[{vO+14}:{vO+15}]
    v_pk_add_f32 v[{vO}:{vO+1}], v[{vO}:{vO+1}], v[{vO+16}:{vO+17}]
    v_pk_add_f32 v[{vO+2}:{vO+3}], v[{vO+2}:{vO+3}], v[{vO+18}:{vO+19}]
    v_pk_add_f32 v[{vO}:{vO+1}], v[{vO}:{vO+1}], v[{vO+8}:{vO+9}]
    v_pk_add_f32 v[{vO+2}:{vO+3}], v[{vO+2}:{vO+3}], v[{vO+10}:{vO+11}]
    ''')
    tag_insert([vO, vO+1, vO+2, vO+3])
    a(f'global_store_dwordx4 v{vFP}, v[{vO}:{vO+3}], {WS} sc1')
    stamp('fpub')
    vF = vV
    a(f'''
    s_cmp_ge_u32 s{sH3}, 28
    s_cbranch_scc1 L_m_done
    s_waitcnt vmcnt(0)
L_h3_loop:
    global_load_dwordx4 v[{vF}:{vF+3}], v{vH3}, {WS} sc1
    s_waitcnt vmcnt(0)
    ''')
    tag_check(vF, vTmp+2, vTmp+4)
    a(f'''
    v_cmp_ne_u32 vcc, 0, v{vTmp+4}
    s_cbranch_vccz L_h3_ok
    s_mov_b64 exec, vcc
    s_sub_u32 s{sSPIN}, s{sSPIN}, 1
    s_cmp_lg_u32 s{sSPIN}, 0
    s_cbranch_scc1 L_h3_loop
L_h3_ok:
    s_mov_b64 exec, -1
    ''')
    stamp('h3'); note(15, 0, sSPIN)
    a(f'''
    v_permlane32_swap_b32 v{vF}, v{vF+2}
    v_permlane32_swap_b32 v{vF+1}, v{vF+3}
    v_add_f32 v{vF}, v{vF}, v{vF+2}
    v_add_f32 v{vF+1}, v{vF+1}, v{vF+3}
    v_permlane16_swap_b32 v{vF}, v{vF+1}
    v_add_f32 v{vF}, v{vF}, v{vF+1}
    v_add_f32_dpp v{vF}, v{vF}, v{vF} row_ror:8 row_mask:0xf bank_mask:0xf
    v_add_f32_dpp v{vF}, v{vF}, v{vF} row_ror:4 row_mask:0xf bank_mask:0xf
    v_add_f32_dpp v{vF}, v{vF}, v{vF} row_ror:2 row_mask:0xf bank_mask:0xf
    v_add_f32_dpp v{vF}, v{vF}, v{vF} row_ror:1 row_mask:0xf bank_mask:0xf
    v_cvt_pk_bf16_f32 v{vF}, v{vF}, v{vF}
    s_mov_b32 exec_lo, 0x00010001
    s_mov_b32 exec_hi, 0x00010001
    global_store_short v{vOut}, v{vF}, s[{sOUT}:{sOUT+1}]
    s_cmp_lg_u32 s2, 0
    s_cbranch_scc1 L_m_done
    v_mov_b32 v{vTmp}, 0
    s_mov_b64 exec, 1
    global_store_dword v{vTmp}, v{vT}, {WS} sc1
L_m_done:
    s_mov_b64 exec, -1
    ''')
    stamp('end')
    a('s_branch L_fin')

    a('L_aux:')
    vm = VM(a)
    if o['prio']:
        a('s_setprio 3')
    vA16, vWq, vTr, vXr = 4, 5, 6, 7
    vXB = 8
    vWA = 36
    vD0, vD1 = 68, 72
    vt = 76
    aM = 96
    aXA = 100
    aW1 = 128
    aW1off, aHP, aQP, aXd, aW2off, aAh, aFw = 156, 157, 158, 159, 160, 161, 162
    aW2 = 8
    aH = 40
    aA = 56
    a(f'''
    v_lshlrev_b32 v{vA16}, 4, v{vL}
    v_lshrrev_b32 v{vt}, 2, v{vL}
    v_and_b32 v{vt+1}, 3, v{vL}
    v_lshlrev_b32 v{vt+1}, 4, v{vt+1}
    v_lshl_add_u32 v{vWq}, v{vt}, 13, v{vt+1}
    s_and_b32 s{sT0}, s{sJ}, 1                      ; rh
    s_lshr_b32 s{sT1}, s{sJ}, 1                     ; ct32
    s_mul_i32 s{sT2}, s{sT0}, {224*8192}
    s_lshl_b32 s{sT3}, s{sHKV}, 10
    s_add_u32 s{sT2}, s{sT2}, s{sT3}
    s_lshl_b32 s{sT3}, s{sT1}, 6
    s_add_u32 s{sT2}, s{sT2}, s{sT3}
    v_mov_b32 v{vt+2}, 0
    s_waitcnt lgkmcnt(0)
    ''')
    stamp('karg')
    a(f'''
    s_add_u32 s{sWQ}, s{sWQ}, s{sT2}
    s_addc_u32 s{sWQ+1}, s{sWQ+1}, 0
    global_load_dword v{vT}, v{vt+2}, {WS} sc1
    s_mov_b32 m0, {X_LDS}
    s_add_u32 s{sWSB}, s{sWS}, {WS_ALT}
    global_load_lds_dwordx4 v{vA16}, s[{sX}:{sX+1}]
    s_addc_u32 s{sWSB+1}, s{sWS+1}, 0
    s_mov_b32 exec_lo, -1
    s_mov_b32 exec_hi, 0x0000ffff
    global_load_lds_dwordx4 v{vA16}, s[{sX}:{sX+1}] offset:1024
    s_mov_b32 m0, {GW_LDS}
    s_mov_b32 exec_hi, 0x00ffffff
    global_load_lds_dwordx4 v{vA16}, s[{sGW}:{sGW+1}]
    s_mov_b64 exec, -1
    ''')
    for n in ('E', 'x0', 'x1', 'gw'): vm.issue(n)
    for s in range(14):
        a(f's_mov_b32 m0, {WQ_LDS + s*1024}')
        if s > 0:
            a(f's_add_u32 s{sWQ}, s{sWQ}, {16*8192}\ns_addc_u32 s{sWQ+1}, s{sWQ+1}, 0')
        else:
            a('s_nop 0')
        a(f'global_load_lds_dwordx4 v{vWq}, s[{sWQ}:{sWQ+1}]{NT("wq")}')
        vm.issue(f'wq{s}')
    if o['b1']:
        a('s_barrier')
    a(f'''
    v_lshrrev_b32 v{vt}, 2, v{vN}
    v_lshlrev_b32 v{vt}, 6, v{vt}
    v_and_b32 v{vt+1}, 3, v{vN}
    v_lshl_add_u32 v{vt}, v{vt+1}, 3, v{vt}
    v_lshl_add_u32 v{vTr}, v{vKS}, 9, v{vt}
    v_lshrrev_b32 v{vt+3}, 3, v{vN}                 ; b = n>>3
    v_mul_u32_u24 v{vt}, 896, v{vt+3}
    v_lshl_add_u32 v{vXr}, v{vKS}, 4, v{vt}
    s_mul_i32 s{sT2}, s{sT0}, 448
    v_add_u32 v{vXr}, s{sT2}, v{vXr}
    s_lshl_b32 s{sT2}, s{sHKV}, 1
    s_add_u32 s{sT2}, s{sT2}, s{sT0}
    s_lshl_b32 s{sT2}, s{sT2}, 12
    s_lshl_b32 s{sT3}, s{sT1}, 7
    s_add_u32 s{sT2}, s{sT2}, s{sT3}
    s_add_u32 s{sT2}, s{sT2}, {WS_QP}
    v_lshlrev_b32 v{aQP}, 11, v{vt+3}
    v_and_b32 v{vt+1}, 1, v{vL}
    v_lshl_add_u32 v{aQP}, v{vt+1}, 6, v{aQP}
    v_lshl_add_u32 v{aQP}, v{vKS}, 4, v{aQP}
    v_add_u32 v{aQP}, s{sT2}, v{aQP}
    ''')
    masks(aM, vt+4)
    a(f'''
    s_lshl_b32 s{sT2}, s{sHKV}, 1
    s_add_u32 s{sT2}, s{sT2}, s{sB}                 ; 2*xcd + (j>>4)
    s_add_u32 s{sT3}, s{sHKV}, 6
    s_cmp_lt_u32 s{sHKV}, 6
    s_cselect_b32 s{sT3}, s{sT2}, s{sT3}            ; ct128
    s_cselect_b32 s{sF1}, 1, 0
    s_cmp_lt_u32 s{sJ}, 16
    s_cselect_b32 s{sF1}, 1, s{sF1}
    s_mul_i32 s{sT4}, s{sC}, 28                     ; r0 = 28*pi
    s_mul_i32 s{sU}, s{sT4}, 3584
    s_lshl_b32 s{sOI}, s{sT3}, 8
    s_add_u32 s{sU}, s{sU}, s{sOI}
    s_add_u32 s{sW1}, s{sW1}, s{sU}
    s_addc_u32 s{sW1+1}, s{sW1+1}, 0
    v_mul_u32_u24 v{aW1off}, 3584, v{vKS}
    v_lshl_add_u32 v{aW1off}, v{vN}, 4, v{aW1off}
    s_mul_i32 s{sU}, s{sC}, 14336
    s_lshl_b32 s{sOI}, s{sT3}, 9
    s_add_u32 s{sU}, s{sU}, s{sOI}
    s_add_u32 s{sU}, s{sU}, {WS_HP}
    v_lshrrev_b32 v{vt+7}, 5, v{vL}
    v_mul_u32_u24 v{aHP}, 7168, v{vt+7}
    v_and_b32 v{vt+8}, 31, v{vL}
    v_lshl_add_u32 v{aHP}, v{vt+8}, 4, v{aHP}
    v_add_u32 v{aHP}, s{sU}, v{aHP}
    v_mul_u32_u24 v{aXd}, 896, v{vt+3}
    v_lshl_add_u32 v{aXd}, v{vKS}, 1, v{aXd}
    s_lshl_b32 s{sU}, s{sT4}, 1
    v_add_u32 v{aXd}, s{sU}, v{aXd}
    s_lshl_b32 s{sU}, s{sHKV}, 3
    s_lshl_b32 s{sT2}, s{sHKV}, 2
    s_add_u32 s{sT2}, s{sT2}, 24
    s_cmp_lt_u32 s{sHKV}, 6
    s_cselect_b32 s{sU}, s{sU}, s{sT2}
    s_cselect_b32 s{sHASF2}, 1, 0
    s_add_u32 s{sU}, s{sU}, s{sRG}
    s_cmp_lt_u32 s{sRG}, 4
    s_cselect_b32 s{sHASF2}, 1, s{sHASF2}
    s_min_u32 s{sU}, s{sU}, 55
    s_lshr_b32 s{sT2}, s{sU}, 2
    s_lshl_b32 s{sT2}, s{sT2}, 7
    s_and_b32 s{sT3}, s{sU}, 1
    s_lshl_b32 s{sT3}, s{sT3}, 6
    s_add_u32 s{sT2}, s{sT2}, s{sT3}
    s_bfe_u32 s{sT3}, s{sU}, 0x10001
    s_lshl_b32 s{sT3}, s{sT3}, 2
    s_add_u32 s{sT2}, s{sT2}, s{sT3}
    s_mul_i32 s{sT2}, s{sT2}, 896
    s_lshl_b32 s{sT3}, s{sCT}, 8
    s_add_u32 s{sT2}, s{sT2}, s{sT3}
    s_add_u32 s{sW2}, s{sW2}, s{sT2}
    s_addc_u32 s{sW2+1}, s{sW2+1}, 0
    v_mul_u32_u24 v{aW2off}, 896, v{vKS}
    v_lshl_add_u32 v{aW2off}, v{vN}, 4, v{aW2off}
    v_mul_u32_u24 v{aAh}, 14336, v{vKS}
    v_mul_u32_u24 v{vt+8}, 7168, v{vt+3}
    v_add_u32 v{aAh}, v{aAh}, v{vt+8}
    v_and_b32 v{vt+8}, 7, v{vL}
    v_lshl_add_u32 v{aAh}, v{vt+8}, 4, v{aAh}
    s_lshl_b32 s{sT2}, s{sU}, 7
    s_add_u32 s{sT2}, s{sT2}, {WS_HP}
    v_add_u32 v{aAh}, s{sT2}, v{aAh}
    v_and_b32 v{vt+8}, 1, v{vKS}
    v_lshlrev_b32 v{vt+8}, 4, v{vt+8}
    v_lshl_add_u32 v{vt+8}, v{vN}, 5, v{vt+8}
    v_lshl_add_u32 v{aFw}, v{vt+7}, 9, v{vt+8}
    v_cmp_eq_u32 vcc, 1, v{vt+1}
    ''')
    vm.wait('gw')
    a(f'v_add_u32 v{vT}, 0x01010101, v{vT}')
    for s in range(7):
        a(f'ds_read_b128 v[{vXB+4*s}:{vXB+4*s+3}], v{vXr} offset:{X_LDS + 64*s}')
    for s in range(7):
        wa = vWA + 16*(s & 1)
        vm.wait(f'wq{2*s+1}')
        for cg in range(2):
            for hf in range(2):
                a(f'ds_read_b64_tr_b16 v[{wa+8*cg+2*hf}:{wa+8*cg+2*hf+1}], v{vTr} offset:{WQ_LDS + s*2048 + hf*256 + cg*32}')
        a('s_waitcnt lgkmcnt(0)')
        for cg in range(2):
            d = vD0 if cg == 0 else vD1
            c_ = '0' if s == 0 else f'v[{d}:{d+3}]'
            a(f'v_mfma_f32_16x16x32_bf16 v[{d}:{d+3}], v[{wa+8*cg}:{wa+8*cg+3}], v[{vXB+4*s}:{vXB+4*s+3}], {c_}')
    stamp('a_wq')
    for k in range(4):
        a(f'v_cndmask_b32 v{vD0+k}, v{vD0+k}, v{vD1+k}, vcc')
    tag_insert([vD0, vD0+1, vD0+2, vD0+3])
    a('s_mov_b32 exec_lo, 0x03030303\ns_mov_b32 exec_hi, 0x03030303')
    publish(vm, aQP, vD0, 'qpub')
    a('s_mov_b64 exec, -1')
    stamp('kdone')
    if o['fast'] and o['prewrite']:
        a(f'''
    s_cmp_eq_u32 s{sF1}, 0
    s_cbranch_scc1 L_a_nopw
    ''')
        for k in range(4): a(f'v_xor_b32 v{vt+12+k}, 0x80808080, v{vT}')
        for k in range(4): a(f'v_perm_b32 v{vt+12+k}, v{vt+12+k}, v{vt+12+k}, s{sSEL+k}')
        a(f'global_store_dwordx4 v{aHP}, v[{vt+12}:{vt+15}], {WS}')
        a('L_a_nopw:')
    g0 = vXB
    a(f'''
    v_mov_b32 v{vt+8}, 0
    v_mov_b32 v{vt+9}, 0
    s_mov_b32 exec_lo, -1
    s_mov_b32 exec_hi, 0x00ffffff
    ds_read_b128 v[{g0}:{g0+3}], v{vA16} offset:{X_LDS}
    ds_read_b128 v[{g0+4}:{g0+7}], v{vA16} offset:{X_LDS+896}
    ds_read_b128 v[{g0+8}:{g0+11}], v{vA16} offset:{GW_LDS}
    s_waitcnt lgkmcnt(0)
    ''')
    for k in range(4):
        a(f'v_dot2_f32_bf16 v{vt+8}, v{g0+k}, v{g0+8+k}, v{vt+8}')
        a(f'v_dot2_f32_bf16 v{vt+9}, v{g0+4+k}, v{g0+8+k}, v{vt+9}')
    a('s_mov_b64 exec, -1')
    for g in range(7):
        a(f'ds_read_u16 v{g0+12+g}, v{aXd} offset:{X_LDS + 8*g}')
    for n in (8, 4, 2, 1):
        for r in (vt+8, vt+9):
            a(f'v_add_f32_dpp v{r}, v{r}, v{r} row_ror:{n} row_mask:0xf bank_mask:0xf')
    allreduce_rows('v_add_f32', vt+8, vt+10)
    allreduce_rows('v_add_f32', vt+9, vt+10)
    a(f'''
    v_and_b32 v{vt+10}, 1, v{vL}
    v_cmp_eq_u32 vcc, 1, v{vt+10}
    v_cndmask_b32 v{vt+8}, v{vt+8}, v{vt+9}, vcc
    v_cvt_pk_bf16_f32 v{vt+8}, v{vt+8}, v{vt+8}
    v_lshlrev_b32 v{vt+8}, 16, v{vt+8}
    v_mul_f32 v{vt+8}, {hex(f2u(-LOG2E))}, v{vt+8}
    v_exp_f32 v{vt+8}, v{vt+8}
    v_add_f32 v{vt+8}, 1.0, v{vt+8}
    v_rcp_f32 v{vt+8}, v{vt+8}
    v_cvt_pk_bf16_f32 v{vt+8}, v{vt+8}, v{vt+8}
    v_lshlrev_b32 v{vt+8}, 16, v{vt+8}
    v_sub_f32 v{vt+9}, 1.0, v{vt+8}
    v_cvt_pk_bf16_f32 v{vt+9}, v{vt+9}, v{vt+9}
    v_lshlrev_b32 v{vt+9}, 16, v{vt+9}
    v_lshlrev_b32 v{vt+10}, 2, v{vt+10}
    s_mov_b64 exec, 3
    ds_write_b32 v{vt+10}, v{vt+8} offset:{G_LDS}
    s_mov_b64 exec, -1
    v_readlane_b32 s{sT2}, v{vt+9}, 0
    v_readlane_b32 s{sT3}, v{vt+9}, 1
    v_cmp_gt_u32 vcc, 32, v{vL}
    v_mov_b32 v{vt+11}, s{sT3}
    v_mov_b32 v{vt+12}, s{sT2}
    v_cndmask_b32 v{vt+11}, v{vt+11}, v{vt+12}, vcc
    s_waitcnt lgkmcnt(0)
    ''')
    for g in range(7):
        a(f'v_lshl_or_b32 v{g0+12+g}, v{g0+12+g}, 16, v{g0+12+g}')
    for g in range(7):
        for k in range(4):
            a(f'v_and_b32 v{aXA+4*g+k}, v{g0+12+g}, v{aM+k}')
    stamp('qpoll')
    a('s_barrier')
    a(f'''
    s_cmp_eq_u32 s{sF1}, 0
    s_cbranch_scc1 L_a_none
    ''')
    for g in range(7):
        a(f'global_load_dwordx4 v[{aW1+4*g}:{aW1+4*g+3}], v{aW1off}, s[{sW1}:{sW1+1}]{NT("w1")}')
        vm.issue(f'w1_{g}')
        if g < 6:
            a(f's_add_u32 s{sW1}, s{sW1}, {4*3584}\ns_addc_u32 s{sW1+1}, s{sW1+1}, 0')
    def w2loads():
        a(f's_mov_b64 exec, s[{sEXW}:{sEXW+1}]')
        for g in range(8):
            a(f'global_load_dwordx4 v[{aW2+4*g}:{aW2+4*g+3}], v{aW2off}, s[{sW2}:{sW2+1}]{NT("w2")}')
            vm.issue(f'w2_{g}')
            if g < 7:
                a(f's_add_u32 s{sW2}, s{sW2}, {8*896}\ns_addc_u32 s{sW2+1}, s{sW2+1}, 0')
        a('s_mov_b64 exec, -1')
    if o.get('w2_at', 'bq') == 'bq': w2loads()
    a('s_barrier')
    if o.get('w2_at', 'bq') == 'b3': w2loads()
    a('s_barrier')
    vm.wait('w1_6')
    stamp('vdone')
    for g in range(7):
        c_ = '0' if g == 0 else f'v[{vD0}:{vD0+3}]'
        a(f'v_mfma_f32_16x16x32_bf16 v[{vD0}:{vD0+3}], v[{aXA+4*g}:{aXA+4*g+3}], v[{aW1+4*g}:{aW1+4*g+3}], {c_}')
    tag_insert([vD0, vD0+1, vD0+2, vD0+3])
    publish(vm, aHP, vD0, 'hpub')
    stamp('opub')
    if o.get('w2_at', 'bq') == 'pub': w2loads()
    if o['h_delay']: vm.wait(o['h_delay'])
    def hloads(base):
        for k in range(4):
            a(f'v_add_u32 v{vt+12}, {4*k*14336}, v{aAh}\nglobal_load_dwordx4 v[{aH+4*k}:{aH+4*k+3}], v{vt+12}, {base} sc1')
    cc4 = [vt, vt+1, vt+2, vt+3]
    def hchecks():
        for k in range(4):
            for ln in chk(aH+4*k, vt+4, vt+5, cc4[k]): a(ln)
        a(f'v_or3_b32 v{vt}, v{vt}, v{vt+1}, v{vt+2}\nv_or_b32 v{vt}, v{vt}, v{vt+3}')
    hloads(FIRST)
    for k in range(4): vm.issue(f'H{k}')
    vm.wait('H3')
    stamp('h2f')
    hchecks()
    a(f'''
    v_cmp_ne_u32 vcc, 0, v{vt}
    s_cbranch_vccz L_ah_ok
    ''')
    retry_loop('L_ah_r', hloads, hchecks, vt, 'L_ah_ok')
    a('L_ah_ok:\ns_mov_b64 exec, -1')
    stamp('h2'); note(15, 1, sSPIN)
    a(f'''
    v_pk_add_f32 v[{aH}:{aH+1}], v[{aH}:{aH+1}], v[{aH+4}:{aH+5}]
    v_pk_add_f32 v[{aH+2}:{aH+3}], v[{aH+2}:{aH+3}], v[{aH+6}:{aH+7}]
    v_pk_add_f32 v[{aH+8}:{aH+9}], v[{aH+8}:{aH+9}], v[{aH+12}:{aH+13}]
    v_pk_add_f32 v[{aH+10}:{aH+11}], v[{aH+10}:{aH+11}], v[{aH+14}:{aH+15}]
    v_pk_add_f32 v[{aH}:{aH+1}], v[{aH}:{aH+1}], v[{aH+8}:{aH+9}]
    v_pk_add_f32 v[{aH+2}:{aH+3}], v[{aH+2}:{aH+3}], v[{aH+10}:{aH+11}]
    v_permlane32_swap_b32 v{aH}, v{aH+2}
    v_permlane32_swap_b32 v{aH+1}, v{aH+3}
    v_add_f32 v{aH}, v{aH}, v{aH+2}
    v_add_f32 v{aH+1}, v{aH+1}, v{aH+3}
    v_permlane16_swap_b32 v{aH}, v{aH+1}
    v_add_f32 v{aH}, v{aH}, v{aH+1}
    v_max_f32 v{aH}, 0, v{aH}
    v_cvt_pk_bf16_f32 v{aH}, v{aH}, v{aH}
    ''')
    for g in range(8):
        A = aA + 4*(g & 1)
        tb = aH + 1 + (g & 1)
        a(f'v_mov_b32_dpp v{tb}, v{aH} row_newbcast:{g} row_mask:0xf bank_mask:0x3')
        a(f'v_mov_b32_dpp v{tb}, v{aH} row_newbcast:{8+g} row_mask:0xf bank_mask:0xc')
        for k in range(4):
            a(f'v_and_b32 v{A+k}, v{tb}, v{aM+k}')
        vm.wait(f'w2_{g}')
        c_ = '0' if g == 0 else f'v[{vD0}:{vD0+3}]'
        a(f'v_mfma_f32_16x16x32_bf16 v[{vD0}:{vD0+3}], v[{A}:{A+3}], v[{aW2+4*g}:{aW2+4*g+3}], {c_}')
    for k in range(4):
        a(f'v_mul_f32 v{vD0+k}, v{vt+11}, v{vD0+k}')
    a(f'''
L_a_wr:
    ds_write_b128 v{aFw}, v[{vD0}:{vD0+3}] offset:{F5_LDS}
    s_waitcnt lgkmcnt(0)
    ''')
    stamp('fpub')
    a(f'''
    s_barrier
    s_branch L_fin
L_a_none:
    v_mov_b32 v{vD0}, 0
    v_mov_b32 v{vD0+1}, 0
    v_mov_b32 v{vD0+2}, 0
    v_mov_b32 v{vD0+3}, 0
    s_barrier
    s_barrier
    s_branch L_a_wr
    ''')
    a('L_fin:')
    if o['probe']:
        pname, K = o['probe']
        i = SI[pname]
        a(f'''
    s_waitcnt lgkmcnt(0)
    s_cmp_lg_u32 s3, 0
    s_cbranch_scc1 L_end
    v_mov_b32 v4, 0
    s_mov_b64 exec, 1
    v_mov_b32 v6, s64
    v_not_b32 v6, v6
    global_atomic_umax v4, v6, s[{sDBG}:{sDBG+1}] sc1
    v_mov_b32 v7, s{64+2*i}
    global_atomic_umax v4, v7, s[{sDBG}:{sDBG+1}] offset:4 sc1
    s_waitcnt vmcnt(0)
    v_mov_b32 v8, 1
    global_atomic_add v9, v4, v8, s[{sDBG}:{sDBG+1}] offset:8 sc0 sc1
    s_waitcnt vmcnt(0)
    v_readfirstlane_b32 s60, v9
    s_cmp_lg_u32 s60, 255
    s_cbranch_scc1 L_end
    global_load_dwordx2 v[10:11], v4, s[{sDBG}:{sDBG+1}] sc1
    s_waitcnt vmcnt(0)
    v_readfirstlane_b32 s60, v10
    v_readfirstlane_b32 s61, v11
    s_not_b32 s60, s60
    s_sub_u32 s61, s61, s60
    s_min_u32 s61, s61, 5000
    v_mov_b32 v12, s61
    global_store_dword v4, v12, s[{sDBG}:{sDBG+1}] offset:12 sc1
    s_mul_i32 s61, s61, {K}
    s_memrealtime s[62:63]
    s_waitcnt lgkmcnt(0)
    s_add_u32 s61, s61, s62
L_probe_spin:
    s_memrealtime s[62:63]
    s_waitcnt lgkmcnt(0)
    s_sub_u32 s60, s61, s62
    s_cmp_gt_i32 s60, 0
    s_cbranch_scc1 L_probe_spin
    ''')
    elif o['stamps']:
        a(f'''
    s_waitcnt lgkmcnt(0)
    s_lshl_b32 s{sT0}, s2, 10
    s_lshl_b32 s{sT1}, s3, 7
    s_add_u32 s{sT0}, s{sT0}, s{sT1}
    s_add_u32 s{sT0}, s{sT0}, {WS_STAMP}
    v_mov_b32 v4, s{sT0}
    s_mov_b64 exec, 1
    ''')
        for i in range(16):
            a(f'''
    v_mov_b32 v6, s{64+2*i}
    v_mov_b32 v7, s{65+2*i}
    global_store_dwordx2 v4, v[6:7], {WS} offset:{8*i}
    s_nop 1
    ''')
    a('''
L_end:
    s_endpgm
    ''')
    body, n = hazard.fix(a.text())
    return wrap(body, (256,1,1), (320,1,1), LDS_BYTES, vgpr=NV, sgpr=102), STAMPS

if __name__ == '__main__':
    opts = json.loads(sys.argv[2]) if len(sys.argv) > 2 else {}
    s, names = gen(opts)
    open(sys.argv[1], 'w').write(s)
```

```python
import sys, json, struct
from asmgen import *
import hazard

WS_EPOCH = 0x0
WS_QP    = 0x1000
WS_HP    = 0x20000
WS_FP    = 0x60000
WS_OP    = 0x100000
WS_ALT   = 0x200000
WS_STAMP = 0x1000000
K_LDS  = 0
WQ_LDS = 32768
F5_LDS = WQ_LDS
X_LDS  = 47104
GW_LDS = 49152
Q_LDS  = 50176
G_LDS  = 51200
MX_LDS = 51216
LS_LDS = 51248
LDS_BYTES = 51328

LOG2E = 1.4426950408889634
def f2u(x): return struct.unpack('<I', struct.pack('<f', x))[0]

DEFAULTS = dict(probe=None, stamps=False, round_scores=True, spin=20000, b1=True, prio=True, W=6, npre=3, vmode='k6', h3_ack=True, h3_pipe=1, ffn_light=(6, 7), aux_lowprio=True, e_sc1=True, e_late=False, xnt=False,
                nt_wq=True, nt_k=True, nt_v=True, nt_wo=True, nt_w1=True, nt_w2=True,
                wo_at=['bq', 'qk', 'sm', 'pv'],
                o_delay='wo3',
                h_delay='w2_7', fast=True, aevery=16, rot='hkv+c', prewrite=False, lazy_b=False, W2=None)
STAMPS = ['start', 'karg', 'h2f', 'kdone', 'qpoll', 'qready', 'qk', 'vdone', 'pv', 'opub', 'h2', 'fpub', 'h3', 'end', 'a_wq', 'a_x']

class VM:
    def __init__(self, a): self.a = a; self.ops = []
    def issue(self, name): self.ops.append(name)
    def wait(self, name):
        i = max(k for k, n in enumerate(self.ops) if n == name)
        self.a(f's_waitcnt vmcnt({len(self.ops) - 1 - i})')
    def waitall(self): self.a('s_waitcnt vmcnt(0)')

def gen(opts):
    o = dict(DEFAULTS); o.update(opts)
    if o['probe']: o['stamps'] = True
    def NT(k): return ' nt' if o['nt_' + k] else ''
    a = Asm()
    SI = {n: i for i, n in enumerate(STAMPS)}
    def stamp(name):
        if o['stamps']:
            i = SI[name]
            a(f's_memrealtime s[{64+2*i}:{65+2*i}]')
    def note(slot, half, sreg):
        if o['stamps']: a(f's_mov_b32 s{64+2*slot+half}, s{sreg}')
    sX, sK, sV, sWQ, sWO, sW1, sW2, sGW, sOUT, sDBG, sWS = 4, 6, 8, 10, 12, 16, 18, 20, 22, 24, 26
    sDUM = 98
    sWSB = 14
    sHKV, sJ, sB, sC = 28, 29, 30, 31
    sT0, sT1, sT2, sT3 = 32, 33, 34, 35
    sWO2 = 36; sKM = 38; sOI = 39
    sSEL = 40; sCHA, sCHB = 44, 45
    sSPIN = 46; sT4 = 47
    sKB, sVB = 48, 50
    sRG, sCT, sU = 52, 53, 54
    sH3 = 55
    sMSK = 56
    sC2 = 59; sF1 = 58; sROT = 63; sFX = 57
    light = list(o['ffn_light']); heavy = [x for x in range(8) if x not in light]
    FXPERM = 0
    for i_, x_ in enumerate(heavy + light): FXPERM |= i_ << (4*x_)
    sEXW = 60
    sHASF2 = 62
    WS = f's[{sWS}:{sWS+1}]'; WSB = f's[{sWSB}:{sWSB+1}]'
    vL, vN, vKS, vT = 0, 1, 2, 3

    def tag_insert(regs):
        for i, r in enumerate(regs):
            a(f'v_perm_b32 v{r}, v{r}, v{vT}, s{sSEL+i}')
    def chk(base, ca, cb, dst):
        return [f'v_perm_b32 v{ca}, v{base+1}, v{base}, s{sCHA}', f'v_perm_b32 v{cb}, v{base+3}, v{base+2}, s{sCHB}',
                f'v_bitop3_b32 v{dst}, v{ca}, v{cb}, v{vT} bitop3:0x56']
    def tag_check(base, tmp, dst):
        for ln in chk(base, tmp, tmp+1, dst): a(ln)
    def allreduce_rows(op, r, t):
        a(f'v_mov_b32 v{t}, v{r}')
        a(f'v_permlane16_swap_b32 v{t}, v{r}')
        a(f'{op} v{r}, v{r}, v{t}')
        a(f'v_mov_b32 v{t}, v{r}')
        a(f'v_permlane32_swap_b32 v{t}, v{r}')
        a(f'{op} v{r}, v{r}, v{t}')
    def masks(dst, t):
        a(f'''
    v_and_b32 v{t}, 1, v{vL}
    v_cmp_eq_u32 vcc, 1, v{t}
    v_mov_b32 v{t+1}, 0xffff
    v_mov_b32 v{t+2}, 0xffff0000
    v_cndmask_b32 v{t+1}, v{t+1}, v{t+2}, vcc
    v_bfe_u32 v{t+2}, v{vL}, 1, 2
    ''')
        for k in range(4):
            a(f'''
    v_cmp_eq_u32 vcc, {k}, v{t+2}
    v_cndmask_b32 v{dst+k}, 0, v{t+1}, vcc
    ''')
    def publish_b(vaddr, data):
        a(f'global_store_dwordx4 v{vaddr}, v[{data}:{data+3}], {WSB} sc1')
    def publish(vm, vaddr, data, name, lazy=False):
        if o['fast']:
            if o.get('noa'):
                a(f'global_store_dwordx4 v{vaddr}, v[{data}:{data+3}], {WS} offset:0' .replace(WS, f's[{sDUM}:{sDUM+1}]'))
            else:
                a(f'global_store_dwordx4 v{vaddr}, v[{data}:{data+3}], {WS}')
            vm.issue(name + '_a')
        if lazy and o['fast'] and o['lazy_b']:
            vm.ops[-1] = name
            return
        if o.get('nob'):
            vm.ops[-1] = name
            return
        a(f'global_store_dwordx4 v{vaddr}, v[{data}:{data+3}], {WSB} sc1'); vm.issue(name)
    def retry_loop(label, loads, checks, bad, okl, own_b=None):
        a(f'''
{label}:
    s_sub_u32 s{sSPIN}, s{sSPIN}, 1
    s_cmp_eq_u32 s{sSPIN}, 0
    s_cbranch_scc1 {okl}
    s_mov_b64 exec, vcc
    ''')
        if o['fast']:
            a(f'''
    s_and_b32 s{sT0}, s{sSPIN}, {o['aevery']-1}
    s_cmp_eq_u32 s{sT0}, 0
    s_cbranch_scc1 {label}_b
    ''')
            loads(WS)
            a(f's_branch {label}_c\n{label}_b:')
            if own_b and o['lazy_b']:
                a('s_mov_b64 exec, -1')
                publish_b(*own_b)
                a('s_mov_b64 exec, vcc')
        loads(WSB)
        a(f'{label}_c:\ns_waitcnt vmcnt(0)')
        checks()
        a(f'''
    v_cmp_ne_u32 vcc, 0, v{bad}
    s_cbranch_vccnz {label}
    ''')
    FIRST = WS if o['fast'] else WSB

    stamp('start')
    a(f'''
    s_cmp_ge_u32 s2, 256
    s_cbranch_scc1 L_end
    s_load_dwordx16 s[4:19], s[0:1], 0
    s_load_dwordx8 s[20:27], s[0:1], 64
    v_lshrrev_b32 v4, 6, v0
    v_and_b32 v{vL}, 63, v0
    v_readfirstlane_b32 s3, v4
    v_and_b32 v{vN}, 15, v{vL}
    v_lshrrev_b32 v{vKS}, 4, v{vL}
    s_and_b32 s{sHKV}, s2, 7
    s_lshr_b32 s{sJ}, s2, 3
    s_lshr_b32 s{sB}, s{sJ}, 4
    s_and_b32 s{sC}, s{sJ}, 15
    s_lshr_b32 s{sRG}, s{sJ}, 2
    s_and_b32 s{sCT}, s{sJ}, 3
    s_mov_b32 s{sSEL}, 0x07060500
    s_mov_b32 s{sSEL+1}, 0x07060501
    s_mov_b32 s{sSEL+2}, 0x07060502
    s_mov_b32 s{sSEL+3}, 0x07060503
    s_mov_b32 s{sCHA}, 0x0c0c0400
    s_mov_b32 s{sCHB}, 0x04000c0c
    s_mov_b32 s{sSPIN}, {o['spin']}
    s_cmp_eq_u32 s{sCT}, 3
    s_cselect_b32 s{sEXW}, 7, 15
    s_cmp_eq_u32 s3, 4
    s_cbranch_scc1 L_aux
    ''')

    vm = VM(a)
    vM = 4
    vVoff, vWoff, vQrd, vKrd, vQpoll, vQw = 8, 9, 10, 11, 12, 13
    vOw, vOr, vOP, vAd, vFw, vFr, vFP, vH3, vOut = 14, 15, 16, 17, 18, 19, 20, 21, 22
    vV = 24
    vWO = 56
    vKop = 72
    vQop = 104
    vPA = 72
    vAcc = 88
    vO = 96
    vS = 136
    vTmp = 140
    vMXa, vGf = 160, 161
    NV = 168
    vKoff = vQop
    a(f'''
    v_lshrrev_b32 v{vTmp}, 5, v{vL}                 ; hi
    v_and_b32 v{vTmp+1}, 31, v{vL}                  ; u
    v_xor_b32 v{vTmp+2}, v{vTmp+1}, v{vTmp}
    v_lshlrev_b32 v{vTmp+2}, 4, v{vTmp+2}
    v_lshl_add_u32 v{vKoff}, v{vTmp}, 9, v{vTmp+2}
    v_lshlrev_b32 v{vTmp+3}, 4, v{vN}               ; n*16
    v_lshl_add_u32 v{vVoff}, v{vKS}, 11, v{vTmp+3}
    s_lshl_b32 s{sT0}, s3, 13                       ; w*8192
    s_lshl_b32 s{sT1}, s{sB}, 3
    s_add_u32 s{sT1}, s{sT1}, s{sHKV}
    s_lshl_b32 s{sT1}, s{sT1}, 21
    s_add_u32 s{sT1}, s{sT1}, 1572864
    s_lshl_b32 s{sT2}, s{sC}, 15
    s_add_u32 s{sT1}, s{sT1}, s{sT2}
    s_add_u32 s{sT1}, s{sT1}, s{sT0}
    s_mov_b32 s{sC2}, {hex(f2u(LOG2E/16.0))}
    v_mov_b32 v{vTmp+4}, 0
    ''')
    a({'hkv+c': f's_add_u32 s{sROT}, s{sHKV}, s{sC}\ns_and_b32 s{sROT}, s{sROT}, 7',
       'c': f's_and_b32 s{sROT}, s{sC}, 7',
       'hkvb': f's_lshl_b32 s{sROT}, s{sB}, 2\ns_xor_b32 s{sROT}, s{sROT}, s{sHKV}',
       None: f's_mov_b32 s{sROT}, 0'}[o['rot']])
    a(f'''
    s_mul_i32 s{sT2}, s{sROT}, {(1 << 10) | (1 << 5)}
    v_xor_b32 v{vKoff}, s{sT2}, v{vKoff}
    s_lshl_b32 s{sT2}, s{sROT}, 8
    v_xor_b32 v{vVoff}, s{sT2}, v{vVoff}
    s_lshl_b32 s{sT2}, s{sROT}, 10
    s_xor_b32 s{sKM}, s{sT0}, s{sT2}
    s_waitcnt lgkmcnt(0)
    ''')
    stamp('karg')
    ESC = ' sc1' if o['e_sc1'] else ''
    if not o['e_late']: a(f'global_load_dword v{vT}, v{vTmp+4}, {WS}{ESC}')
    a(f'''
    s_add_u32 s{sKB}, s{sK}, s{sT1}
    s_addc_u32 s{sKB+1}, s{sK+1}, 0
    s_add_u32 s{sVB}, s{sV}, s{sT1}
    s_addc_u32 s{sVB+1}, s{sV+1}, 0
    s_add_u32 s{sWSB}, s{sWS}, {WS_ALT}
    s_addc_u32 s{sWSB+1}, s{sWS+1}, 0
    ''')
    if o.get('noa'): a(f's_add_u32 s{sDUM}, s{sWS}, 0x800000\ns_addc_u32 s{sDUM+1}, s{sWS+1}, 0')
    if not o['e_late']: vm.issue('E')
    if o['b1']:
        a('s_barrier')
    W = o['W']
    def kload(m):
        t = vTmp + 11 + (m & 1)
        a(f's_xor_b32 m0, s{sKM}, {m << 10}')
        a(f'v_xor_b32 v{t}, {(m << 10) | (m << 5)}, v{vKoff}')
        a(f'global_load_lds_dwordx4 v{t}, s[{sKB}:{sKB+1}]{NT("k")}')
        vm.issue(f'K{m}')
    def vload(i):
        t = vTmp + 11 + (i & 1)
        a(f'v_xor_b32 v{t}, {i << 8}, v{vVoff}')
        a(f'global_load_dwordx4 v[{vV+4*i}:{vV+4*i+3}], v{t}, s[{sVB}:{sVB+1}]{NT("v")}')
        vm.issue(f'V{i}')
    vP = vTmp
    npre = o['npre']
    elems = [('K', m) for m in range(8)] + [('V', i) for i in range(npre)] + [('P', 0)] + [('V', i) for i in range(npre, 8)]
    def issue(e):
        k, i = e
        if k == 'K': kload(i)
        elif k == 'V': vload(i)
        else:
            a(f'global_load_dwordx4 v[{vP}:{vP+3}], v{vQpoll}, {FIRST} sc1'); vm.issue('P')
    for n_, e in enumerate(elems[:W]):
        issue(e)
        if o['e_late'] and n_ == 0:
            a(f'global_load_dword v{vT}, v{vTmp+4}, {WS}{ESC}'); vm.issue('E')
    t5, t6, t7 = vTmp+5, vTmp+6, vTmp+7
    a(f'''
    s_movk_i32 s{sT4}, 896
    v_and_b32 v{vWoff}, s{sEXW}, v{vN}
    v_lshlrev_b32 v{vWoff}, 4, v{vWoff}
    v_mad_u32_u24 v{vWoff}, v{vKS}, s{sT4}, v{vWoff}
    s_lshr_b32 s{sT1}, s{sROT}, 1
    v_xor_b32 v{t6}, s{sT1}, v{vN}
    v_xor_b32 v{t5}, v{vKS}, v{t6}
    v_lshlrev_b32 v{t5}, 4, v{t5}
    v_lshl_add_u32 v{vKrd}, v{t6}, 9, v{t5}
    v_add_u32 v{vKrd}, s{sT0}, v{vKrd}
    v_lshrrev_b32 v{t5}, 3, v{vN}
    v_lshlrev_b32 v{t6}, 9, v{t5}
    v_lshl_add_u32 v{vQrd}, v{vKS}, 4, v{t6}
    s_lshl_b32 s{sT1}, s3, 2
    v_lshlrev_b32 v{vMXa}, 4, v{t5}
    v_add_u32 v{vMXa}, s{sT1}, v{vMXa}              ; head*16 + w*4
    ''')
    masks(vM, t6)
    a(f'''
    ; q poll address: QP + hkv*8192 + rh*4096 + b*2048 + (32w + u)*16     rh = l>>5, u = l&31
    s_lshl_b32 s{sT1}, s{sHKV}, 13
    s_lshl_b32 s{sT2}, s{sB}, 11
    s_add_u32 s{sT1}, s{sT1}, s{sT2}
    s_lshl_b32 s{sT2}, s3, 9
    s_add_u32 s{sT1}, s{sT1}, s{sT2}
    s_add_u32 s{sT1}, s{sT1}, {WS_QP}
    v_lshlrev_b32 v{vQpoll}, 12, v{vTmp}
    v_lshl_add_u32 v{vQpoll}, v{vTmp+1}, 4, v{vQpoll}
    v_add_u32 v{vQpoll}, s{sT1}, v{vQpoll}
    s_lshl_b32 s{sT1}, s3, 8
    v_lshlrev_b32 v{vQw}, 3, v{vTmp+1}
    v_lshl_add_u32 v{vQw}, v{vTmp}, 2, v{vQw}
    v_add_u32 v{vQw}, s{sT1}, v{vQw}
    v_and_b32 v{t6}, 1, v{vKS}
    v_lshlrev_b32 v{t6}, 4, v{t6}
    v_lshl_add_u32 v{t6}, v{vN}, 5, v{t6}
    v_add_u32 v{t6}, s{sT0}, v{t6}
    v_lshl_add_u32 v{vOw}, v{vTmp}, 10, v{t6}
    s_and_b32 s{sT1}, s{sROT}, 1
    s_lshl_b32 s{sT1}, s{sT1}, 9
    v_xor_b32 v{vOw}, s{sT1}, v{vOw}
    v_lshl_add_u32 v{vFw}, v{vTmp}, 9, v{t6}
    ; publish role of wave w: h = w>>1, dblk = 8*(w&1) + (l>>3), slot = l&7
    s_lshr_b32 s{sT1}, s3, 1                        ; h
    s_and_b32 s{sT2}, s3, 1
    v_lshrrev_b32 v{t6}, 3, v{vL}                   ; l>>3
    s_lshl_b32 s{sT3}, s{sT2}, 3
    v_add_u32 v{t6}, s{sT3}, v{t6}                  ; dblk
    v_and_b32 v{t7}, 3, v{vL}                       ; slot&3
    v_lshlrev_b32 v{vOr}, 6, v{t6}
    v_lshl_add_u32 v{vOr}, v{t7}, 4, v{vOr}
    s_lshl_b32 s{sT3}, s{sT1}, 10
    v_add_u32 v{vOr}, s{sT3}, v{vOr}
    s_lshl_b32 s{sT3}, s{sHKV}, 1
    s_add_u32 s{sT3}, s{sT3}, s{sT1}
    s_lshl_b32 s{sT3}, s{sT3}, 16
    s_lshl_b32 s{sT4}, s{sB}, 11
    s_add_u32 s{sT3}, s{sT3}, s{sT4}
    s_lshl_b32 s{sT4}, s{sC}, 7
    s_add_u32 s{sT3}, s{sT3}, s{sT4}
    s_add_u32 s{sT3}, s{sT3}, {WS_OP}
    v_lshlrev_b32 v{vOP}, 12, v{t6}
    v_and_b32 v{t7}, 7, v{vL}                       ; slot
    v_lshl_add_u32 v{vOP}, v{t7}, 4, v{vOP}
    v_add_u32 v{vOP}, s{sT3}, v{vOP}
    ; H2 address
    s_lshr_b32 s{sT1}, s{sRG}, 2
    s_lshl_b32 s{sT2}, s{sHKV}, 1
    s_add_u32 s{sT1}, s{sT1}, s{sT2}
    s_and_b32 s{sT2}, s{sRG}, 3
    s_lshl_b32 s{sT2}, s{sT2}, 2
    s_add_u32 s{sT2}, s{sT2}, s3
    s_lshl_b32 s{sT3}, s{sT1}, 16
    s_lshl_b32 s{sT2}, s{sT2}, 12
    s_add_u32 s{sT3}, s{sT3}, s{sT2}
    s_add_u32 s{sT3}, s{sT3}, {WS_OP}
    v_lshlrev_b32 v{vAd}, 11, v{t5}
    v_lshl_add_u32 v{vAd}, v{vKS}, 9, v{vAd}
    v_lshl_add_u32 v{vAd}, v{t7}, 4, v{vAd}
    v_add_u32 v{vAd}, s{sT3}, v{vAd}
    v_lshlrev_b32 v{vFr}, 9, v{vTmp}
    v_lshl_add_u32 v{vFr}, v{vTmp+1}, 4, v{vFr}
    s_lshl_b32 s{sT1}, s{sHKV}, 3
    s_add_u32 s{sT1}, s{sT1}, s{sRG}
    s_lshl_b32 s{sT1}, s{sT1}, 12
    s_lshl_b32 s{sT2}, s{sCT}, 10
    s_add_u32 s{sT1}, s{sT1}, s{sT2}
    s_add_u32 s{sT1}, s{sT1}, {WS_FP}
    v_lshlrev_b32 v{vFP}, 4, v{vL}
    v_add_u32 v{vFP}, s{sT1}, v{vFP}
    ; final-stage role: line lam = (j>>3)*8 + xcd (valid < 28), member = j&7 ; b3 = lam/14, r = lam%14 ; ct3 = r>>2 (r<12) or 3 ; m = r&3 or r-12
    s_lshr_b32 s{sT1}, s{sJ}, 3
    s_lshl_b32 s{sT1}, s{sT1}, 3
    s_add_u32 s{sH3}, s{sT1}, s{sHKV}               ; lam
    s_cmp_ge_u32 s{sH3}, 14
    s_cselect_b32 s{sT2}, 1, 0                      ; b3
    s_mul_i32 s{sT3}, s{sT2}, 14
    s_sub_u32 s{sT3}, s{sH3}, s{sT3}
    s_lshl_b32 s{sT4}, s{sT3}, 3
    s_and_b32 s{sT1}, s{sJ}, 7
    s_add_u32 s{sT4}, s{sT4}, s{sT1}
    s_lshr_b32 s{sT1}, s{sT4}, 5                    ; ct3
    s_lshl_b32 s{sT1}, s{sT1}, 10
    s_and_b32 s{sT3}, s{sT4}, 31
    s_lshl_b32 s{sT3}, s{sT3}, 4
    s_add_u32 s{sT1}, s{sT1}, s{sT3}
    s_lshl_b32 s{sT3}, s{sT2}, 9
    s_add_u32 s{sT1}, s{sT1}, s{sT3}
    s_add_u32 s{sT1}, s{sT1}, {WS_FP}
    v_lshlrev_b32 v{vH3}, 12, v{vL}
    v_add_u32 v{vH3}, s{sT1}, v{vH3}
    s_mul_i32 s{sT2}, s{sT2}, 896
    s_lshl_b32 s{sT4}, s{sT4}, 3
    s_add_u32 s{sT2}, s{sT2}, s{sT4}
    v_lshlrev_b32 v{vOut}, 1, v{vKS}
    v_add_u32 v{vOut}, s{sT2}, v{vOut}
    s_lshl_b32 s{sT1}, s{sHKV}, 9
    s_lshl_b32 s{sT2}, s{sRG}, 6
    s_add_u32 s{sT1}, s{sT1}, s{sT2}
    s_lshl_b32 s{sT2}, s3, 4
    s_add_u32 s{sT1}, s{sT1}, s{sT2}
    s_mul_i32 s{sT1}, s{sT1}, 896
    s_lshl_b32 s{sT2}, s{sCT}, 8
    s_add_u32 s{sT1}, s{sT1}, s{sT2}
    s_add_u32 s{sWO}, s{sWO}, s{sT1}
    s_addc_u32 s{sWO+1}, s{sWO+1}, 0
    s_add_u32 s{sWO2}, s{sWO}, 7168
    s_addc_u32 s{sWO2+1}, s{sWO+1}, 0
    ''')
    tagdone = [False]
    def kop_reads():
        for s in range(8):
            t = vTmp + 4 + (s & 1)
            a(f'v_xor_b32 v{t}, {s << 6}, v{vKrd}')
            a(f'ds_read_b128 v[{vKop+4*s}:{vKop+4*s+3}], v{t}')
    kdone = False
    idxP = elems.index(('P', 0))
    last_pre = min(len(elems) - 1, max(idxP + W - 1, 7 + W))
    if o['vmode'] == 'k6': last_pre = len(elems) - 1
    for i in range(W, last_pre + 1):
        if o['W2'] and i > idxP + 1:
            Wi = o['W2']
            if i - Wi >= 0 and Wi <= i: a(f's_waitcnt vmcnt({min(Wi - 1, 63)})')
        else:
            a(f's_waitcnt vmcnt({W-1})')
        if not tagdone[0]:
            a(f'v_add_u32 v{vT}, 0x01010101, v{vT}'); tagdone[0] = True
            issue(elems[i])
            if o['fast'] and o['prewrite']:
                for k in range(4): a(f'v_xor_b32 v{vO+k}, 0x80808080, v{vT}')
                for k in range(4): a(f'v_perm_b32 v{vO+k}, v{vO+k}, v{vO+k}, s{sSEL+k}')
                a(f'global_store_dwordx4 v{vOP}, v[{vO}:{vO+3}], {WS}'); vm.issue('pw')
            continue
        issue(elems[i])
        if i - W >= 7 and not kdone:
            if o['W2']: vm.wait('K7')
            stamp('kdone'); kop_reads(); kdone = True
    rest = elems[last_pre + 1:]
    assert kdone
    vm.wait('P')
    if o['vmode'] == 'k7b':
        for e in rest: issue(e)
        rest = []
    a('L_h1_chk:')
    tag_check(vP, vTmp+4, vTmp+6)
    a(f'''
    v_cmp_ne_u32 vcc, 0, v{vTmp+6}
    s_cbranch_vccz L_h1_ok
    ''')
    retry_loop('L_h1_r', lambda base: a(f'global_load_dwordx4 v[{vP}:{vP+3}], v{vQpoll}, {base} sc1'),
               lambda: tag_check(vP, vTmp+4, vTmp+6), vTmp+6, 'L_h1_ok')
    a('L_h1_ok:\ns_mov_b64 exec, -1')
    stamp('qpoll'); note(14, 0, sSPIN)
    a(f'''
    v_permlane32_swap_b32 v{vP}, v{vP+2}
    v_permlane32_swap_b32 v{vP+1}, v{vP+3}
    v_add_f32 v{vP}, v{vP}, v{vP+2}
    v_add_f32 v{vP+1}, v{vP+1}, v{vP+3}
    v_cvt_pk_bf16_f32 v{vP}, v{vP}, v{vP+1}
    ds_write_b32 v{vQw}, v{vP} offset:{Q_LDS}
    ''')
    for e in rest: issue(e)
    a('s_waitcnt lgkmcnt(0)\ns_barrier')
    stamp('qready')
    wo_done = [False]*4
    def wo_at(where):
        for g in range(4):
            if o['wo_at'][g] == where and not wo_done[g]:
                base = sWO if g < 2 else sWO2
                off = ' offset:3584' if g & 1 else ''
                a(f'global_load_dwordx4 v[{vWO+4*g}:{vWO+4*g+3}], v{vWoff}, s[{base}:{base+1}]{off}{NT("wo")}')
                vm.issue(f'wo{g}'); wo_done[g] = True
    for s in range(8):
        a(f'ds_read_b128 v[{vQop+4*s}:{vQop+4*s+3}], v{vQrd} offset:{Q_LDS + s*64}')
    wo_at('bq')
    for s in range(8):
        if not o['stamps']: a(f's_waitcnt lgkmcnt({7 - s})')
        elif s == 0: a('s_waitcnt lgkmcnt(0)')
        c = '0' if s == 0 else f'v[{vS}:{vS+3}]'
        a(f'v_mfma_f32_16x16x32_bf16 v[{vS}:{vS+3}], v[{vKop+4*s}:{vKop+4*s+3}], v[{vQop+4*s}:{vQop+4*s+3}], {c}')
    wo_at('qk')
    s0, s1, s2_, s3_ = vS, vS+1, vS+2, vS+3
    if o['round_scores']:
        a(f'''
    v_cvt_pk_bf16_f32 v{vTmp}, v{s0}, v{s1}
    v_cvt_pk_bf16_f32 v{vTmp+1}, v{s2_}, v{s3_}
    v_lshlrev_b32 v{s0}, 16, v{vTmp}
    v_and_b32 v{s1}, 0xffff0000, v{vTmp}
    v_lshlrev_b32 v{s2_}, 16, v{vTmp+1}
    v_and_b32 v{s3_}, 0xffff0000, v{vTmp+1}
    ''')
    vMx, vLs = vTmp+2, vTmp+3
    a(f'''
    v_max3_f32 v{vMx}, v{s0}, v{s1}, v{s2_}
    v_max_f32 v{vMx}, v{vMx}, v{s3_}
    ''')
    allreduce_rows('v_max_f32', vMx, vTmp)
    wo_at('b3')
    a(f'''
    v_mul_f32 v{vMx}, s{sC2}, v{vMx}
    v_fma_f32 v{s0}, v{s0}, s{sC2}, -v{vMx}
    v_fma_f32 v{s1}, v{s1}, s{sC2}, -v{vMx}
    v_fma_f32 v{s2_}, v{s2_}, s{sC2}, -v{vMx}
    v_fma_f32 v{s3_}, v{s3_}, s{sC2}, -v{vMx}
    v_exp_f32 v{s0}, v{s0}
    v_exp_f32 v{s1}, v{s1}
    v_exp_f32 v{s2_}, v{s2_}
    v_exp_f32 v{s3_}, v{s3_}
    ''')
    for r in range(4):
        a(f'v_cvt_pk_bf16_f32 v{vTmp+4+r}, v{vS+r}, v{vS+r}')
    def pa(r):
        for k in range(4):
            a(f'v_and_b32 v{vPA+4*r+k}, v{vTmp+4+r}, v{vM+k}')
    def pv(r):
        for h in range(2):
            c = '0' if r == 0 else f'v[{vAcc+4*h}:{vAcc+4*h+3}]'
            i = r*2+h
            a(f'v_mfma_f32_16x16x32_bf16 v[{vAcc+4*h}:{vAcc+4*h+3}], v[{vPA+4*r}:{vPA+4*r+3}], v[{vV+4*i}:{vV+4*i+3}], {c}')
    wo_at('sm')
    pa(0)
    stamp('qk')
    for r in range(4):
        vm.wait(f'V{2*r+1}')
        if r == 3: stamp('vdone')
        pv(r)
        if r < 3: pa(r + 1)
        if r == 0:
            a(f'''
    v_add_f32 v{vLs}, v{s0}, v{s1}
    v_add_f32 v{vTmp+8}, v{s2_}, v{s3_}
    v_add_f32 v{vLs}, v{vLs}, v{vTmp+8}
    ''')
        if r == 1:
            allreduce_rows('v_add_f32', vLs, vTmp)
        if r == 2:
            a(f'''
    s_mov_b32 exec_lo, 0x101
    s_mov_b32 exec_hi, 0
    ds_write_b32 v{vMXa}, v{vMx} offset:{MX_LDS}
    ds_write_b32 v{vMXa}, v{vLs} offset:{LS_LDS}
    s_mov_b64 exec, -1
    ''')
    wo_at('pv')
    MS = f's[{sMSK}:{sMSK+1}]'
    a(f'''
    v_xor_b32 v{vTmp+11}, 512, v{vOw}
    s_lshr_b32 s{sT0}, s3, 1
    s_lshl_b32 s{sT0}, s{sT0}, 4
    v_mov_b32 v{vTmp+9}, s{sT0}                     ; h*16
    v_lshrrev_b32 v{vTmp+8}, 3, v{vN}
    v_lshlrev_b32 v{vTmp+8}, 2, v{vTmp+8}
    ds_read_b32 v{vGf}, v{vTmp+8} offset:{G_LDS}
    v_and_b32 v{vTmp+10}, 4, v{vL}
    v_cmp_ne_u32 {MS}, 0, v{vTmp+10}                ; slot >= 4
    ds_write_b128 v{vOw}, v[{vAcc}:{vAcc+3}]
    ds_write_b128 v{vTmp+11}, v[{vAcc+4}:{vAcc+7}]
    s_waitcnt lgkmcnt(0)
    s_barrier
    ''')
    stamp('pv')
    vMw, vLw = vTmp, vTmp+4
    vFw4 = [vTmp+12, vTmp+14, vTmp+16, vTmp+18]
    a(f'''
    ds_read_b128 v[{vMw}:{vMw+3}], v{vTmp+9} offset:{MX_LDS}
    ds_read_b128 v[{vLw}:{vLw+3}], v{vTmp+9} offset:{LS_LDS}
    ''')
    for ww in range(4):
        a(f'ds_read_b128 v[{vO+4*ww}:{vO+4*ww+3}], v{vOr} offset:{8192*ww}')
    a('s_waitcnt lgkmcnt(4)' if not o['stamps'] else 's_waitcnt lgkmcnt(0)')
    a(f'''
    v_max3_f32 v{vTmp+8}, v{vMw}, v{vMw+1}, v{vMw+2}
    v_max_f32 v{vTmp+8}, v{vTmp+8}, v{vMw+3}        ; M
    ''')
    for ww in range(4): a(f'v_sub_f32 v{vFw4[ww]}, v{vMw+ww}, v{vTmp+8}')
    for ww in range(4): a(f'v_exp_f32 v{vFw4[ww]}, v{vFw4[ww]}')
    a(f'v_mul_f32 v{vTmp+9}, v{vFw4[0]}, v{vLw}')
    for ww in range(1, 4): a(f'v_fmac_f32 v{vTmp+9}, v{vFw4[ww]}, v{vLw+ww}')
    a('s_waitcnt lgkmcnt(0)')
    a(f'v_pk_mul_f32 v[{vO}:{vO+1}], v[{vO}:{vO+1}], v[{vFw4[0]}:{vFw4[0]+1}] op_sel_hi:[1,0]')
    a(f'v_pk_mul_f32 v[{vO+2}:{vO+3}], v[{vO+2}:{vO+3}], v[{vFw4[0]}:{vFw4[0]+1}] op_sel_hi:[1,0]')
    for ww in range(1, 4):
        a(f'v_pk_fma_f32 v[{vO}:{vO+1}], v[{vO+4*ww}:{vO+4*ww+1}], v[{vFw4[ww]}:{vFw4[ww]+1}], v[{vO}:{vO+1}] op_sel_hi:[1,0,1]')
        a(f'v_pk_fma_f32 v[{vO+2}:{vO+3}], v[{vO+4*ww+2}:{vO+4*ww+3}], v[{vFw4[ww]}:{vFw4[ww]+1}], v[{vO+2}:{vO+3}] op_sel_hi:[1,0,1]')
    a(f'''
    v_cndmask_b32 v{vO}, v{vO}, v{vTmp+8}, {MS}
    v_cndmask_b32 v{vO+1}, v{vO+1}, v{vTmp+9}, {MS}
    v_cndmask_b32 v{vO+2}, v{vO+2}, v{vTmp+8}, {MS}
    v_cndmask_b32 v{vO+3}, v{vO+3}, v{vTmp+9}, {MS}
    ''')
    tag_insert([vO, vO+1, vO+2, vO+3])
    publish(vm, vOP, vO, 'opub', lazy=True)
    stamp('opub')
    wo_at('pub')
    if o['o_delay']: vm.wait(o['o_delay'])
    vD = vV
    def h2loads(base):
        for k in range(4):
            a(f'global_load_dwordx4 v[{vD+4*k}:{vD+4*k+3}], v{vAd}, {base} offset:{128*k} sc1')
    h2loads(FIRST)
    for k in range(4): vm.issue(f'D{k}')
    wo_at('poll')
    vm.wait('D3')
    stamp('h2f')
    a('L_h2_comp:')
    t = vTmp
    vMk = vV+16
    vWk = [vV+20, vV+22, vV+24, vV+26]
    vMxx, vLp, vX, tt = t, t+1, t+2, t+6
    vBad = t+7
    c = [t+8, t+9, t+10, t+11]; ca, cb = t+12, t+13
    fill = []
    for k in range(4): fill += chk(vD+4*k, ca, cb, c[k])
    fill += [f'v_or3_b32 v{vBad}, v{c[0]}, v{c[1]}, v{c[2]}', f'v_or_b32 v{vBad}, v{vBad}, v{c[3]}']
    def F(n):
        for _ in range(n):
            if fill: a(fill.pop(0))
    for k in range(4):
        a(f'v_mov_b32_dpp v{vMk+k}, v{vD+4*k} row_shl:4 row_mask:0xf bank_mask:0xf bound_ctrl:0')
    a(f'v_max3_f32 v{vMxx}, v{vMk}, v{vMk+1}, v{vMk+2}')
    a(f'v_max_f32 v{vMxx}, v{vMxx}, v{vMk+3}')
    a(f'v_mov_b32 v{tt}, v{vMxx}')
    F(2)
    a(f'v_permlane16_swap_b32 v{vMxx}, v{tt}')
    a(f'v_max_f32 v{vMxx}, v{vMxx}, v{tt}')
    a(f'v_mov_b32 v{tt}, v{vMxx}')
    F(2)
    a(f'v_permlane32_swap_b32 v{vMxx}, v{tt}')
    a(f'v_max_f32 v{vMxx}, v{vMxx}, v{tt}')
    for k in range(4): a(f'v_sub_f32 v{vWk[k]}, v{vMk+k}, v{vMxx}')
    for k in range(4): a(f'v_exp_f32 v{vWk[k]}, v{vWk[k]}')
    F(32)
    a(f'''
    v_cmp_ne_u32 vcc, 0, v{vBad}
    s_cbranch_vccz L_h2_ok
    ''')
    def h2checks():
        for k in range(4):
            for ln in chk(vD+4*k, ca, cb, c[k]): a(ln)
        a(f'v_or3_b32 v{vBad}, v{c[0]}, v{c[1]}, v{c[2]}\nv_or_b32 v{vBad}, v{vBad}, v{c[3]}')
    retry_loop('L_h2_r', h2loads, h2checks, vBad, 'L_h2_ok', own_b=(vOP, vO))
    a('''
    s_mov_b64 exec, -1
    s_branch L_h2_comp
L_h2_ok:
    s_mov_b64 exec, -1
    ''')
    if o['fast'] and o['lazy_b']:
        publish_b(vOP, vO); vm.issue('opub_b')
    stamp('h2'); note(14, 1, sSPIN)
    a(f'v_mul_f32_dpp v{vLp}, v{vD+1}, v{vWk[0]} row_shl:4 row_mask:0xf bank_mask:0xf bound_ctrl:0')
    a(f'v_pk_mul_f32 v[{vX}:{vX+1}], v[{vD}:{vD+1}], v[{vWk[0]}:{vWk[0]+1}] op_sel_hi:[1,0]')
    a(f'v_pk_mul_f32 v[{vX+2}:{vX+3}], v[{vD+2}:{vD+3}], v[{vWk[0]}:{vWk[0]+1}] op_sel_hi:[1,0]')
    for k in range(1, 4):
        a(f'v_fmac_f32_dpp v{vLp}, v{vD+4*k+1}, v{vWk[k]} row_shl:4 row_mask:0xf bank_mask:0xf bound_ctrl:0')
        a(f'v_pk_fma_f32 v[{vX}:{vX+1}], v[{vD+4*k}:{vD+4*k+1}], v[{vWk[k]}:{vWk[k]+1}], v[{vX}:{vX+1}] op_sel_hi:[1,0,1]')
        a(f'v_pk_fma_f32 v[{vX+2}:{vX+3}], v[{vD+4*k+2}:{vD+4*k+3}], v[{vWk[k]}:{vWk[k]+1}], v[{vX+2}:{vX+3}] op_sel_hi:[1,0,1]')
    a(f'''
    v_mov_b32 v{tt}, v{vLp}
    v_permlane32_swap_b32 v{vX}, v{vX+2}
    v_permlane32_swap_b32 v{vX+1}, v{vX+3}
    v_permlane16_swap_b32 v{vLp}, v{tt}
    v_add_f32 v{vX}, v{vX}, v{vX+2}
    v_add_f32 v{vX+1}, v{vX+1}, v{vX+3}
    v_add_f32 v{vLp}, v{vLp}, v{tt}
    v_mov_b32 v{tt}, v{vLp}
    v_permlane16_swap_b32 v{vX}, v{vX+1}
    v_permlane32_swap_b32 v{vLp}, v{tt}
    v_add_f32 v{vX}, v{vX}, v{vX+1}
    v_add_f32 v{vLp}, v{vLp}, v{tt}
    v_rcp_f32 v{vLp}, v{vLp}
    v_mul_f32 v{vX}, v{vX}, v{vGf}
    v_mul_f32 v{vX}, v{vX}, v{vLp}
    v_cvt_pk_bf16_f32 v{vX}, v{vX}, v{vX}
    v_mov_b32_dpp v{vX}, v{vX} row_shr:4 row_mask:0xf bank_mask:0xa
    ''')
    vAo = vPA
    for g in range(4):
        for k in range(4):
            a(f'v_and_b32_dpp v{vAo+4*g+k}, v{vX}, v{vM+k} quad_perm:[{g},{g},{g},{g}] row_mask:0xf bank_mask:0xf')
    for g in range(4):
        vm.wait(f'wo{g}')
        cc = '0' if g == 0 else f'v[{vAcc}:{vAcc+3}]'
        a(f'v_mfma_f32_16x16x32_bf16 v[{vAcc}:{vAcc+3}], v[{vAo+4*g}:{vAo+4*g+3}], v[{vWO+4*g}:{vWO+4*g+3}], {cc}')
    a(f'''
    ds_write_b128 v{vFw}, v[{vAcc}:{vAcc+3}] offset:4096
    s_waitcnt lgkmcnt(0)
    s_barrier
    s_cmp_lg_u32 s3, 0
    s_cbranch_scc1 L_m_done
    ''')
    for ww in range(4):
        a(f'ds_read_b128 v[{vO+4*ww}:{vO+4*ww+3}], v{vFr} offset:{8192*ww+4096}')
    a(f'''
    ds_read_b128 v[{vO+16}:{vO+19}], v{vFr} offset:{F5_LDS}
    s_waitcnt lgkmcnt(0)
    v_pk_add_f32 v[{vO}:{vO+1}], v[{vO}:{vO+1}], v[{vO+4}:{vO+5}]
    v_pk_add_f32 v[{vO+2}:{vO+3}], v[{vO+2}:{vO+3}], v[{vO+6}:{vO+7}]
    v_pk_add_f32 v[{vO+8}:{vO+9}], v[{vO+8}:{vO+9}], v[{vO+12}:{vO+13}]
    v_pk_add_f32 v[{vO+10}:{vO+11}], v[{vO+10}:{vO+11}], v[{vO+14}:{vO+15}]
    v_pk_add_f32 v[{vO}:{vO+1}], v[{vO}:{vO+1}], v[{vO+16}:{vO+17}]
    v_pk_add_f32 v[{vO+2}:{vO+3}], v[{vO+2}:{vO+3}], v[{vO+18}:{vO+19}]
    v_pk_add_f32 v[{vO}:{vO+1}], v[{vO}:{vO+1}], v[{vO+8}:{vO+9}]
    v_pk_add_f32 v[{vO+2}:{vO+3}], v[{vO+2}:{vO+3}], v[{vO+10}:{vO+11}]
    ''')
    tag_insert([vO, vO+1, vO+2, vO+3])
    a(f'global_store_dwordx4 v{vFP}, v[{vO}:{vO+3}], {WS} sc1')
    stamp('fpub')
    vF = vV
    a(f'''
    s_cmp_ge_u32 s{sH3}, 28
    s_cbranch_scc1 L_m_done
    ''')
    if o['h3_ack']: a('s_waitcnt vmcnt(0)')
    if o['h3_pipe'] == 1:
        a(f'''
L_h3_loop:
    global_load_dwordx4 v[{vF}:{vF+3}], v{vH3}, {WS} sc1
    s_waitcnt vmcnt(0)
    ''')
        tag_check(vF, vTmp+2, vTmp+4)
        a(f'''
    v_cmp_ne_u32 vcc, 0, v{vTmp+4}
    s_cbranch_vccz L_h3_ok
    s_mov_b64 exec, vcc
    s_sub_u32 s{sSPIN}, s{sSPIN}, 1
    s_cmp_lg_u32 s{sSPIN}, 0
    s_cbranch_scc1 L_h3_loop
L_h3_ok:
    s_mov_b64 exec, -1
    ''')
    else:
        G = vF + 8
        a(f'''
    s_mov_b64 s[{sMSK}:{sMSK+1}], -1
    global_load_dwordx4 v[{vF}:{vF+3}], v{vH3}, {WS} sc1
L_h3_loop:
    global_load_dwordx4 v[{vF+4}:{vF+7}], v{vH3}, {WS} sc1
    s_waitcnt vmcnt(1)
    ''')
        def absorb(base):
            tag_check(base, vTmp+2, vTmp+4)
            a(f'''
    v_cmp_eq_u32 vcc, 0, v{vTmp+4}
    s_andn2_b64 s[{sMSK}:{sMSK+1}], s[{sMSK}:{sMSK+1}], vcc
    s_mov_b64 s[{sT0}:{sT0+1}], exec
    s_mov_b64 exec, vcc
    v_mov_b32 v{G}, v{base}
    v_mov_b32 v{G+1}, v{base+1}
    v_mov_b32 v{G+2}, v{base+2}
    v_mov_b32 v{G+3}, v{base+3}
    s_mov_b64 exec, s[{sT0}:{sT0+1}]
    ''')
        absorb(vF)
        a(f'''
    s_cmp_eq_u64 s[{sMSK}:{sMSK+1}], 0
    s_cbranch_scc1 L_h3_ok
    s_mov_b64 exec, s[{sMSK}:{sMSK+1}]
    global_load_dwordx4 v[{vF}:{vF+3}], v{vH3}, {WS} sc1
    s_waitcnt vmcnt(1)
    ''')
        absorb(vF+4)
        a(f'''
    s_cmp_eq_u64 s[{sMSK}:{sMSK+1}], 0
    s_cbranch_scc1 L_h3_ok
    s_mov_b64 exec, s[{sMSK}:{sMSK+1}]
    s_sub_u32 s{sSPIN}, s{sSPIN}, 1
    s_cmp_lg_u32 s{sSPIN}, 0
    s_cbranch_scc1 L_h3_loop
L_h3_ok:
    s_mov_b64 exec, -1
    ''')
        vF = G
    stamp('h3'); note(15, 0, sSPIN)
    a(f'''
    v_permlane32_swap_b32 v{vF}, v{vF+2}
    v_permlane32_swap_b32 v{vF+1}, v{vF+3}
    v_add_f32 v{vF}, v{vF}, v{vF+2}
    v_add_f32 v{vF+1}, v{vF+1}, v{vF+3}
    v_permlane16_swap_b32 v{vF}, v{vF+1}
    v_add_f32 v{vF}, v{vF}, v{vF+1}
    v_add_f32_dpp v{vF}, v{vF}, v{vF} row_ror:8 row_mask:0xf bank_mask:0xf
    v_add_f32_dpp v{vF}, v{vF}, v{vF} row_ror:4 row_mask:0xf bank_mask:0xf
    v_add_f32_dpp v{vF}, v{vF}, v{vF} row_ror:2 row_mask:0xf bank_mask:0xf
    v_add_f32_dpp v{vF}, v{vF}, v{vF} row_ror:1 row_mask:0xf bank_mask:0xf
    v_cvt_pk_bf16_f32 v{vF}, v{vF}, v{vF}
    s_mov_b32 exec_lo, 0x00010001
    s_mov_b32 exec_hi, 0x00010001
    global_store_short v{vOut}, v{vF}, s[{sOUT}:{sOUT+1}]
    s_cmp_lg_u32 s2, 0
    s_cbranch_scc1 L_m_done
    v_mov_b32 v{vTmp}, 0
    s_mov_b64 exec, 1
    global_store_dword v{vTmp}, v{vT}, {WS} sc1
L_m_done:
    s_mov_b64 exec, -1
    ''')
    stamp('end')
    a('s_branch L_fin')

    a('L_aux:')
    vm = VM(a)
    if o['prio']:
        a('s_setprio 3')
    vA16, vWq, vTr, vXr = 4, 5, 6, 7
    vXB = 8
    vWA = 36
    vD0, vD1 = 68, 72
    vt = 76
    aM = 96
    aXA = 100
    aW1 = 128
    aW1off, aHP, aQP, aXd, aW2off, aAh, aFw = 156, 157, 158, 159, 160, 161, 162
    aW2 = 8
    aH = 40
    aA = 56
    a(f'''
    v_lshlrev_b32 v{vA16}, 4, v{vL}
    v_lshrrev_b32 v{vt}, 2, v{vL}
    v_and_b32 v{vt+1}, 3, v{vL}
    v_lshlrev_b32 v{vt+1}, 4, v{vt+1}
    v_lshl_add_u32 v{vWq}, v{vt}, 13, v{vt+1}
    s_and_b32 s{sT0}, s{sJ}, 1                      ; rh
    s_lshr_b32 s{sT1}, s{sJ}, 1                     ; ct32
    s_mul_i32 s{sT2}, s{sT0}, {224*8192}
    s_lshl_b32 s{sT3}, s{sHKV}, 10
    s_add_u32 s{sT2}, s{sT2}, s{sT3}
    s_lshl_b32 s{sT3}, s{sT1}, 6
    s_add_u32 s{sT2}, s{sT2}, s{sT3}
    v_mov_b32 v{vt+2}, 0
    s_waitcnt lgkmcnt(0)
    ''')
    stamp('karg')
    a(f'''
    s_add_u32 s{sWQ}, s{sWQ}, s{sT2}
    s_addc_u32 s{sWQ+1}, s{sWQ+1}, 0
    {'' if o['e_late'] else f'global_load_dword v{vT}, v{vt+2}, {WS}{ESC}'}
    s_mov_b32 m0, {X_LDS}
    s_add_u32 s{sWSB}, s{sWS}, {WS_ALT}
    global_load_lds_dwordx4 v{vA16}, s[{sX}:{sX+1}]
    s_addc_u32 s{sWSB+1}, s{sWS+1}, 0
    s_mov_b32 exec_lo, -1
    s_mov_b32 exec_hi, 0x0000ffff
    global_load_lds_dwordx4 v{vA16}, s[{sX}:{sX+1}] offset:1024
    s_mov_b32 m0, {GW_LDS}
    s_mov_b32 exec_hi, 0x00ffffff
    global_load_lds_dwordx4 v{vA16}, s[{sGW}:{sGW+1}]
    s_mov_b64 exec, -1
    ''')
    if o.get('noa'): a(f's_add_u32 s{sDUM}, s{sWS}, 0x800000\ns_addc_u32 s{sDUM+1}, s{sWS+1}, 0')
    for n in (('x0', 'x1', 'gw') if o['e_late'] else ('E', 'x0', 'x1', 'gw')): vm.issue(n)
    for s in range(14):
        a(f's_mov_b32 m0, {WQ_LDS + s*1024}')
        if s > 0:
            a(f's_add_u32 s{sWQ}, s{sWQ}, {16*8192}\ns_addc_u32 s{sWQ+1}, s{sWQ+1}, 0')
        else:
            a('s_nop 0')
        a(f'global_load_lds_dwordx4 v{vWq}, s[{sWQ}:{sWQ+1}]{NT("wq")}')
        vm.issue(f'wq{s}')
    if o['e_late']:
        a(f'global_load_dword v{vT}, v{vt+2}, {WS}{ESC}'); vm.issue('E')
    if o['b1'] and o.get('b1_after') is None:
        a('s_barrier')
    a(f'''
    v_lshrrev_b32 v{vt}, 2, v{vN}
    v_lshlrev_b32 v{vt}, 6, v{vt}
    v_and_b32 v{vt+1}, 3, v{vN}
    v_lshl_add_u32 v{vt}, v{vt+1}, 3, v{vt}
    v_lshl_add_u32 v{vTr}, v{vKS}, 9, v{vt}
    v_lshrrev_b32 v{vt+3}, 3, v{vN}                 ; b = n>>3
    v_mul_u32_u24 v{vt}, 896, v{vt+3}
    v_lshl_add_u32 v{vXr}, v{vKS}, 4, v{vt}
    s_mul_i32 s{sT2}, s{sT0}, 448
    v_add_u32 v{vXr}, s{sT2}, v{vXr}
    s_lshl_b32 s{sT2}, s{sHKV}, 1
    s_add_u32 s{sT2}, s{sT2}, s{sT0}
    s_lshl_b32 s{sT2}, s{sT2}, 12
    s_lshl_b32 s{sT3}, s{sT1}, 7
    s_add_u32 s{sT2}, s{sT2}, s{sT3}
    s_add_u32 s{sT2}, s{sT2}, {WS_QP}
    v_lshlrev_b32 v{aQP}, 11, v{vt+3}
    v_and_b32 v{vt+1}, 1, v{vL}
    v_lshl_add_u32 v{aQP}, v{vt+1}, 6, v{aQP}
    v_lshl_add_u32 v{aQP}, v{vKS}, 4, v{aQP}
    v_add_u32 v{aQP}, s{sT2}, v{aQP}
    ''')
    masks(aM, vt+4)
    a(f'''
    s_mov_b32 s{sFX}, {hex(FXPERM)}
    s_lshl_b32 s{sT2}, s{sHKV}, 2
    s_lshr_b32 s{sFX}, s{sFX}, s{sT2}
    s_and_b32 s{sFX}, s{sFX}, 7
    s_lshl_b32 s{sT2}, s{sFX}, 1
    s_add_u32 s{sT2}, s{sT2}, s{sB}                 ; 2*xcd + (j>>4)
    s_add_u32 s{sT3}, s{sFX}, 6
    s_cmp_lt_u32 s{sFX}, 6
    s_cselect_b32 s{sT3}, s{sT2}, s{sT3}            ; ct128
    s_cselect_b32 s{sF1}, 1, 0
    s_cmp_lt_u32 s{sJ}, 16
    s_cselect_b32 s{sF1}, 1, s{sF1}
    s_mul_i32 s{sT4}, s{sC}, 28                     ; r0 = 28*pi
    s_mul_i32 s{sU}, s{sT4}, 3584
    s_lshl_b32 s{sOI}, s{sT3}, 8
    s_add_u32 s{sU}, s{sU}, s{sOI}
    s_add_u32 s{sW1}, s{sW1}, s{sU}
    s_addc_u32 s{sW1+1}, s{sW1+1}, 0
    v_mul_u32_u24 v{aW1off}, 3584, v{vKS}
    v_lshl_add_u32 v{aW1off}, v{vN}, 4, v{aW1off}
    s_mul_i32 s{sU}, s{sC}, 14336
    s_lshl_b32 s{sOI}, s{sT3}, 9
    s_add_u32 s{sU}, s{sU}, s{sOI}
    s_add_u32 s{sU}, s{sU}, {WS_HP}
    v_lshrrev_b32 v{vt+7}, 5, v{vL}
    v_mul_u32_u24 v{aHP}, 7168, v{vt+7}
    v_and_b32 v{vt+8}, 31, v{vL}
    v_lshl_add_u32 v{aHP}, v{vt+8}, 4, v{aHP}
    v_add_u32 v{aHP}, s{sU}, v{aHP}
    v_mul_u32_u24 v{aXd}, 896, v{vt+3}
    v_lshl_add_u32 v{aXd}, v{vKS}, 1, v{aXd}
    s_lshl_b32 s{sU}, s{sT4}, 1
    v_add_u32 v{aXd}, s{sU}, v{aXd}
    s_lshl_b32 s{sU}, s{sFX}, 3
    s_lshl_b32 s{sT2}, s{sFX}, 2
    s_add_u32 s{sT2}, s{sT2}, 24
    s_cmp_lt_u32 s{sFX}, 6
    s_cselect_b32 s{sU}, s{sU}, s{sT2}
    s_cselect_b32 s{sHASF2}, 1, 0
    s_add_u32 s{sU}, s{sU}, s{sRG}
    s_cmp_lt_u32 s{sRG}, 4
    s_cselect_b32 s{sHASF2}, 1, s{sHASF2}
    s_min_u32 s{sU}, s{sU}, 55
    s_lshr_b32 s{sT2}, s{sU}, 2
    s_lshl_b32 s{sT2}, s{sT2}, 7
    s_and_b32 s{sT3}, s{sU}, 1
    s_lshl_b32 s{sT3}, s{sT3}, 6
    s_add_u32 s{sT2}, s{sT2}, s{sT3}
    s_bfe_u32 s{sT3}, s{sU}, 0x10001
    s_lshl_b32 s{sT3}, s{sT3}, 2
    s_add_u32 s{sT2}, s{sT2}, s{sT3}
    s_mul_i32 s{sT2}, s{sT2}, 896
    s_lshl_b32 s{sT3}, s{sCT}, 8
    s_add_u32 s{sT2}, s{sT2}, s{sT3}
    s_add_u32 s{sW2}, s{sW2}, s{sT2}
    s_addc_u32 s{sW2+1}, s{sW2+1}, 0
    v_and_b32 v{vt+8}, s{sEXW}, v{vN}
    v_mul_u32_u24 v{aW2off}, 896, v{vKS}
    v_lshl_add_u32 v{aW2off}, v{vt+8}, 4, v{aW2off}
    ; H poll address: pi*14336 + b*7168 + u*128 + slot*16 ; pi = 4k + (l>>4), b = (l>>3)&1, slot = l&7
    v_mul_u32_u24 v{aAh}, 14336, v{vKS}
    v_mul_u32_u24 v{vt+8}, 7168, v{vt+3}
    v_add_u32 v{aAh}, v{aAh}, v{vt+8}
    v_and_b32 v{vt+8}, 7, v{vL}
    v_lshl_add_u32 v{aAh}, v{vt+8}, 4, v{aAh}
    s_lshl_b32 s{sT2}, s{sU}, 7
    s_add_u32 s{sT2}, s{sT2}, {WS_HP}
    v_add_u32 v{aAh}, s{sT2}, v{aAh}
    v_and_b32 v{vt+8}, 1, v{vKS}
    v_lshlrev_b32 v{vt+8}, 4, v{vt+8}
    v_lshl_add_u32 v{vt+8}, v{vN}, 5, v{vt+8}
    v_lshl_add_u32 v{aFw}, v{vt+7}, 9, v{vt+8}
    v_cmp_eq_u32 vcc, 1, v{vt+1}
    ''')
    vm.wait('gw')
    stamp('qready')
    if not o['e_late']: a(f'v_add_u32 v{vT}, 0x01010101, v{vT}')
    for s in range(7):
        a(f'ds_read_b128 v[{vXB+4*s}:{vXB+4*s+3}], v{vXr} offset:{X_LDS + 64*s}')
    for s in range(7):
        wa = vWA + 16*(s & 1)
        vm.wait(f'wq{2*s+1}')
        if o['b1'] and o.get('b1_after') == 2*s+1: a('s_barrier')
        for cg in range(2):
            for hf in range(2):
                a(f'ds_read_b64_tr_b16 v[{wa+8*cg+2*hf}:{wa+8*cg+2*hf+1}], v{vTr} offset:{WQ_LDS + s*2048 + hf*256 + cg*32}')
        a('s_waitcnt lgkmcnt(0)')
        for cg in range(2):
            d = vD0 if cg == 0 else vD1
            c_ = '0' if s == 0 else f'v[{d}:{d+3}]'
            a(f'v_mfma_f32_16x16x32_bf16 v[{d}:{d+3}], v[{wa+8*cg}:{wa+8*cg+3}], v[{vXB+4*s}:{vXB+4*s+3}], {c_}')
    stamp('a_wq')
    if o['e_late']:
        vm.wait('E'); a(f'v_add_u32 v{vT}, 0x01010101, v{vT}')
    for k in range(4):
        a(f'v_cndmask_b32 v{vD0+k}, v{vD0+k}, v{vD1+k}, vcc')
    tag_insert([vD0, vD0+1, vD0+2, vD0+3])
    a('s_mov_b32 exec_lo, 0x03030303\ns_mov_b32 exec_hi, 0x03030303')
    publish(vm, aQP, vD0, 'qpub')
    a('s_mov_b64 exec, -1')
    stamp('kdone')
    if o['aux_lowprio']: a('s_setprio 0')
    if o['fast'] and o['prewrite']:
        a(f'''
    s_cmp_eq_u32 s{sF1}, 0
    s_cbranch_scc1 L_a_nopw
    ''')
        for k in range(4): a(f'v_xor_b32 v{vt+12+k}, 0x80808080, v{vT}')
        for k in range(4): a(f'v_perm_b32 v{vt+12+k}, v{vt+12+k}, v{vt+12+k}, s{sSEL+k}')
        a(f'global_store_dwordx4 v{aHP}, v[{vt+12}:{vt+15}], {WS}')
        a('L_a_nopw:')
    g0 = vXB
    a(f'''
    v_mov_b32 v{vt+8}, 0
    v_mov_b32 v{vt+9}, 0
    s_mov_b32 exec_lo, -1
    s_mov_b32 exec_hi, 0x00ffffff
    ds_read_b128 v[{g0}:{g0+3}], v{vA16} offset:{X_LDS}
    ds_read_b128 v[{g0+4}:{g0+7}], v{vA16} offset:{X_LDS+896}
    ds_read_b128 v[{g0+8}:{g0+11}], v{vA16} offset:{GW_LDS}
    s_waitcnt lgkmcnt(0)
    ''')
    for k in range(4):
        a(f'v_dot2_f32_bf16 v{vt+8}, v{g0+k}, v{g0+8+k}, v{vt+8}')
        a(f'v_dot2_f32_bf16 v{vt+9}, v{g0+4+k}, v{g0+8+k}, v{vt+9}')
    a('s_mov_b64 exec, -1')
    for g in range(7):
        a(f'ds_read_u16 v{g0+12+g}, v{aXd} offset:{X_LDS + 8*g}')
    for n in (8, 4, 2, 1):
        for r in (vt+8, vt+9):
            a(f'v_add_f32_dpp v{r}, v{r}, v{r} row_ror:{n} row_mask:0xf bank_mask:0xf')
    allreduce_rows('v_add_f32', vt+8, vt+10)
    allreduce_rows('v_add_f32', vt+9, vt+10)
    a(f'''
    v_and_b32 v{vt+10}, 1, v{vL}
    v_cmp_eq_u32 vcc, 1, v{vt+10}
    v_cndmask_b32 v{vt+8}, v{vt+8}, v{vt+9}, vcc
    v_cvt_pk_bf16_f32 v{vt+8}, v{vt+8}, v{vt+8}
    v_lshlrev_b32 v{vt+8}, 16, v{vt+8}
    v_mul_f32 v{vt+8}, {hex(f2u(-LOG2E))}, v{vt+8}
    v_exp_f32 v{vt+8}, v{vt+8}
    v_add_f32 v{vt+8}, 1.0, v{vt+8}
    v_rcp_f32 v{vt+8}, v{vt+8}
    v_cvt_pk_bf16_f32 v{vt+8}, v{vt+8}, v{vt+8}
    v_lshlrev_b32 v{vt+8}, 16, v{vt+8}
    v_sub_f32 v{vt+9}, 1.0, v{vt+8}
    v_cvt_pk_bf16_f32 v{vt+9}, v{vt+9}, v{vt+9}
    v_lshlrev_b32 v{vt+9}, 16, v{vt+9}
    v_lshlrev_b32 v{vt+10}, 2, v{vt+10}
    s_mov_b64 exec, 3
    ds_write_b32 v{vt+10}, v{vt+8} offset:{G_LDS}
    s_mov_b64 exec, -1
    v_readlane_b32 s{sT2}, v{vt+9}, 0
    v_readlane_b32 s{sT3}, v{vt+9}, 1
    v_cmp_gt_u32 vcc, 32, v{vL}
    v_mov_b32 v{vt+11}, s{sT3}
    v_mov_b32 v{vt+12}, s{sT2}
    v_cndmask_b32 v{vt+11}, v{vt+11}, v{vt+12}, vcc
    s_waitcnt lgkmcnt(0)
    ''')
    for g in range(7):
        a(f'v_lshl_or_b32 v{g0+12+g}, v{g0+12+g}, 16, v{g0+12+g}')
    for g in range(7):
        for k in range(4):
            a(f'v_and_b32 v{aXA+4*g+k}, v{g0+12+g}, v{aM+k}')
    stamp('qpoll')
    a('s_barrier')
    a(f'''
    s_cmp_eq_u32 s{sF1}, 0
    s_cbranch_scc1 L_a_none
    ''')
    for g in range(7):
        a(f'global_load_dwordx4 v[{aW1+4*g}:{aW1+4*g+3}], v{aW1off}, s[{sW1}:{sW1+1}]{NT("w1")}')
        vm.issue(f'w1_{g}')
        if g < 6:
            a(f's_add_u32 s{sW1}, s{sW1}, {4*3584}\ns_addc_u32 s{sW1+1}, s{sW1+1}, 0')
    def w2loads():
        for g in range(8):
            a(f'global_load_dwordx4 v[{aW2+4*g}:{aW2+4*g+3}], v{aW2off}, s[{sW2}:{sW2+1}]{NT("w2")}')
            vm.issue(f'w2_{g}')
            if g < 7:
                a(f's_add_u32 s{sW2}, s{sW2}, {8*896}\ns_addc_u32 s{sW2+1}, s{sW2+1}, 0')
    if o.get('w2_at', 'bq') == 'bq': w2loads()
    a('s_barrier')
    vm.wait('w1_6')
    stamp('vdone')
    for g in range(7):
        c_ = '0' if g == 0 else f'v[{vD0}:{vD0+3}]'
        a(f'v_mfma_f32_16x16x32_bf16 v[{vD0}:{vD0+3}], v[{aXA+4*g}:{aXA+4*g+3}], v[{aW1+4*g}:{aW1+4*g+3}], {c_}')
    tag_insert([vD0, vD0+1, vD0+2, vD0+3])
    publish(vm, aHP, vD0, 'hpub', lazy=True)
    stamp('opub')
    if o.get('w2_at', 'bq') == 'pub': w2loads()
    if o['h_delay']: vm.wait(o['h_delay'])
    def hloads(base):
        for k in range(4):
            a(f'v_add_u32 v{vt+12}, {4*k*14336}, v{aAh}\nglobal_load_dwordx4 v[{aH+4*k}:{aH+4*k+3}], v{vt+12}, {base} sc1')
    cc4 = [vt, vt+1, vt+2, vt+3]
    def hchecks():
        for k in range(4):
            for ln in chk(aH+4*k, vt+4, vt+5, cc4[k]): a(ln)
        a(f'v_or3_b32 v{vt}, v{vt}, v{vt+1}, v{vt+2}\nv_or_b32 v{vt}, v{vt}, v{vt+3}')
    hloads(FIRST)
    for k in range(4): vm.issue(f'H{k}')
    if o.get('w2_at', 'bq') == 'poll': w2loads()
    vm.wait('H3')
    stamp('h2f')
    hchecks()
    a(f'''
    v_cmp_ne_u32 vcc, 0, v{vt}
    s_cbranch_vccz L_ah_ok
    ''')
    retry_loop('L_ah_r', hloads, hchecks, vt, 'L_ah_ok', own_b=(aHP, vD0))
    a('L_ah_ok:\ns_mov_b64 exec, -1')
    if o['fast'] and o['lazy_b']:
        publish_b(aHP, vD0); vm.issue('hpub_b')
    stamp('h2'); note(15, 1, sSPIN)
    a(f'''
    v_pk_add_f32 v[{aH}:{aH+1}], v[{aH}:{aH+1}], v[{aH+4}:{aH+5}]
    v_pk_add_f32 v[{aH+2}:{aH+3}], v[{aH+2}:{aH+3}], v[{aH+6}:{aH+7}]
    v_pk_add_f32 v[{aH+8}:{aH+9}], v[{aH+8}:{aH+9}], v[{aH+12}:{aH+13}]
    v_pk_add_f32 v[{aH+10}:{aH+11}], v[{aH+10}:{aH+11}], v[{aH+14}:{aH+15}]
    v_pk_add_f32 v[{aH}:{aH+1}], v[{aH}:{aH+1}], v[{aH+8}:{aH+9}]
    v_pk_add_f32 v[{aH+2}:{aH+3}], v[{aH+2}:{aH+3}], v[{aH+10}:{aH+11}]
    v_permlane32_swap_b32 v{aH}, v{aH+2}
    v_permlane32_swap_b32 v{aH+1}, v{aH+3}
    v_add_f32 v{aH}, v{aH}, v{aH+2}
    v_add_f32 v{aH+1}, v{aH+1}, v{aH+3}
    v_permlane16_swap_b32 v{aH}, v{aH+1}
    v_add_f32 v{aH}, v{aH}, v{aH+1}
    v_max_f32 v{aH}, 0, v{aH}
    v_cvt_pk_bf16_f32 v{aH}, v{aH}, v{aH}
    ''')
    for g in range(8):
        A = aA + 4*(g & 1)
        tb = aH + 1 + (g & 1)
        a(f'v_mov_b32_dpp v{tb}, v{aH} row_newbcast:{g} row_mask:0xf bank_mask:0x3')
        a(f'v_mov_b32_dpp v{tb}, v{aH} row_newbcast:{8+g} row_mask:0xf bank_mask:0xc')
        for k in range(4):
            a(f'v_and_b32 v{A+k}, v{tb}, v{aM+k}')
        vm.wait(f'w2_{g}')
        c_ = '0' if g == 0 else f'v[{vD1}:{vD1+3}]'
        a(f'v_mfma_f32_16x16x32_bf16 v[{vD1}:{vD1+3}], v[{A}:{A+3}], v[{aW2+4*g}:{aW2+4*g+3}], {c_}')
    for k in range(4):
        a(f'v_mul_f32 v{vD1+k}, v{vt+11}, v{vD1+k}')
    a(f'''
L_a_wr:
    ds_write_b128 v{aFw}, v[{vD1}:{vD1+3}] offset:{F5_LDS}
    s_waitcnt lgkmcnt(0)
    ''')
    stamp('fpub')
    a(f'''
    s_barrier
    s_branch L_fin
L_a_none:
    v_mov_b32 v{vD1}, 0
    v_mov_b32 v{vD1+1}, 0
    v_mov_b32 v{vD1+2}, 0
    v_mov_b32 v{vD1+3}, 0
    s_barrier
    s_branch L_a_wr
    ''')
    a('L_fin:')
    if o['probe']:
        pname, K = o['probe']
        i = SI[pname]
        a(f'''
    s_waitcnt lgkmcnt(0)
    s_cmp_lg_u32 s3, 0
    s_cbranch_scc1 L_end
    v_mov_b32 v4, 0
    s_mov_b64 exec, 1
    v_mov_b32 v6, s64
    v_not_b32 v6, v6
    global_atomic_umax v4, v6, s[{sDBG}:{sDBG+1}] sc1
    v_mov_b32 v7, s{64+2*i}
    global_atomic_umax v4, v7, s[{sDBG}:{sDBG+1}] offset:4 sc1
    s_waitcnt vmcnt(0)
    v_mov_b32 v8, 1
    global_atomic_add v9, v4, v8, s[{sDBG}:{sDBG+1}] offset:8 sc0 sc1
    s_waitcnt vmcnt(0)
    v_readfirstlane_b32 s60, v9
    s_cmp_lg_u32 s60, 255
    s_cbranch_scc1 L_end
    global_load_dwordx2 v[10:11], v4, s[{sDBG}:{sDBG+1}] sc1
    s_waitcnt vmcnt(0)
    v_readfirstlane_b32 s60, v10
    v_readfirstlane_b32 s61, v11
    s_not_b32 s60, s60
    s_sub_u32 s61, s61, s60
    s_min_u32 s61, s61, 5000
    v_mov_b32 v12, s61
    global_store_dword v4, v12, s[{sDBG}:{sDBG+1}] offset:12 sc1
    s_mul_i32 s61, s61, {K}
    s_memrealtime s[62:63]
    s_waitcnt lgkmcnt(0)
    s_add_u32 s61, s61, s62
L_probe_spin:
    s_memrealtime s[62:63]
    s_waitcnt lgkmcnt(0)
    s_sub_u32 s60, s61, s62
    s_cmp_gt_i32 s60, 0
    s_cbranch_scc1 L_probe_spin
    ''')
    elif o['stamps']:
        a(f'''
    s_waitcnt lgkmcnt(0)
    s_lshl_b32 s{sT0}, s2, 10
    s_lshl_b32 s{sT1}, s3, 7
    s_add_u32 s{sT0}, s{sT0}, s{sT1}
    s_add_u32 s{sT0}, s{sT0}, {WS_STAMP}
    v_mov_b32 v4, s{sT0}
    s_mov_b64 exec, 1
    ''')
        for i in range(16):
            a(f'''
    v_mov_b32 v6, s{64+2*i}
    v_mov_b32 v7, s{65+2*i}
    global_store_dwordx2 v4, v[6:7], {WS} offset:{8*i}
    s_nop 1
    ''')
    a('''
L_end:
    s_endpgm
    ''')
    body, n = hazard.fix(a.text())
    return wrap(body, (256,1,1), (320,1,1), LDS_BYTES, vgpr=NV, sgpr=102), STAMPS

if __name__ == '__main__':
    opts = json.loads(sys.argv[2]) if len(sys.argv) > 2 else {}
    s, names = gen(opts)
    open(sys.argv[1], 'w').write(s)
```

```python
import sys, json, struct
from asmgen import *
import hazard

WS_EPOCH = 0x0
WS_QP    = 0x1000
WS_HP    = 0x20000
WS_FP    = 0x60000
WS_REG   = 0xA0000
WS_OP    = 0x100000
WS_ALT   = 0x200000
WS_STAMP = 0x1000000
K_LDS  = 0
WQ_LDS = 32768
F5_LDS = WQ_LDS
X_LDS  = 47104
GW_LDS = 49152
Q_LDS  = 50176
G_LDS  = 51200
MX_LDS = 51216
LS_LDS = 51248
PV_LDS = 51280
LDS_BYTES = 51328

LOG2E = 1.4426950408889634
def f2u(x): return struct.unpack('<I', struct.pack('<f', x))[0]

DEFAULTS = dict(probe=None, stamps=False, round_scores=True, spin=20000, b1=True, prio=True, W=5, npre=4, vmode='k6', placechk=True, h3_ack=True, h3_pipe=1, ffn_light=(6, 7), aux_lowprio=True, e_sc1=True, e_late=False, xnt=False,
                nt_wq=True, nt_k=True, nt_v=True, nt_wo=True, nt_w1=True, nt_w2=True,
                wo_at=['bq', 'qk', 'sm', 'pv'],
                o_delay='wo3',
                h_delay='w2_7', fast=True, aevery=16, rot='hkv+c', prewrite=False, lazy_b=False, W2=None)
STAMPS = ['start', 'karg', 'h2f', 'kdone', 'qpoll', 'qready', 'qk', 'vdone', 'pv', 'opub', 'h2', 'fpub', 'h3', 'end', 'a_wq', 'a_x']

class VM:
    def __init__(self, a): self.a = a; self.ops = []
    def issue(self, name): self.ops.append(name)
    def wait(self, name):
        i = max(k for k, n in enumerate(self.ops) if n == name)
        self.a(f's_waitcnt vmcnt({len(self.ops) - 1 - i})')
    def waitall(self): self.a('s_waitcnt vmcnt(0)')

def gen(opts):
    o = dict(DEFAULTS); o.update(opts)
    if o['probe']: o['stamps'] = True
    def NT(k): return ' nt' if o['nt_' + k] else ''
    a = Asm()
    SI = {n: i for i, n in enumerate(STAMPS)}
    def stamp(name):
        if o['stamps']:
            i = SI[name]
            a(f's_memrealtime s[{64+2*i}:{65+2*i}]')
    def note(slot, half, sreg):
        if o['stamps']: a(f's_mov_b32 s{64+2*slot+half}, s{sreg}')
    sX, sK, sV, sWQ, sWO, sW1, sW2, sGW, sOUT, sDBG, sWS = 4, 6, 8, 10, 12, 16, 18, 20, 22, 24, 26
    sDUM = 98
    sPV = 100
    sMK = 101
    sWSB = 14
    sHKV, sJ, sB, sC = 28, 29, 30, 31
    sT0, sT1, sT2, sT3 = 32, 33, 34, 35
    sWO2 = 36; sKM = 38; sOI = 39
    sSEL = 40; sCHA, sCHB = 44, 45
    sSPIN = 46; sT4 = 47
    sKB, sVB = 48, 50
    sRG, sCT, sU = 52, 53, 54
    sH3 = 55
    sMSK = 56
    sC2 = 59; sF1 = 58; sROT = 63; sFX = 57
    light = list(o['ffn_light']); heavy = [x for x in range(8) if x not in light]
    FXPERM = 0
    for i_, x_ in enumerate(heavy + light): FXPERM |= i_ << (4*x_)
    sEXW = 60
    sHASF2 = 62
    WS = f's[{sWS}:{sWS+1}]'; WSB = f's[{sWSB}:{sWSB+1}]'
    vL, vN, vKS, vT = 0, 1, 2, 3

    def tag_insert(regs):
        for i, r in enumerate(regs):
            a(f'v_perm_b32 v{r}, v{r}, v{vT}, s{sSEL+i}')
    def chk(base, ca, cb, dst):
        return [f'v_perm_b32 v{ca}, v{base+1}, v{base}, s{sCHA}', f'v_perm_b32 v{cb}, v{base+3}, v{base+2}, s{sCHB}',
                f'v_bitop3_b32 v{dst}, v{ca}, v{cb}, v{vT} bitop3:0x56']
    def tag_check(base, tmp, dst):
        for ln in chk(base, tmp, tmp+1, dst): a(ln)
    def untag(regs):
        for r in regs: a(f'v_and_b32 v{r}, s{sMK}, v{r}')
    def allreduce_rows(op, r, t):
        a(f'v_mov_b32 v{t}, v{r}')
        a(f'v_permlane16_swap_b32 v{t}, v{r}')
        a(f'{op} v{r}, v{r}, v{t}')
        a(f'v_mov_b32 v{t}, v{r}')
        a(f'v_permlane32_swap_b32 v{t}, v{r}')
        a(f'{op} v{r}, v{r}, v{t}')
    def masks(dst, t):
        a(f'''
    v_and_b32 v{t}, 1, v{vL}
    v_cmp_eq_u32 vcc, 1, v{t}
    v_mov_b32 v{t+1}, 0xffff
    v_mov_b32 v{t+2}, 0xffff0000
    v_cndmask_b32 v{t+1}, v{t+1}, v{t+2}, vcc
    v_bfe_u32 v{t+2}, v{vL}, 1, 2
    ''')
        for k in range(4):
            a(f'''
    v_cmp_eq_u32 vcc, {k}, v{t+2}
    v_cndmask_b32 v{dst+k}, 0, v{t+1}, vcc
    ''')
    def publish_b(vaddr, data):
        a(f'global_store_dwordx4 v{vaddr}, v[{data}:{data+3}], {WSB} sc1')
    def publish(vm, vaddr, data, name, lazy=False):
        if o['fast']:
            if o.get('noa'):
                a(f'global_store_dwordx4 v{vaddr}, v[{data}:{data+3}], {WS} offset:0' .replace(WS, f's[{sDUM}:{sDUM+1}]'))
            else:
                a(f'global_store_dwordx4 v{vaddr}, v[{data}:{data+3}], {WS}')
            vm.issue(name + '_a')
        if lazy and o['fast'] and o['placechk']:
            vm.ops[-1] = name
            a(f's_cmp_lg_u32 s{sPV}, 0\ns_cbranch_scc1 L_skipb_{name}')
            a(f'global_store_dwordx4 v{vaddr}, v[{data}:{data+3}], {WSB} sc1')
            a(f'L_skipb_{name}:')
            return
        if lazy and o['fast'] and o['lazy_b']:
            vm.ops[-1] = name
            return
        if o.get('nob'):
            vm.ops[-1] = name
            return
        a(f'global_store_dwordx4 v{vaddr}, v[{data}:{data+3}], {WSB} sc1'); vm.issue(name)
    def retry_loop(label, loads, checks, bad, okl, own_b=None):
        a(f'''
{label}:
    s_sub_u32 s{sSPIN}, s{sSPIN}, 1
    s_cmp_eq_u32 s{sSPIN}, 0
    s_cbranch_scc1 {okl}
    s_mov_b64 exec, vcc
    ''')
        if o['fast']:
            a(f'''
    s_and_b32 s{sT0}, s{sSPIN}, {o['aevery']-1}
    s_cmp_eq_u32 s{sT0}, 0
    s_cbranch_scc1 {label}_b
    ''')
            loads(WS)
            a(f's_branch {label}_c\n{label}_b:')
            if own_b and o['lazy_b']:
                a('s_mov_b64 exec, -1')
                publish_b(*own_b)
                a('s_mov_b64 exec, vcc')
        loads(WSB)
        a(f'{label}_c:\ns_waitcnt vmcnt(0)')
        checks()
        a(f'''
    v_cmp_ne_u32 vcc, 0, v{bad}
    s_cbranch_vccnz {label}
    ''')
    FIRST = WS if o['fast'] else WSB

    stamp('start')
    a(f'''
    s_cmp_ge_u32 s2, 256
    s_cbranch_scc1 L_end
    s_load_dwordx16 s[4:19], s[0:1], 0
    s_load_dwordx8 s[20:27], s[0:1], 64
    v_lshrrev_b32 v4, 6, v0
    v_and_b32 v{vL}, 63, v0
    v_readfirstlane_b32 s3, v4
    v_and_b32 v{vN}, 15, v{vL}
    v_lshrrev_b32 v{vKS}, 4, v{vL}
    s_and_b32 s{sHKV}, s2, 7
    s_lshr_b32 s{sJ}, s2, 3
    s_lshr_b32 s{sB}, s{sJ}, 4
    s_and_b32 s{sC}, s{sJ}, 15
    s_lshr_b32 s{sRG}, s{sJ}, 2
    s_and_b32 s{sCT}, s{sJ}, 3
    s_mov_b32 s{sSEL}, 0x07060500
    s_mov_b32 s{sSEL+1}, 0x07060501
    s_mov_b32 s{sSEL+2}, 0x07060502
    s_mov_b32 s{sSEL+3}, 0x07060503
    s_mov_b32 s{sCHA}, 0x0c0c0400
    s_mov_b32 s{sCHB}, 0x04000c0c
    s_mov_b32 s{sMK}, 0xffffff00
    s_mov_b32 s{sSPIN}, {o['spin']}
    s_cmp_eq_u32 s{sCT}, 3
    s_cselect_b32 s{sEXW}, 7, 15
    s_cmp_eq_u32 s3, 4
    s_cbranch_scc1 L_aux
    ''')

    vm = VM(a)
    vM = 4
    vVoff, vWoff, vQrd, vKrd, vQpoll, vQw = 8, 9, 10, 11, 12, 13
    vOw, vOr, vOP, vAd, vFw, vFr, vFP, vH3, vOut = 14, 15, 16, 17, 18, 19, 20, 21, 22
    vV = 24
    vWO = 56
    vKop = 72
    vQop = 104
    vPA = 72
    vAcc = 88
    vO = 96
    vS = 136
    vTmp = 140
    vMXa, vGf = 160, 161
    NV = 168
    vKoff = vQop
    a(f'''
    v_lshrrev_b32 v{vTmp}, 5, v{vL}                 ; hi
    v_and_b32 v{vTmp+1}, 31, v{vL}                  ; u
    v_xor_b32 v{vTmp+2}, v{vTmp+1}, v{vTmp}
    v_lshlrev_b32 v{vTmp+2}, 4, v{vTmp+2}
    v_lshl_add_u32 v{vKoff}, v{vTmp}, 9, v{vTmp+2}
    v_lshlrev_b32 v{vTmp+3}, 4, v{vN}               ; n*16
    v_lshl_add_u32 v{vVoff}, v{vKS}, 11, v{vTmp+3}
    s_lshl_b32 s{sT0}, s3, 13                       ; w*8192
    s_lshl_b32 s{sT1}, s{sB}, 3
    s_add_u32 s{sT1}, s{sT1}, s{sHKV}
    s_lshl_b32 s{sT1}, s{sT1}, 21
    s_add_u32 s{sT1}, s{sT1}, 1572864
    s_lshl_b32 s{sT2}, s{sC}, 15
    s_add_u32 s{sT1}, s{sT1}, s{sT2}
    s_add_u32 s{sT1}, s{sT1}, s{sT0}
    s_mov_b32 s{sC2}, {hex(f2u(LOG2E/16.0))}
    v_mov_b32 v{vTmp+4}, 0
    ''')
    a({'hkv+c': f's_add_u32 s{sROT}, s{sHKV}, s{sC}\ns_and_b32 s{sROT}, s{sROT}, 7',
       'c': f's_and_b32 s{sROT}, s{sC}, 7',
       'hkvb': f's_lshl_b32 s{sROT}, s{sB}, 2\ns_xor_b32 s{sROT}, s{sROT}, s{sHKV}',
       None: f's_mov_b32 s{sROT}, 0'}[o['rot']])
    a(f'''
    s_mul_i32 s{sT2}, s{sROT}, {(1 << 10) | (1 << 5)}
    v_xor_b32 v{vKoff}, s{sT2}, v{vKoff}
    s_lshl_b32 s{sT2}, s{sROT}, 8
    v_xor_b32 v{vVoff}, s{sT2}, v{vVoff}
    s_lshl_b32 s{sT2}, s{sROT}, 10
    s_xor_b32 s{sKM}, s{sT0}, s{sT2}
    s_waitcnt lgkmcnt(0)
    ''')
    stamp('karg')
    ESC = ' sc1' if o['e_sc1'] else ''
    if not o['e_late']: a(f'global_load_dword v{vT}, v{vTmp+4}, {WS}{ESC}')
    a(f'''
    s_add_u32 s{sKB}, s{sK}, s{sT1}
    s_addc_u32 s{sKB+1}, s{sK+1}, 0
    s_add_u32 s{sVB}, s{sV}, s{sT1}
    s_addc_u32 s{sVB+1}, s{sV+1}, 0
    s_add_u32 s{sWSB}, s{sWS}, {WS_ALT}
    s_addc_u32 s{sWSB+1}, s{sWS+1}, 0
    ''')
    if o.get('noa'): a(f's_add_u32 s{sDUM}, s{sWS}, 0x800000\ns_addc_u32 s{sDUM+1}, s{sWS+1}, 0')
    if not o['e_late']: vm.issue('E')
    if o['b1']:
        a('s_barrier')
    W = o['W']
    def kload(m):
        t = vTmp + 11 + (m & 1)
        a(f's_xor_b32 m0, s{sKM}, {m << 10}')
        a(f'v_xor_b32 v{t}, {(m << 10) | (m << 5)}, v{vKoff}')
        a(f'global_load_lds_dwordx4 v{t}, s[{sKB}:{sKB+1}]{NT("k")}')
        vm.issue(f'K{m}')
    def vload(i):
        t = vTmp + 11 + (i & 1)
        a(f'v_xor_b32 v{t}, {i << 8}, v{vVoff}')
        a(f'global_load_dwordx4 v[{vV+4*i}:{vV+4*i+3}], v{t}, s[{sVB}:{sVB+1}]{NT("v")}')
        vm.issue(f'V{i}')
    vP = vTmp
    npre = o['npre']
    elems = [('K', m) for m in range(8)] + [('V', i) for i in range(npre)] + [('P', 0)] + [('V', i) for i in range(npre, 8)]
    def issue(e):
        k, i = e
        if k == 'K': kload(i)
        elif k == 'V': vload(i)
        else:
            a(f'global_load_dwordx4 v[{vP}:{vP+3}], v{vQpoll}, {FIRST} sc1'); vm.issue('P')
    for n_, e in enumerate(elems[:W]):
        issue(e)
        if o['e_late'] and n_ == 0:
            a(f'global_load_dword v{vT}, v{vTmp+4}, {WS}{ESC}'); vm.issue('E')
    t5, t6, t7 = vTmp+5, vTmp+6, vTmp+7
    a(f'''
    s_movk_i32 s{sT4}, 896
    v_and_b32 v{vWoff}, s{sEXW}, v{vN}
    v_lshlrev_b32 v{vWoff}, 4, v{vWoff}
    v_mad_u32_u24 v{vWoff}, v{vKS}, s{sT4}, v{vWoff}
    s_lshr_b32 s{sT1}, s{sROT}, 1
    v_xor_b32 v{t6}, s{sT1}, v{vN}
    v_xor_b32 v{t5}, v{vKS}, v{t6}
    v_lshlrev_b32 v{t5}, 4, v{t5}
    v_lshl_add_u32 v{vKrd}, v{t6}, 9, v{t5}
    v_add_u32 v{vKrd}, s{sT0}, v{vKrd}
    v_lshrrev_b32 v{t5}, 3, v{vN}
    v_lshlrev_b32 v{t6}, 9, v{t5}
    v_lshl_add_u32 v{vQrd}, v{vKS}, 4, v{t6}
    s_lshl_b32 s{sT1}, s3, 2
    v_lshlrev_b32 v{vMXa}, 4, v{t5}
    v_add_u32 v{vMXa}, s{sT1}, v{vMXa}              ; head*16 + w*4
    ''')
    masks(vM, t6)
    a(f'''
    ; q poll address: QP + hkv*8192 + rh*4096 + b*2048 + (32w + u)*16     rh = l>>5, u = l&31
    s_lshl_b32 s{sT1}, s{sHKV}, 13
    s_lshl_b32 s{sT2}, s{sB}, 11
    s_add_u32 s{sT1}, s{sT1}, s{sT2}
    s_lshl_b32 s{sT2}, s3, 9
    s_add_u32 s{sT1}, s{sT1}, s{sT2}
    s_add_u32 s{sT1}, s{sT1}, {WS_QP}
    v_lshlrev_b32 v{vQpoll}, 12, v{vTmp}
    v_lshl_add_u32 v{vQpoll}, v{vTmp+1}, 4, v{vQpoll}
    v_add_u32 v{vQpoll}, s{sT1}, v{vQpoll}
    s_lshl_b32 s{sT1}, s3, 8
    v_lshlrev_b32 v{vQw}, 3, v{vTmp+1}
    v_lshl_add_u32 v{vQw}, v{vTmp}, 2, v{vQw}
    v_add_u32 v{vQw}, s{sT1}, v{vQw}
    v_and_b32 v{t6}, 1, v{vKS}
    v_lshlrev_b32 v{t6}, 4, v{t6}
    v_lshl_add_u32 v{t6}, v{vN}, 5, v{t6}
    v_add_u32 v{t6}, s{sT0}, v{t6}
    v_lshl_add_u32 v{vOw}, v{vTmp}, 10, v{t6}
    s_and_b32 s{sT1}, s{sROT}, 1
    s_lshl_b32 s{sT1}, s{sT1}, 9
    v_xor_b32 v{vOw}, s{sT1}, v{vOw}
    v_lshl_add_u32 v{vFw}, v{vTmp}, 9, v{t6}
    ; publish role of wave w: h = w>>1, dblk = 8*(w&1) + (l>>3), slot = l&7
    s_lshr_b32 s{sT1}, s3, 1                        ; h
    s_and_b32 s{sT2}, s3, 1
    v_lshrrev_b32 v{t6}, 3, v{vL}                   ; l>>3
    s_lshl_b32 s{sT3}, s{sT2}, 3
    v_add_u32 v{t6}, s{sT3}, v{t6}                  ; dblk
    v_and_b32 v{t7}, 3, v{vL}                       ; slot&3
    v_lshlrev_b32 v{vOr}, 6, v{t6}
    v_lshl_add_u32 v{vOr}, v{t7}, 4, v{vOr}
    s_lshl_b32 s{sT3}, s{sT1}, 10
    v_add_u32 v{vOr}, s{sT3}, v{vOr}
    s_lshl_b32 s{sT3}, s{sHKV}, 1
    s_add_u32 s{sT3}, s{sT3}, s{sT1}
    s_lshl_b32 s{sT3}, s{sT3}, 16
    s_lshl_b32 s{sT4}, s{sB}, 11
    s_add_u32 s{sT3}, s{sT3}, s{sT4}
    s_lshl_b32 s{sT4}, s{sC}, 7
    s_add_u32 s{sT3}, s{sT3}, s{sT4}
    s_add_u32 s{sT3}, s{sT3}, {WS_OP}
    v_lshlrev_b32 v{vOP}, 12, v{t6}
    v_and_b32 v{t7}, 7, v{vL}                       ; slot
    v_lshl_add_u32 v{vOP}, v{t7}, 4, v{vOP}
    v_add_u32 v{vOP}, s{sT3}, v{vOP}
    ; H2 address
    s_lshr_b32 s{sT1}, s{sRG}, 2
    s_lshl_b32 s{sT2}, s{sHKV}, 1
    s_add_u32 s{sT1}, s{sT1}, s{sT2}
    s_and_b32 s{sT2}, s{sRG}, 3
    s_lshl_b32 s{sT2}, s{sT2}, 2
    s_add_u32 s{sT2}, s{sT2}, s3
    s_lshl_b32 s{sT3}, s{sT1}, 16
    s_lshl_b32 s{sT2}, s{sT2}, 12
    s_add_u32 s{sT3}, s{sT3}, s{sT2}
    s_add_u32 s{sT3}, s{sT3}, {WS_OP}
    v_lshlrev_b32 v{vAd}, 11, v{t5}
    v_lshl_add_u32 v{vAd}, v{vKS}, 9, v{vAd}
    v_lshl_add_u32 v{vAd}, v{t7}, 4, v{vAd}
    v_add_u32 v{vAd}, s{sT3}, v{vAd}
    v_lshlrev_b32 v{vFr}, 9, v{vTmp}
    v_lshl_add_u32 v{vFr}, v{vTmp+1}, 4, v{vFr}
    s_lshl_b32 s{sT1}, s{sHKV}, 3
    s_add_u32 s{sT1}, s{sT1}, s{sRG}
    s_lshl_b32 s{sT1}, s{sT1}, 12
    s_lshl_b32 s{sT2}, s{sCT}, 10
    s_add_u32 s{sT1}, s{sT1}, s{sT2}
    s_add_u32 s{sT1}, s{sT1}, {WS_FP}
    v_lshlrev_b32 v{vFP}, 4, v{vL}
    v_add_u32 v{vFP}, s{sT1}, v{vFP}
    ; final-stage role: line lam = (j>>3)*8 + xcd (valid < 28), member = j&7 ; b3 = lam/14, r = lam%14 ; ct3 = r>>2 (r<12) or 3 ; m = r&3 or r-12
    s_lshr_b32 s{sT1}, s{sJ}, 3
    s_lshl_b32 s{sT1}, s{sT1}, 3
    s_add_u32 s{sH3}, s{sT1}, s{sHKV}               ; lam
    s_cmp_ge_u32 s{sH3}, 14
    s_cselect_b32 s{sT2}, 1, 0                      ; b3
    s_mul_i32 s{sT3}, s{sT2}, 14
    s_sub_u32 s{sT3}, s{sH3}, s{sT3}
    s_lshl_b32 s{sT4}, s{sT3}, 3
    s_and_b32 s{sT1}, s{sJ}, 7
    s_add_u32 s{sT4}, s{sT4}, s{sT1}
    s_lshr_b32 s{sT1}, s{sT4}, 5                    ; ct3
    s_lshl_b32 s{sT1}, s{sT1}, 10
    s_and_b32 s{sT3}, s{sT4}, 31
    s_lshl_b32 s{sT3}, s{sT3}, 4
    s_add_u32 s{sT1}, s{sT1}, s{sT3}
    s_lshl_b32 s{sT3}, s{sT2}, 9
    s_add_u32 s{sT1}, s{sT1}, s{sT3}
    s_add_u32 s{sT1}, s{sT1}, {WS_FP}
    v_lshlrev_b32 v{vH3}, 12, v{vL}
    v_add_u32 v{vH3}, s{sT1}, v{vH3}
    s_mul_i32 s{sT2}, s{sT2}, 896
    s_lshl_b32 s{sT4}, s{sT4}, 3
    s_add_u32 s{sT2}, s{sT2}, s{sT4}
    v_lshlrev_b32 v{vOut}, 1, v{vKS}
    v_add_u32 v{vOut}, s{sT2}, v{vOut}
    s_lshl_b32 s{sT1}, s{sHKV}, 9
    s_lshl_b32 s{sT2}, s{sRG}, 6
    s_add_u32 s{sT1}, s{sT1}, s{sT2}
    s_lshl_b32 s{sT2}, s3, 4
    s_add_u32 s{sT1}, s{sT1}, s{sT2}
    s_mul_i32 s{sT1}, s{sT1}, 896
    s_lshl_b32 s{sT2}, s{sCT}, 8
    s_add_u32 s{sT1}, s{sT1}, s{sT2}
    s_add_u32 s{sWO}, s{sWO}, s{sT1}
    s_addc_u32 s{sWO+1}, s{sWO+1}, 0
    s_add_u32 s{sWO2}, s{sWO}, 7168
    s_addc_u32 s{sWO2+1}, s{sWO+1}, 0
    ''')
    tagdone = [False]
    def kop_reads():
        for s in range(8):
            t = vTmp + 4 + (s & 1)
            a(f'v_xor_b32 v{t}, {s << 6}, v{vKrd}')
            a(f'ds_read_b128 v[{vKop+4*s}:{vKop+4*s+3}], v{t}')
    kdone = False
    idxP = elems.index(('P', 0))
    last_pre = min(len(elems) - 1, max(idxP + W - 1, 7 + W))
    if o['vmode'] == 'k6': last_pre = len(elems) - 1
    for i in range(W, last_pre + 1):
        if o['W2'] and i > idxP + 1:
            Wi = o['W2']
            if i - Wi >= 0 and Wi <= i: a(f's_waitcnt vmcnt({min(Wi - 1, 63)})')
        else:
            a(f's_waitcnt vmcnt({W-1})')
        if not tagdone[0]:
            a(f'v_add_u32 v{vT}, 0x01010101, v{vT}'); tagdone[0] = True
            issue(elems[i])
            if o['fast'] and o['prewrite']:
                for k in range(4): a(f'v_xor_b32 v{vO+k}, 0x80808080, v{vT}')
                for k in range(4): a(f'v_perm_b32 v{vO+k}, v{vO+k}, v{vO+k}, s{sSEL+k}')
                a(f'global_store_dwordx4 v{vOP}, v[{vO}:{vO+3}], {WS}'); vm.issue('pw')
            continue
        issue(elems[i])
        if i - W >= 7 and not kdone:
            if o['W2']: vm.wait('K7')
            stamp('kdone'); kop_reads(); kdone = True
    rest = elems[last_pre + 1:]
    assert kdone
    vm.wait('P')
    if o['vmode'] == 'k7b':
        for e in rest: issue(e)
        rest = []
    a('L_h1_chk:')
    tag_check(vP, vTmp+4, vTmp+6)
    a(f'''
    v_cmp_ne_u32 vcc, 0, v{vTmp+6}
    s_cbranch_vccz L_h1_ok
    ''')
    retry_loop('L_h1_r', lambda base: a(f'global_load_dwordx4 v[{vP}:{vP+3}], v{vQpoll}, {base} sc1'),
               lambda: tag_check(vP, vTmp+4, vTmp+6), vTmp+6, 'L_h1_ok')
    a('L_h1_ok:\ns_mov_b64 exec, -1')
    stamp('qpoll'); note(14, 0, sSPIN)
    untag([vP, vP+1, vP+2, vP+3])
    a(f'''
    v_permlane32_swap_b32 v{vP}, v{vP+2}
    v_permlane32_swap_b32 v{vP+1}, v{vP+3}
    v_add_f32 v{vP}, v{vP}, v{vP+2}
    v_add_f32 v{vP+1}, v{vP+1}, v{vP+3}
    v_cvt_pk_bf16_f32 v{vP}, v{vP}, v{vP+1}
    ds_write_b32 v{vQw}, v{vP} offset:{Q_LDS}
    ''')
    for e in rest: issue(e)
    a('s_waitcnt lgkmcnt(0)\ns_barrier')
    stamp('qready')
    wo_done = [False]*4
    def wo_at(where):
        for g in range(4):
            if o['wo_at'][g] == where and not wo_done[g]:
                base = sWO if g < 2 else sWO2
                off = ' offset:3584' if g & 1 else ''
                a(f'global_load_dwordx4 v[{vWO+4*g}:{vWO+4*g+3}], v{vWoff}, s[{base}:{base+1}]{off}{NT("wo")}')
                vm.issue(f'wo{g}'); wo_done[g] = True
    for s in range(8):
        a(f'ds_read_b128 v[{vQop+4*s}:{vQop+4*s+3}], v{vQrd} offset:{Q_LDS + s*64}')
    wo_at('bq')
    for s in range(8):
        if not o['stamps']: a(f's_waitcnt lgkmcnt({7 - s})')
        elif s == 0: a('s_waitcnt lgkmcnt(0)')
        c = '0' if s == 0 else f'v[{vS}:{vS+3}]'
        a(f'v_mfma_f32_16x16x32_bf16 v[{vS}:{vS+3}], v[{vKop+4*s}:{vKop+4*s+3}], v[{vQop+4*s}:{vQop+4*s+3}], {c}')
    wo_at('qk')
    s0, s1, s2_, s3_ = vS, vS+1, vS+2, vS+3
    if o['round_scores']:
        a(f'''
    v_cvt_pk_bf16_f32 v{vTmp}, v{s0}, v{s1}
    v_cvt_pk_bf16_f32 v{vTmp+1}, v{s2_}, v{s3_}
    v_lshlrev_b32 v{s0}, 16, v{vTmp}
    v_and_b32 v{s1}, 0xffff0000, v{vTmp}
    v_lshlrev_b32 v{s2_}, 16, v{vTmp+1}
    v_and_b32 v{s3_}, 0xffff0000, v{vTmp+1}
    ''')
    vMx, vLs = vTmp+2, vTmp+3
    a(f'''
    v_max3_f32 v{vMx}, v{s0}, v{s1}, v{s2_}
    v_max_f32 v{vMx}, v{vMx}, v{s3_}
    ''')
    allreduce_rows('v_max_f32', vMx, vTmp)
    wo_at('b3')
    a(f'''
    v_mul_f32 v{vMx}, s{sC2}, v{vMx}
    v_fma_f32 v{s0}, v{s0}, s{sC2}, -v{vMx}
    v_fma_f32 v{s1}, v{s1}, s{sC2}, -v{vMx}
    v_fma_f32 v{s2_}, v{s2_}, s{sC2}, -v{vMx}
    v_fma_f32 v{s3_}, v{s3_}, s{sC2}, -v{vMx}
    v_exp_f32 v{s0}, v{s0}
    v_exp_f32 v{s1}, v{s1}
    v_exp_f32 v{s2_}, v{s2_}
    v_exp_f32 v{s3_}, v{s3_}
    ''')
    for r in range(4):
        a(f'v_cvt_pk_bf16_f32 v{vTmp+4+r}, v{vS+r}, v{vS+r}')
    def pa(r):
        for k in range(4):
            a(f'v_and_b32 v{vPA+4*r+k}, v{vTmp+4+r}, v{vM+k}')
    def pv(r):
        for h in range(2):
            c = '0' if r == 0 else f'v[{vAcc+4*h}:{vAcc+4*h+3}]'
            i = r*2+h
            a(f'v_mfma_f32_16x16x32_bf16 v[{vAcc+4*h}:{vAcc+4*h+3}], v[{vPA+4*r}:{vPA+4*r+3}], v[{vV+4*i}:{vV+4*i+3}], {c}')
    wo_at('sm')
    pa(0)
    stamp('qk')
    for r in range(4):
        vm.wait(f'V{2*r+1}')
        if r == 3: stamp('vdone')
        pv(r)
        if r < 3: pa(r + 1)
        if r == 0:
            a(f'''
    v_add_f32 v{vLs}, v{s0}, v{s1}
    v_add_f32 v{vTmp+8}, v{s2_}, v{s3_}
    v_add_f32 v{vLs}, v{vLs}, v{vTmp+8}
    ''')
        if r == 1:
            allreduce_rows('v_add_f32', vLs, vTmp)
        if r == 2:
            a(f'''
    s_mov_b32 exec_lo, 0x101
    s_mov_b32 exec_hi, 0
    ds_write_b32 v{vMXa}, v{vMx} offset:{MX_LDS}
    ds_write_b32 v{vMXa}, v{vLs} offset:{LS_LDS}
    s_mov_b64 exec, -1
    ''')
    wo_at('pv')
    MS = f's[{sMSK}:{sMSK+1}]'
    a(f'''
    v_xor_b32 v{vTmp+11}, 512, v{vOw}
    s_lshr_b32 s{sT0}, s3, 1
    s_lshl_b32 s{sT0}, s{sT0}, 4
    v_mov_b32 v{vTmp+9}, s{sT0}                     ; h*16
    v_lshrrev_b32 v{vTmp+8}, 3, v{vN}
    v_lshlrev_b32 v{vTmp+8}, 2, v{vTmp+8}
    ds_read_b32 v{vGf}, v{vTmp+8} offset:{G_LDS}
    v_and_b32 v{vTmp+10}, 4, v{vL}
    v_cmp_ne_u32 {MS}, 0, v{vTmp+10}                ; slot >= 4
    ds_write_b128 v{vOw}, v[{vAcc}:{vAcc+3}]
    ds_write_b128 v{vTmp+11}, v[{vAcc+4}:{vAcc+7}]
    s_waitcnt lgkmcnt(0)
    s_barrier
    ''')
    stamp('pv')
    vMw, vLw = vTmp, vTmp+4
    vFw4 = [vTmp+12, vTmp+14, vTmp+16, vTmp+18]
    a(f'''
    ds_read_b128 v[{vMw}:{vMw+3}], v{vTmp+9} offset:{MX_LDS}
    ds_read_b128 v[{vLw}:{vLw+3}], v{vTmp+9} offset:{LS_LDS}
    ''')
    if o['placechk']:
        a(f'v_mov_b32 v{vTmp+10}, 0\nds_read_b32 v{vTmp+10}, v{vTmp+10} offset:{PV_LDS}')
    for ww in range(4):
        a(f'ds_read_b128 v[{vO+4*ww}:{vO+4*ww+3}], v{vOr} offset:{8192*ww}')
    a('s_waitcnt lgkmcnt(4)' if not o['stamps'] else 's_waitcnt lgkmcnt(0)')
    if o['placechk']: a(f'v_readfirstlane_b32 s{sPV}, v{vTmp+10}')
    a(f'''
    v_max3_f32 v{vTmp+8}, v{vMw}, v{vMw+1}, v{vMw+2}
    v_max_f32 v{vTmp+8}, v{vTmp+8}, v{vMw+3}        ; M
    ''')
    for ww in range(4): a(f'v_sub_f32 v{vFw4[ww]}, v{vMw+ww}, v{vTmp+8}')
    for ww in range(4): a(f'v_exp_f32 v{vFw4[ww]}, v{vFw4[ww]}')
    a(f'v_mul_f32 v{vTmp+9}, v{vFw4[0]}, v{vLw}')
    for ww in range(1, 4): a(f'v_fmac_f32 v{vTmp+9}, v{vFw4[ww]}, v{vLw+ww}')
    a('s_waitcnt lgkmcnt(0)')
    a(f'v_pk_mul_f32 v[{vO}:{vO+1}], v[{vO}:{vO+1}], v[{vFw4[0]}:{vFw4[0]+1}] op_sel_hi:[1,0]')
    a(f'v_pk_mul_f32 v[{vO+2}:{vO+3}], v[{vO+2}:{vO+3}], v[{vFw4[0]}:{vFw4[0]+1}] op_sel_hi:[1,0]')
    for ww in range(1, 4):
        a(f'v_pk_fma_f32 v[{vO}:{vO+1}], v[{vO+4*ww}:{vO+4*ww+1}], v[{vFw4[ww]}:{vFw4[ww]+1}], v[{vO}:{vO+1}] op_sel_hi:[1,0,1]')
        a(f'v_pk_fma_f32 v[{vO+2}:{vO+3}], v[{vO+4*ww+2}:{vO+4*ww+3}], v[{vFw4[ww]}:{vFw4[ww]+1}], v[{vO+2}:{vO+3}] op_sel_hi:[1,0,1]')
    a(f'''
    v_cndmask_b32 v{vO}, v{vO}, v{vTmp+8}, {MS}
    v_cndmask_b32 v{vO+1}, v{vO+1}, v{vTmp+9}, {MS}
    v_cndmask_b32 v{vO+2}, v{vO+2}, v{vTmp+8}, {MS}
    v_cndmask_b32 v{vO+3}, v{vO+3}, v{vTmp+9}, {MS}
    ''')
    tag_insert([vO, vO+1, vO+2, vO+3])
    publish(vm, vOP, vO, 'opub', lazy=True)
    stamp('opub')
    wo_at('pub')
    if o['o_delay']: vm.wait(o['o_delay'])
    vD = vV
    def h2loads(base):
        for k in range(4):
            a(f'global_load_dwordx4 v[{vD+4*k}:{vD+4*k+3}], v{vAd}, {base} offset:{128*k} sc1')
    h2loads(FIRST)
    for k in range(4): vm.issue(f'D{k}')
    wo_at('poll')
    vm.wait('D3')
    stamp('h2f')
    a('L_h2_comp:')
    t = vTmp
    vMk = vV+16
    vWk = [vV+20, vV+22, vV+24, vV+26]
    vMxx, vLp, vX, tt = t, t+1, t+2, t+6
    vBad = t+7
    c = [t+8, t+9, t+10, t+11]; ca, cb = t+12, t+13
    fill = []
    for k in range(4): fill += chk(vD+4*k, ca, cb, c[k])
    fill += [f'v_or3_b32 v{vBad}, v{c[0]}, v{c[1]}, v{c[2]}', f'v_or_b32 v{vBad}, v{vBad}, v{c[3]}']
    def F(n):
        for _ in range(n):
            if fill: a(fill.pop(0))
    for k in range(4):
        a(f'v_mov_b32_dpp v{vMk+k}, v{vD+4*k} row_shl:4 row_mask:0xf bank_mask:0xf bound_ctrl:0')
    untag([vMk, vMk+1, vMk+2, vMk+3])
    a(f'v_max3_f32 v{vMxx}, v{vMk}, v{vMk+1}, v{vMk+2}')
    a(f'v_max_f32 v{vMxx}, v{vMxx}, v{vMk+3}')
    a(f'v_mov_b32 v{tt}, v{vMxx}')
    F(2)
    a(f'v_permlane16_swap_b32 v{vMxx}, v{tt}')
    a(f'v_max_f32 v{vMxx}, v{vMxx}, v{tt}')
    a(f'v_mov_b32 v{tt}, v{vMxx}')
    F(2)
    a(f'v_permlane32_swap_b32 v{vMxx}, v{tt}')
    a(f'v_max_f32 v{vMxx}, v{vMxx}, v{tt}')
    for k in range(4): a(f'v_sub_f32 v{vWk[k]}, v{vMk+k}, v{vMxx}')
    for k in range(4): a(f'v_exp_f32 v{vWk[k]}, v{vWk[k]}')
    F(32)
    a(f'''
    v_cmp_ne_u32 vcc, 0, v{vBad}
    s_cbranch_vccz L_h2_ok
    ''')
    def h2checks():
        for k in range(4):
            for ln in chk(vD+4*k, ca, cb, c[k]): a(ln)
        a(f'v_or3_b32 v{vBad}, v{c[0]}, v{c[1]}, v{c[2]}\nv_or_b32 v{vBad}, v{vBad}, v{c[3]}')
    retry_loop('L_h2_r', h2loads, h2checks, vBad, 'L_h2_ok', own_b=(vOP, vO))
    a('''
    s_mov_b64 exec, -1
    s_branch L_h2_comp
L_h2_ok:
    s_mov_b64 exec, -1
    ''')
    if o['fast'] and o['lazy_b']:
        publish_b(vOP, vO); vm.issue('opub_b')
    stamp('h2'); note(14, 1, sSPIN)
    untag([vD+4*k+1 for k in range(4)] + [vD+4*k+i for k in range(4) for i in (0, 2, 3)])
    a(f'v_mul_f32_dpp v{vLp}, v{vD+1}, v{vWk[0]} row_shl:4 row_mask:0xf bank_mask:0xf bound_ctrl:0')
    a(f'v_pk_mul_f32 v[{vX}:{vX+1}], v[{vD}:{vD+1}], v[{vWk[0]}:{vWk[0]+1}] op_sel_hi:[1,0]')
    a(f'v_pk_mul_f32 v[{vX+2}:{vX+3}], v[{vD+2}:{vD+3}], v[{vWk[0]}:{vWk[0]+1}] op_sel_hi:[1,0]')
    for k in range(1, 4):
        a(f'v_fmac_f32_dpp v{vLp}, v{vD+4*k+1}, v{vWk[k]} row_shl:4 row_mask:0xf bank_mask:0xf bound_ctrl:0')
        a(f'v_pk_fma_f32 v[{vX}:{vX+1}], v[{vD+4*k}:{vD+4*k+1}], v[{vWk[k]}:{vWk[k]+1}], v[{vX}:{vX+1}] op_sel_hi:[1,0,1]')
        a(f'v_pk_fma_f32 v[{vX+2}:{vX+3}], v[{vD+4*k+2}:{vD+4*k+3}], v[{vWk[k]}:{vWk[k]+1}], v[{vX+2}:{vX+3}] op_sel_hi:[1,0,1]')
    a(f'''
    v_mov_b32 v{tt}, v{vLp}
    v_permlane32_swap_b32 v{vX}, v{vX+2}
    v_permlane32_swap_b32 v{vX+1}, v{vX+3}
    v_permlane16_swap_b32 v{vLp}, v{tt}
    v_add_f32 v{vX}, v{vX}, v{vX+2}
    v_add_f32 v{vX+1}, v{vX+1}, v{vX+3}
    v_add_f32 v{vLp}, v{vLp}, v{tt}
    v_mov_b32 v{tt}, v{vLp}
    v_permlane16_swap_b32 v{vX}, v{vX+1}
    v_permlane32_swap_b32 v{vLp}, v{tt}
    v_add_f32 v{vX}, v{vX}, v{vX+1}
    v_add_f32 v{vLp}, v{vLp}, v{tt}
    v_rcp_f32 v{vLp}, v{vLp}
    v_mul_f32 v{vX}, v{vX}, v{vGf}
    v_mul_f32 v{vX}, v{vX}, v{vLp}
    v_cvt_pk_bf16_f32 v{vX}, v{vX}, v{vX}
    v_mov_b32_dpp v{vX}, v{vX} row_shr:4 row_mask:0xf bank_mask:0xa
    ''')
    vAo = vPA
    for g in range(4):
        for k in range(4):
            a(f'v_and_b32_dpp v{vAo+4*g+k}, v{vX}, v{vM+k} quad_perm:[{g},{g},{g},{g}] row_mask:0xf bank_mask:0xf')
    for g in range(4):
        vm.wait(f'wo{g}')
        cc = '0' if g == 0 else f'v[{vAcc}:{vAcc+3}]'
        a(f'v_mfma_f32_16x16x32_bf16 v[{vAcc}:{vAcc+3}], v[{vAo+4*g}:{vAo+4*g+3}], v[{vWO+4*g}:{vWO+4*g+3}], {cc}')
    a(f'''
    ds_write_b128 v{vFw}, v[{vAcc}:{vAcc+3}] offset:4096
    s_waitcnt lgkmcnt(0)
    s_barrier
    s_cmp_lg_u32 s3, 0
    s_cbranch_scc1 L_m_done
    ''')
    for ww in range(4):
        a(f'ds_read_b128 v[{vO+4*ww}:{vO+4*ww+3}], v{vFr} offset:{8192*ww+4096}')
    a(f'''
    ds_read_b128 v[{vO+16}:{vO+19}], v{vFr} offset:{F5_LDS}
    s_waitcnt lgkmcnt(0)
    v_pk_add_f32 v[{vO}:{vO+1}], v[{vO}:{vO+1}], v[{vO+4}:{vO+5}]
    v_pk_add_f32 v[{vO+2}:{vO+3}], v[{vO+2}:{vO+3}], v[{vO+6}:{vO+7}]
    v_pk_add_f32 v[{vO+8}:{vO+9}], v[{vO+8}:{vO+9}], v[{vO+12}:{vO+13}]
    v_pk_add_f32 v[{vO+10}:{vO+11}], v[{vO+10}:{vO+11}], v[{vO+14}:{vO+15}]
    v_pk_add_f32 v[{vO}:{vO+1}], v[{vO}:{vO+1}], v[{vO+16}:{vO+17}]
    v_pk_add_f32 v[{vO+2}:{vO+3}], v[{vO+2}:{vO+3}], v[{vO+18}:{vO+19}]
    v_pk_add_f32 v[{vO}:{vO+1}], v[{vO}:{vO+1}], v[{vO+8}:{vO+9}]
    v_pk_add_f32 v[{vO+2}:{vO+3}], v[{vO+2}:{vO+3}], v[{vO+10}:{vO+11}]
    ''')
    tag_insert([vO, vO+1, vO+2, vO+3])
    a(f'global_store_dwordx4 v{vFP}, v[{vO}:{vO+3}], {WS} sc1')
    stamp('fpub')
    vF = vV
    a(f'''
    s_cmp_ge_u32 s{sH3}, 28
    s_cbranch_scc1 L_m_done
    ''')
    if o['h3_ack']: a('s_waitcnt vmcnt(0)')
    if o['h3_pipe'] == 1:
        a(f'''
L_h3_loop:
    global_load_dwordx4 v[{vF}:{vF+3}], v{vH3}, {WS} sc1
    s_waitcnt vmcnt(0)
    ''')
        tag_check(vF, vTmp+2, vTmp+4)
        a(f'''
    v_cmp_ne_u32 vcc, 0, v{vTmp+4}
    s_cbranch_vccz L_h3_ok
    s_mov_b64 exec, vcc
    s_sub_u32 s{sSPIN}, s{sSPIN}, 1
    s_cmp_lg_u32 s{sSPIN}, 0
    s_cbranch_scc1 L_h3_loop
L_h3_ok:
    s_mov_b64 exec, -1
    ''')
    else:
        G = vF + 8
        a(f'''
    s_mov_b64 s[{sMSK}:{sMSK+1}], -1
    global_load_dwordx4 v[{vF}:{vF+3}], v{vH3}, {WS} sc1
L_h3_loop:
    global_load_dwordx4 v[{vF+4}:{vF+7}], v{vH3}, {WS} sc1
    s_waitcnt vmcnt(1)
    ''')
        def absorb(base):
            tag_check(base, vTmp+2, vTmp+4)
            a(f'''
    v_cmp_eq_u32 vcc, 0, v{vTmp+4}
    s_andn2_b64 s[{sMSK}:{sMSK+1}], s[{sMSK}:{sMSK+1}], vcc
    s_mov_b64 s[{sT0}:{sT0+1}], exec
    s_mov_b64 exec, vcc
    v_mov_b32 v{G}, v{base}
    v_mov_b32 v{G+1}, v{base+1}
    v_mov_b32 v{G+2}, v{base+2}
    v_mov_b32 v{G+3}, v{base+3}
    s_mov_b64 exec, s[{sT0}:{sT0+1}]
    ''')
        absorb(vF)
        a(f'''
    s_cmp_eq_u64 s[{sMSK}:{sMSK+1}], 0
    s_cbranch_scc1 L_h3_ok
    s_mov_b64 exec, s[{sMSK}:{sMSK+1}]
    global_load_dwordx4 v[{vF}:{vF+3}], v{vH3}, {WS} sc1
    s_waitcnt vmcnt(1)
    ''')
        absorb(vF+4)
        a(f'''
    s_cmp_eq_u64 s[{sMSK}:{sMSK+1}], 0
    s_cbranch_scc1 L_h3_ok
    s_mov_b64 exec, s[{sMSK}:{sMSK+1}]
    s_sub_u32 s{sSPIN}, s{sSPIN}, 1
    s_cmp_lg_u32 s{sSPIN}, 0
    s_cbranch_scc1 L_h3_loop
L_h3_ok:
    s_mov_b64 exec, -1
    ''')
        vF = G
    stamp('h3'); note(15, 0, sSPIN)
    untag([vF, vF+1, vF+2, vF+3])
    a(f'''
    v_permlane32_swap_b32 v{vF}, v{vF+2}
    v_permlane32_swap_b32 v{vF+1}, v{vF+3}
    v_add_f32 v{vF}, v{vF}, v{vF+2}
    v_add_f32 v{vF+1}, v{vF+1}, v{vF+3}
    v_permlane16_swap_b32 v{vF}, v{vF+1}
    v_add_f32 v{vF}, v{vF}, v{vF+1}
    v_add_f32_dpp v{vF}, v{vF}, v{vF} row_ror:8 row_mask:0xf bank_mask:0xf
    v_add_f32_dpp v{vF}, v{vF}, v{vF} row_ror:4 row_mask:0xf bank_mask:0xf
    v_add_f32_dpp v{vF}, v{vF}, v{vF} row_ror:2 row_mask:0xf bank_mask:0xf
    v_add_f32_dpp v{vF}, v{vF}, v{vF} row_ror:1 row_mask:0xf bank_mask:0xf
    v_cvt_pk_bf16_f32 v{vF}, v{vF}, v{vF}
    s_mov_b32 exec_lo, 0x00010001
    s_mov_b32 exec_hi, 0x00010001
    global_store_short v{vOut}, v{vF}, s[{sOUT}:{sOUT+1}]
    s_cmp_lg_u32 s2, 0
    s_cbranch_scc1 L_m_done
    v_mov_b32 v{vTmp}, 0
    s_mov_b64 exec, 1
    global_store_dword v{vTmp}, v{vT}, {WS} sc1
L_m_done:
    s_mov_b64 exec, -1
    ''')
    stamp('end')
    a('s_branch L_fin')

    a('L_aux:')
    vm = VM(a)
    if o['prio']:
        a('s_setprio 3')
    vA16, vWq, vTr, vXr = 4, 5, 6, 7
    vXB = 8
    vWA = 36
    vD0, vD1 = 68, 72
    vt = 76
    aM = 96
    aXA = 100
    aW1 = 128
    aW1off, aHP, aQP, aXd, aW2off, aAh, aFw = 156, 157, 158, 159, 160, 161, 162
    aRG = 164
    aW2 = 8
    aH = 40
    aA = 56
    a(f'''
    v_lshlrev_b32 v{vA16}, 4, v{vL}
    v_lshrrev_b32 v{vt}, 2, v{vL}
    v_and_b32 v{vt+1}, 3, v{vL}
    v_lshlrev_b32 v{vt+1}, 4, v{vt+1}
    v_lshl_add_u32 v{vWq}, v{vt}, 13, v{vt+1}
    s_and_b32 s{sT0}, s{sJ}, 1                      ; rh
    s_lshr_b32 s{sT1}, s{sJ}, 1                     ; ct32
    s_mul_i32 s{sT2}, s{sT0}, {224*8192}
    s_lshl_b32 s{sT3}, s{sHKV}, 10
    s_add_u32 s{sT2}, s{sT2}, s{sT3}
    s_lshl_b32 s{sT3}, s{sT1}, 6
    s_add_u32 s{sT2}, s{sT2}, s{sT3}
    v_mov_b32 v{vt+2}, 0
    s_waitcnt lgkmcnt(0)
    ''')
    stamp('karg')
    a(f'''
    s_add_u32 s{sWQ}, s{sWQ}, s{sT2}
    s_addc_u32 s{sWQ+1}, s{sWQ+1}, 0
    {'' if o['e_late'] else f'global_load_dword v{vT}, v{vt+2}, {WS}{ESC}'}
    s_mov_b32 m0, {X_LDS}
    s_add_u32 s{sWSB}, s{sWS}, {WS_ALT}
    global_load_lds_dwordx4 v{vA16}, s[{sX}:{sX+1}]
    s_addc_u32 s{sWSB+1}, s{sWS+1}, 0
    s_mov_b32 exec_lo, -1
    s_mov_b32 exec_hi, 0x0000ffff
    global_load_lds_dwordx4 v{vA16}, s[{sX}:{sX+1}] offset:1024
    s_mov_b32 m0, {GW_LDS}
    s_mov_b32 exec_hi, 0x00ffffff
    global_load_lds_dwordx4 v{vA16}, s[{sGW}:{sGW+1}]
    s_mov_b64 exec, -1
    ''')
    if o.get('noa'): a(f's_add_u32 s{sDUM}, s{sWS}, 0x800000\ns_addc_u32 s{sDUM+1}, s{sWS+1}, 0')
    for n in (('x0', 'x1', 'gw') if o['e_late'] else ('E', 'x0', 'x1', 'gw')): vm.issue(n)
    for s in range(14):
        a(f's_mov_b32 m0, {WQ_LDS + s*1024}')
        if s > 0:
            a(f's_add_u32 s{sWQ}, s{sWQ}, {16*8192}\ns_addc_u32 s{sWQ+1}, s{sWQ+1}, 0')
        else:
            a('s_nop 0')
        a(f'global_load_lds_dwordx4 v{vWq}, s[{sWQ}:{sWQ+1}]{NT("wq")}')
        vm.issue(f'wq{s}')
    if o['e_late']:
        a(f'global_load_dword v{vT}, v{vt+2}, {WS}{ESC}'); vm.issue('E')
    if o['b1'] and o.get('b1_after') is None:
        a('s_barrier')
    a(f'''
    v_lshrrev_b32 v{vt}, 2, v{vN}
    v_lshlrev_b32 v{vt}, 6, v{vt}
    v_and_b32 v{vt+1}, 3, v{vN}
    v_lshl_add_u32 v{vt}, v{vt+1}, 3, v{vt}
    v_lshl_add_u32 v{vTr}, v{vKS}, 9, v{vt}
    v_lshrrev_b32 v{vt+3}, 3, v{vN}                 ; b = n>>3
    v_mul_u32_u24 v{vt}, 896, v{vt+3}
    v_lshl_add_u32 v{vXr}, v{vKS}, 4, v{vt}
    s_mul_i32 s{sT2}, s{sT0}, 448
    v_add_u32 v{vXr}, s{sT2}, v{vXr}
    s_lshl_b32 s{sT2}, s{sHKV}, 1
    s_add_u32 s{sT2}, s{sT2}, s{sT0}
    s_lshl_b32 s{sT2}, s{sT2}, 12
    s_lshl_b32 s{sT3}, s{sT1}, 7
    s_add_u32 s{sT2}, s{sT2}, s{sT3}
    s_add_u32 s{sT2}, s{sT2}, {WS_QP}
    v_lshlrev_b32 v{aQP}, 11, v{vt+3}
    v_and_b32 v{vt+1}, 1, v{vL}
    v_lshl_add_u32 v{aQP}, v{vt+1}, 6, v{aQP}
    v_lshl_add_u32 v{aQP}, v{vKS}, 4, v{aQP}
    v_add_u32 v{aQP}, s{sT2}, v{aQP}
    ''')
    masks(aM, vt+4)
    a(f'''
    s_mov_b32 s{sFX}, {hex(FXPERM)}
    s_lshl_b32 s{sT2}, s{sHKV}, 2
    s_lshr_b32 s{sFX}, s{sFX}, s{sT2}
    s_and_b32 s{sFX}, s{sFX}, 7
    s_lshl_b32 s{sT2}, s{sFX}, 1
    s_add_u32 s{sT2}, s{sT2}, s{sB}                 ; 2*xcd + (j>>4)
    s_add_u32 s{sT3}, s{sFX}, 6
    s_cmp_lt_u32 s{sFX}, 6
    s_cselect_b32 s{sT3}, s{sT2}, s{sT3}            ; ct128
    s_cselect_b32 s{sF1}, 1, 0
    s_cmp_lt_u32 s{sJ}, 16
    s_cselect_b32 s{sF1}, 1, s{sF1}
    s_mul_i32 s{sT4}, s{sC}, 28                     ; r0 = 28*pi
    s_mul_i32 s{sU}, s{sT4}, 3584
    s_lshl_b32 s{sOI}, s{sT3}, 8
    s_add_u32 s{sU}, s{sU}, s{sOI}
    s_add_u32 s{sW1}, s{sW1}, s{sU}
    s_addc_u32 s{sW1+1}, s{sW1+1}, 0
    v_mul_u32_u24 v{aW1off}, 3584, v{vKS}
    v_lshl_add_u32 v{aW1off}, v{vN}, 4, v{aW1off}
    s_mul_i32 s{sU}, s{sC}, 14336
    s_lshl_b32 s{sOI}, s{sT3}, 9
    s_add_u32 s{sU}, s{sU}, s{sOI}
    s_add_u32 s{sU}, s{sU}, {WS_HP}
    v_lshrrev_b32 v{vt+7}, 5, v{vL}
    v_mul_u32_u24 v{aHP}, 7168, v{vt+7}
    v_and_b32 v{vt+8}, 31, v{vL}
    v_lshl_add_u32 v{aHP}, v{vt+8}, 4, v{aHP}
    v_add_u32 v{aHP}, s{sU}, v{aHP}
    v_mul_u32_u24 v{aXd}, 896, v{vt+3}
    v_lshl_add_u32 v{aXd}, v{vKS}, 1, v{aXd}
    s_lshl_b32 s{sU}, s{sT4}, 1
    v_add_u32 v{aXd}, s{sU}, v{aXd}
    s_lshl_b32 s{sU}, s{sFX}, 3
    s_lshl_b32 s{sT2}, s{sFX}, 2
    s_add_u32 s{sT2}, s{sT2}, 24
    s_cmp_lt_u32 s{sFX}, 6
    s_cselect_b32 s{sU}, s{sU}, s{sT2}
    s_cselect_b32 s{sHASF2}, 1, 0
    s_add_u32 s{sU}, s{sU}, s{sRG}
    s_cmp_lt_u32 s{sRG}, 4
    s_cselect_b32 s{sHASF2}, 1, s{sHASF2}
    s_min_u32 s{sU}, s{sU}, 55
    s_lshr_b32 s{sT2}, s{sU}, 2
    s_lshl_b32 s{sT2}, s{sT2}, 7
    s_and_b32 s{sT3}, s{sU}, 1
    s_lshl_b32 s{sT3}, s{sT3}, 6
    s_add_u32 s{sT2}, s{sT2}, s{sT3}
    s_bfe_u32 s{sT3}, s{sU}, 0x10001
    s_lshl_b32 s{sT3}, s{sT3}, 2
    s_add_u32 s{sT2}, s{sT2}, s{sT3}
    s_mul_i32 s{sT2}, s{sT2}, 896
    s_lshl_b32 s{sT3}, s{sCT}, 8
    s_add_u32 s{sT2}, s{sT2}, s{sT3}
    s_add_u32 s{sW2}, s{sW2}, s{sT2}
    s_addc_u32 s{sW2+1}, s{sW2+1}, 0
    v_and_b32 v{vt+8}, s{sEXW}, v{vN}
    v_mul_u32_u24 v{aW2off}, 896, v{vKS}
    v_lshl_add_u32 v{aW2off}, v{vt+8}, 4, v{aW2off}
    ; H poll address: pi*14336 + b*7168 + u*128 + slot*16 ; pi = 4k + (l>>4), b = (l>>3)&1, slot = l&7
    v_mul_u32_u24 v{aAh}, 14336, v{vKS}
    v_mul_u32_u24 v{vt+8}, 7168, v{vt+3}
    v_add_u32 v{aAh}, v{aAh}, v{vt+8}
    v_and_b32 v{vt+8}, 7, v{vL}
    v_lshl_add_u32 v{aAh}, v{vt+8}, 4, v{aAh}
    s_lshl_b32 s{sT2}, s{sU}, 7
    s_add_u32 s{sT2}, s{sT2}, {WS_HP}
    v_add_u32 v{aAh}, s{sT2}, v{aAh}
    v_and_b32 v{vt+8}, 1, v{vKS}
    v_lshlrev_b32 v{vt+8}, 4, v{vt+8}
    v_lshl_add_u32 v{vt+8}, v{vN}, 5, v{vt+8}
    v_lshl_add_u32 v{aFw}, v{vt+7}, 9, v{vt+8}
    v_cmp_eq_u32 vcc, 1, v{vt+1}
    ''')
    vm.wait('gw')
    stamp('qready')
    if not o['e_late']: a(f'v_add_u32 v{vT}, 0x01010101, v{vT}')
    for s in range(7):
        a(f'ds_read_b128 v[{vXB+4*s}:{vXB+4*s+3}], v{vXr} offset:{X_LDS + 64*s}')
    for s in range(7):
        wa = vWA + 16*(s & 1)
        vm.wait(f'wq{2*s+1}')
        if o['b1'] and o.get('b1_after') == 2*s+1: a('s_barrier')
        for cg in range(2):
            for hf in range(2):
                a(f'ds_read_b64_tr_b16 v[{wa+8*cg+2*hf}:{wa+8*cg+2*hf+1}], v{vTr} offset:{WQ_LDS + s*2048 + hf*256 + cg*32}')
        a('s_waitcnt lgkmcnt(0)')
        for cg in range(2):
            d = vD0 if cg == 0 else vD1
            c_ = '0' if s == 0 else f'v[{d}:{d+3}]'
            a(f'v_mfma_f32_16x16x32_bf16 v[{d}:{d+3}], v[{wa+8*cg}:{wa+8*cg+3}], v[{vXB+4*s}:{vXB+4*s+3}], {c_}')
    stamp('a_wq')
    if o['e_late']:
        vm.wait('E'); a(f'v_add_u32 v{vT}, 0x01010101, v{vT}')
    for k in range(4):
        a(f'v_cndmask_b32 v{vD0+k}, v{vD0+k}, v{vD1+k}, vcc')
    tag_insert([vD0, vD0+1, vD0+2, vD0+3])
    a('s_mov_b32 exec_lo, 0x03030303\ns_mov_b32 exec_hi, 0x03030303')
    if o['fast'] and o['placechk'] and not o.get('nob'):
        if o.get('noa'):
            a(f'global_store_dwordx4 v{aQP}, v[{vD0}:{vD0+3}], s[{sDUM}:{sDUM+1}]')
        else:
            a(f'global_store_dwordx4 v{aQP}, v[{vD0}:{vD0+3}], {WS}')
        vm.issue('qpub_a')
        a(f'''
    s_getreg_b32 s{sPV}, hwreg(HW_REG_XCC_ID)
    s_lshl_b32 s{sPV}, s{sPV}, 8
    s_lshl_b32 s{sOI}, s2, 7
    s_add_u32 s{sOI}, s{sOI}, {WS_REG}
    s_mov_b32 exec_lo, 0x000c000c
    s_mov_b32 exec_hi, 0x000c000c
    v_and_b32 v{vt+16}, 1, v{vL}
    v_lshl_add_u32 v{vt+16}, v{vKS}, 1, v{vt+16}    ; slot = (l>>4)*2 + (l&1)
    v_lshlrev_b32 v{vt+16}, 4, v{vt+16}
    v_add_u32 v{aQP}, s{sOI}, v{vt+16}
    v_mov_b32 v{vD0}, s{sPV}
    v_mov_b32 v{vD0+1}, s{sPV}
    v_mov_b32 v{vD0+2}, s{sPV}
    v_mov_b32 v{vD0+3}, s{sPV}
    ''')
        tag_insert([vD0, vD0+1, vD0+2, vD0+3])
        a(f'''
    s_mov_b32 exec_lo, 0x030f030f
    s_mov_b32 exec_hi, 0x030f030f
    global_store_dwordx4 v{aQP}, v[{vD0}:{vD0+3}], {WSB} sc1
    ''')
        vm.issue('qpub')
    else:
        publish(vm, aQP, vD0, 'qpub')
    a('s_mov_b64 exec, -1')
    stamp('kdone')
    if o['aux_lowprio']: a('s_setprio 0')
    if o['fast'] and o['prewrite']:
        a(f'''
    s_cmp_eq_u32 s{sF1}, 0
    s_cbranch_scc1 L_a_nopw
    ''')
        for k in range(4): a(f'v_xor_b32 v{vt+12+k}, 0x80808080, v{vT}')
        for k in range(4): a(f'v_perm_b32 v{vt+12+k}, v{vt+12+k}, v{vt+12+k}, s{sSEL+k}')
        a(f'global_store_dwordx4 v{aHP}, v[{vt+12}:{vt+15}], {WS}')
        a('L_a_nopw:')
    g0 = vXB
    a(f'''
    v_mov_b32 v{vt+8}, 0
    v_mov_b32 v{vt+9}, 0
    s_mov_b32 exec_lo, -1
    s_mov_b32 exec_hi, 0x00ffffff
    ds_read_b128 v[{g0}:{g0+3}], v{vA16} offset:{X_LDS}
    ds_read_b128 v[{g0+4}:{g0+7}], v{vA16} offset:{X_LDS+896}
    ds_read_b128 v[{g0+8}:{g0+11}], v{vA16} offset:{GW_LDS}
    s_waitcnt lgkmcnt(0)
    ''')
    for k in range(4):
        a(f'v_dot2_f32_bf16 v{vt+8}, v{g0+k}, v{g0+8+k}, v{vt+8}')
        a(f'v_dot2_f32_bf16 v{vt+9}, v{g0+4+k}, v{g0+8+k}, v{vt+9}')
    a('s_mov_b64 exec, -1')
    for g in range(7):
        a(f'ds_read_u16 v{g0+12+g}, v{aXd} offset:{X_LDS + 8*g}')
    for n in (8, 4, 2, 1):
        for r in (vt+8, vt+9):
            a(f'v_add_f32_dpp v{r}, v{r}, v{r} row_ror:{n} row_mask:0xf bank_mask:0xf')
    allreduce_rows('v_add_f32', vt+8, vt+10)
    allreduce_rows('v_add_f32', vt+9, vt+10)
    a(f'''
    v_and_b32 v{vt+10}, 1, v{vL}
    v_cmp_eq_u32 vcc, 1, v{vt+10}
    v_cndmask_b32 v{vt+8}, v{vt+8}, v{vt+9}, vcc
    v_cvt_pk_bf16_f32 v{vt+8}, v{vt+8}, v{vt+8}
    v_lshlrev_b32 v{vt+8}, 16, v{vt+8}
    v_mul_f32 v{vt+8}, {hex(f2u(-LOG2E))}, v{vt+8}
    v_exp_f32 v{vt+8}, v{vt+8}
    v_add_f32 v{vt+8}, 1.0, v{vt+8}
    v_rcp_f32 v{vt+8}, v{vt+8}
    v_cvt_pk_bf16_f32 v{vt+8}, v{vt+8}, v{vt+8}
    v_lshlrev_b32 v{vt+8}, 16, v{vt+8}
    v_sub_f32 v{vt+9}, 1.0, v{vt+8}
    v_cvt_pk_bf16_f32 v{vt+9}, v{vt+9}, v{vt+9}
    v_lshlrev_b32 v{vt+9}, 16, v{vt+9}
    v_lshlrev_b32 v{vt+10}, 2, v{vt+10}
    s_mov_b64 exec, 3
    ds_write_b32 v{vt+10}, v{vt+8} offset:{G_LDS}
    s_mov_b64 exec, -1
    v_readlane_b32 s{sT2}, v{vt+9}, 0
    v_readlane_b32 s{sT3}, v{vt+9}, 1
    v_cmp_gt_u32 vcc, 32, v{vL}
    v_mov_b32 v{vt+11}, s{sT3}
    v_mov_b32 v{vt+12}, s{sT2}
    v_cndmask_b32 v{vt+11}, v{vt+11}, v{vt+12}, vcc
    s_waitcnt lgkmcnt(0)
    ''')
    for g in range(7):
        a(f'v_lshl_or_b32 v{g0+12+g}, v{g0+12+g}, 16, v{g0+12+g}')
    for g in range(7):
        for k in range(4):
            a(f'v_and_b32 v{aXA+4*g+k}, v{g0+12+g}, v{aM+k}')
    stamp('qpoll')
    a('s_barrier')
    if o['placechk']:
        a(f'''
    v_and_b32 v{vt+16}, 31, v{vL}
    v_lshlrev_b32 v{vt+16}, 10, v{vt+16}
    s_lshl_b32 s{sOI}, s{sHKV}, 7
    s_add_u32 s{sOI}, s{sOI}, {WS_REG}
    v_add_u32 v{vt+16}, s{sOI}, v{vt+16}
    global_load_dwordx4 v[{aRG}:{aRG+3}], v{vt+16}, {WSB} sc1
    ''')
        vm.issue('regchk')

    def verdict():
        if not o['placechk']: return
        tag_check(aRG, vt+12, vt+14)
        a(f'''
    v_lshrrev_b32 v{vt+15}, 8, v{aRG}
    s_lshr_b32 s{sOI}, s{sPV}, 8
    v_xor_b32 v{vt+15}, s{sOI}, v{vt+15}
    v_or_b32 v{vt+14}, v{vt+14}, v{vt+15}
    v_cmp_ne_u32 vcc, 0, v{vt+14}
    s_cmp_eq_u64 vcc, 0
    s_cselect_b32 s{sPV}, {0 if o.get('noa') else 1}, 0
    v_mov_b32 v{vt+14}, s{sPV}
    v_mov_b32 v{vt+15}, 0
    ds_write_b32 v{vt+15}, v{vt+14} offset:{PV_LDS}
    s_waitcnt lgkmcnt(0)
    ''')
        if o['stamps']: a(f's_mov_b32 s{64+2*14}, s{sPV}')
    a(f'''
    s_cmp_eq_u32 s{sF1}, 0
    s_cbranch_scc1 L_a_none
    ''')
    for g in range(7):
        a(f'global_load_dwordx4 v[{aW1+4*g}:{aW1+4*g+3}], v{aW1off}, s[{sW1}:{sW1+1}]{NT("w1")}')
        vm.issue(f'w1_{g}')
        if g < 6:
            a(f's_add_u32 s{sW1}, s{sW1}, {4*3584}\ns_addc_u32 s{sW1+1}, s{sW1+1}, 0')
    def w2loads():
        for g in range(8):
            a(f'global_load_dwordx4 v[{aW2+4*g}:{aW2+4*g+3}], v{aW2off}, s[{sW2}:{sW2+1}]{NT("w2")}')
            vm.issue(f'w2_{g}')
            if g < 7:
                a(f's_add_u32 s{sW2}, s{sW2}, {8*896}\ns_addc_u32 s{sW2+1}, s{sW2+1}, 0')
    if o.get('w2_at', 'bq') == 'bq': w2loads()
    if o['placechk']:
        vm.wait('regchk'); verdict()
    a('s_barrier')
    vm.wait('w1_6')
    stamp('vdone')
    for g in range(7):
        c_ = '0' if g == 0 else f'v[{vD0}:{vD0+3}]'
        a(f'v_mfma_f32_16x16x32_bf16 v[{vD0}:{vD0+3}], v[{aXA+4*g}:{aXA+4*g+3}], v[{aW1+4*g}:{aW1+4*g+3}], {c_}')
    tag_insert([vD0, vD0+1, vD0+2, vD0+3])
    publish(vm, aHP, vD0, 'hpub', lazy=True)
    stamp('opub')
    if o.get('w2_at', 'bq') == 'pub': w2loads()
    if o['h_delay']: vm.wait(o['h_delay'])
    def hloads(base):
        for k in range(4):
            a(f'v_add_u32 v{vt+12}, {4*k*14336}, v{aAh}\nglobal_load_dwordx4 v[{aH+4*k}:{aH+4*k+3}], v{vt+12}, {base} sc1')
    cc4 = [vt, vt+1, vt+2, vt+3]
    def hchecks():
        for k in range(4):
            for ln in chk(aH+4*k, vt+4, vt+5, cc4[k]): a(ln)
        a(f'v_or3_b32 v{vt}, v{vt}, v{vt+1}, v{vt+2}\nv_or_b32 v{vt}, v{vt}, v{vt+3}')
    hloads(FIRST)
    for k in range(4): vm.issue(f'H{k}')
    if o.get('w2_at', 'bq') == 'poll': w2loads()
    vm.wait('H3')
    stamp('h2f')
    hchecks()
    a(f'''
    v_cmp_ne_u32 vcc, 0, v{vt}
    s_cbranch_vccz L_ah_ok
    ''')
    retry_loop('L_ah_r', hloads, hchecks, vt, 'L_ah_ok', own_b=(aHP, vD0))
    a('L_ah_ok:\ns_mov_b64 exec, -1')
    if o['fast'] and o['lazy_b']:
        publish_b(aHP, vD0); vm.issue('hpub_b')
    stamp('h2'); note(15, 1, sSPIN)
    untag(range(aH, aH+16))
    a(f'''
    v_pk_add_f32 v[{aH}:{aH+1}], v[{aH}:{aH+1}], v[{aH+4}:{aH+5}]
    v_pk_add_f32 v[{aH+2}:{aH+3}], v[{aH+2}:{aH+3}], v[{aH+6}:{aH+7}]
    v_pk_add_f32 v[{aH+8}:{aH+9}], v[{aH+8}:{aH+9}], v[{aH+12}:{aH+13}]
    v_pk_add_f32 v[{aH+10}:{aH+11}], v[{aH+10}:{aH+11}], v[{aH+14}:{aH+15}]
    v_pk_add_f32 v[{aH}:{aH+1}], v[{aH}:{aH+1}], v[{aH+8}:{aH+9}]
    v_pk_add_f32 v[{aH+2}:{aH+3}], v[{aH+2}:{aH+3}], v[{aH+10}:{aH+11}]
    v_permlane32_swap_b32 v{aH}, v{aH+2}
    v_permlane32_swap_b32 v{aH+1}, v{aH+3}
    v_add_f32 v{aH}, v{aH}, v{aH+2}
    v_add_f32 v{aH+1}, v{aH+1}, v{aH+3}
    v_permlane16_swap_b32 v{aH}, v{aH+1}
    v_add_f32 v{aH}, v{aH}, v{aH+1}
    v_max_f32 v{aH}, 0, v{aH}
    v_cvt_pk_bf16_f32 v{aH}, v{aH}, v{aH}
    ''')
    for g in range(8):
        A = aA + 4*(g & 1)
        tb = aH + 1 + (g & 1)
        a(f'v_mov_b32_dpp v{tb}, v{aH} row_newbcast:{g} row_mask:0xf bank_mask:0x3')
        a(f'v_mov_b32_dpp v{tb}, v{aH} row_newbcast:{8+g} row_mask:0xf bank_mask:0xc')
        for k in range(4):
            a(f'v_and_b32 v{A+k}, v{tb}, v{aM+k}')
        vm.wait(f'w2_{g}')
        c_ = '0' if g == 0 else f'v[{vD1}:{vD1+3}]'
        a(f'v_mfma_f32_16x16x32_bf16 v[{vD1}:{vD1+3}], v[{A}:{A+3}], v[{aW2+4*g}:{aW2+4*g+3}], {c_}')
    for k in range(4):
        a(f'v_mul_f32 v{vD1+k}, v{vt+11}, v{vD1+k}')
    a(f'''
L_a_wr:
    ds_write_b128 v{aFw}, v[{vD1}:{vD1+3}] offset:{F5_LDS}
    s_waitcnt lgkmcnt(0)
    ''')
    stamp('fpub')
    a(f'''
    s_barrier
    s_branch L_fin
L_a_none:
    v_mov_b32 v{vD1}, 0
    v_mov_b32 v{vD1+1}, 0
    v_mov_b32 v{vD1+2}, 0
    v_mov_b32 v{vD1+3}, 0
    ''')
    if o['placechk']:
        a('s_waitcnt vmcnt(0)'); verdict()
    a('''
    s_barrier
    s_branch L_a_wr
    ''')
    a('L_fin:')
    if o['probe']:
        pname, K = o['probe']
        i = SI[pname]
        a(f'''
    s_waitcnt lgkmcnt(0)
    s_cmp_lg_u32 s3, 0
    s_cbranch_scc1 L_end
    v_mov_b32 v4, 0
    s_mov_b64 exec, 1
    v_mov_b32 v6, s64
    v_not_b32 v6, v6
    global_atomic_umax v4, v6, s[{sDBG}:{sDBG+1}] sc1
    v_mov_b32 v7, s{64+2*i}
    global_atomic_umax v4, v7, s[{sDBG}:{sDBG+1}] offset:4 sc1
    s_waitcnt vmcnt(0)
    v_mov_b32 v8, 1
    global_atomic_add v9, v4, v8, s[{sDBG}:{sDBG+1}] offset:8 sc0 sc1
    s_waitcnt vmcnt(0)
    v_readfirstlane_b32 s60, v9
    s_cmp_lg_u32 s60, 255
    s_cbranch_scc1 L_end
    global_load_dwordx2 v[10:11], v4, s[{sDBG}:{sDBG+1}] sc1
    s_waitcnt vmcnt(0)
    v_readfirstlane_b32 s60, v10
    v_readfirstlane_b32 s61, v11
    s_not_b32 s60, s60
    s_sub_u32 s61, s61, s60
    s_min_u32 s61, s61, 5000
    v_mov_b32 v12, s61
    global_store_dword v4, v12, s[{sDBG}:{sDBG+1}] offset:12 sc1
    s_mul_i32 s61, s61, {K}
    s_memrealtime s[62:63]
    s_waitcnt lgkmcnt(0)
    s_add_u32 s61, s61, s62
L_probe_spin:
    s_memrealtime s[62:63]
    s_waitcnt lgkmcnt(0)
    s_sub_u32 s60, s61, s62
    s_cmp_gt_i32 s60, 0
    s_cbranch_scc1 L_probe_spin
    ''')
    elif o['stamps']:
        a(f'''
    s_waitcnt lgkmcnt(0)
    s_lshl_b32 s{sT0}, s2, 10
    s_lshl_b32 s{sT1}, s3, 7
    s_add_u32 s{sT0}, s{sT0}, s{sT1}
    s_add_u32 s{sT0}, s{sT0}, {WS_STAMP}
    v_mov_b32 v4, s{sT0}
    s_mov_b64 exec, 1
    ''')
        for i in range(16):
            a(f'''
    v_mov_b32 v6, s{64+2*i}
    v_mov_b32 v7, s{65+2*i}
    global_store_dwordx2 v4, v[6:7], {WS} offset:{8*i}
    s_nop 1
    ''')
    a('''
L_end:
    s_endpgm
    ''')
    body, n = hazard.fix(a.text())
    return wrap(body, (256,1,1), (320,1,1), LDS_BYTES, vgpr=NV, sgpr=102), STAMPS

if __name__ == '__main__':
    opts = json.loads(sys.argv[2]) if len(sys.argv) > 2 else {}
    s, names = gen(opts)
    open(sys.argv[1], 'w').write(s)
```

```python
import sys, json, struct
from asmgen import *
import hazard

WS_EPOCH = 0x0
WS_QP    = 0x1000
WS_HP    = 0x20000
WS_FP    = 0x60000
WS_REG   = 0xA0000
WS_OP    = 0x100000
WS_ALT   = 0x200000
WS_STAMP = 0x1000000
K_LDS  = 0
WQ_LDS = 32768
F5_LDS = WQ_LDS
X_LDS  = 47104
GW_LDS = 49152
Q_LDS  = 50176
G_LDS  = 51200
MX_LDS = 51216
LS_LDS = 51248
PV_LDS = 51280
LDS_BYTES = 51328

LOG2E = 1.4426950408889634
def f2u(x): return struct.unpack('<I', struct.pack('<f', x))[0]

DEFAULTS = dict(probe=None, stamps=False, round_scores=True, spin=1000000, b1=True, prio=True, W=5, npre=4, vmode='k6', placechk=True, h3_ack=True, h3_pipe=1, ffn_light=(4, 5), lightmap=True, aux_lowprio=True, e_sc1=True, e_late=False, xnt=False,
                nt_wq=True, nt_k=True, nt_v=True, nt_wo=True, nt_w1=True, nt_w2=True,
                wo_at=['bq', 'qk', 'sm', 'pv'],
                o_delay='wo3',
                h_delay='w2_7', fast=True, aevery=16, rot='hkv+c', prewrite=False, lazy_b=False, W2=None)
STAMPS = ['start', 'karg', 'h2f', 'kdone', 'qpoll', 'qready', 'qk', 'vdone', 'pv', 'opub', 'h2', 'fpub', 'h3', 'end', 'a_wq', 'a_x']

class VM:
    def __init__(self, a): self.a = a; self.ops = []
    def issue(self, name): self.ops.append(name)
    def wait(self, name):
        i = max(k for k, n in enumerate(self.ops) if n == name)
        self.a(f's_waitcnt vmcnt({len(self.ops) - 1 - i})')
    def waitall(self): self.a('s_waitcnt vmcnt(0)')

def gen(opts):
    o = dict(DEFAULTS); o.update(opts)
    if o['probe']: o['stamps'] = True
    def NT(k): return (' ' + o.get('fl_' + k, 'nt')) if o['nt_' + k] else ''
    a = Asm()
    SI = {n: i for i, n in enumerate(STAMPS)}
    def stamp(name):
        if o['stamps']:
            i = SI[name]
            a(f's_memrealtime s[{64+2*i}:{65+2*i}]')
    def note(slot, half, sreg):
        if o['stamps']: a(f's_mov_b32 s{64+2*slot+half}, s{sreg}')
    sX, sK, sV, sWQ, sWO, sW1, sW2, sGW, sOUT, sDBG, sWS = 4, 6, 8, 10, 12, 16, 18, 20, 22, 24, 26
    sDUM = 98
    sPV = 100
    sMK = 101
    sWSB = 14
    sHKV, sJ, sB, sC = 28, 29, 30, 31
    sT0, sT1, sT2, sT3 = 32, 33, 34, 35
    sWO2 = 36; sKM = 38; sOI = 39
    sSEL = 40; sCHA, sCHB = 44, 45
    sSPIN = 46; sT4 = 47
    sKB, sVB = 48, 50
    sRG, sCT, sU = 52, 53, 54
    sH3 = 55
    sMSK = 56
    sC2 = 59; sF1 = 58; sROT = 63; sFX = 57; sPI = 96
    light = list(o['ffn_light']); heavy = [x for x in range(8) if x not in light]
    FXPERM = 0
    for i_, x_ in enumerate(heavy + light): FXPERM |= i_ << (4*x_)
    sEXW = 60
    sHASF2 = 62
    WS = f's[{sWS}:{sWS+1}]'; WSB = f's[{sWSB}:{sWSB+1}]'
    vL, vN, vKS, vT = 0, 1, 2, 3

    def tag_insert(regs):
        for i, r in enumerate(regs):
            a(f'v_perm_b32 v{r}, v{r}, v{vT}, s{sSEL+i}')
    def chk(base, ca, cb, dst):
        return [f'v_perm_b32 v{ca}, v{base+1}, v{base}, s{sCHA}', f'v_perm_b32 v{cb}, v{base+3}, v{base+2}, s{sCHB}',
                f'v_bitop3_b32 v{dst}, v{ca}, v{cb}, v{vT} bitop3:0x56']
    def tag_check(base, tmp, dst):
        for ln in chk(base, tmp, tmp+1, dst): a(ln)
    def untag(regs):
        for r in regs: a(f'v_and_b32 v{r}, s{sMK}, v{r}')
    def allreduce_rows(op, r, t):
        a(f'v_mov_b32 v{t}, v{r}')
        a(f'v_permlane16_swap_b32 v{t}, v{r}')
        a(f'{op} v{r}, v{r}, v{t}')
        a(f'v_mov_b32 v{t}, v{r}')
        a(f'v_permlane32_swap_b32 v{t}, v{r}')
        a(f'{op} v{r}, v{r}, v{t}')
    def masks(dst, t):
        a(f'''
    v_and_b32 v{t}, 1, v{vL}
    v_cmp_eq_u32 vcc, 1, v{t}
    v_mov_b32 v{t+1}, 0xffff
    v_mov_b32 v{t+2}, 0xffff0000
    v_cndmask_b32 v{t+1}, v{t+1}, v{t+2}, vcc
    v_bfe_u32 v{t+2}, v{vL}, 1, 2
    ''')
        for k in range(4):
            a(f'''
    v_cmp_eq_u32 vcc, {k}, v{t+2}
    v_cndmask_b32 v{dst+k}, 0, v{t+1}, vcc
    ''')
    def publish_b(vaddr, data):
        a(f'global_store_dwordx4 v{vaddr}, v[{data}:{data+3}], {WSB} sc1')
    def publish(vm, vaddr, data, name, lazy=False):
        if o['fast']:
            if o.get('noa'):
                a(f'global_store_dwordx4 v{vaddr}, v[{data}:{data+3}], {WS} offset:0' .replace(WS, f's[{sDUM}:{sDUM+1}]'))
            else:
                a(f'global_store_dwordx4 v{vaddr}, v[{data}:{data+3}], {WS}')
            vm.issue(name + '_a')
        if lazy and o['fast'] and o['placechk']:
            vm.ops[-1] = name
            a(f's_cmp_lg_u32 s{sPV}, 0\ns_cbranch_scc1 L_skipb_{name}')
            a(f'global_store_dwordx4 v{vaddr}, v[{data}:{data+3}], {WSB} sc1')
            a(f'L_skipb_{name}:')
            return
        if lazy and o['fast'] and o['lazy_b']:
            vm.ops[-1] = name
            return
        if o.get('nob'):
            vm.ops[-1] = name
            return
        a(f'global_store_dwordx4 v{vaddr}, v[{data}:{data+3}], {WSB} sc1'); vm.issue(name)
    def retry_loop(label, loads, checks, bad, okl, own_b=None):
        a(f'''
{label}:
    s_sub_u32 s{sSPIN}, s{sSPIN}, 1
    s_cmp_eq_u32 s{sSPIN}, 0
    s_cbranch_scc1 {okl}
    s_mov_b64 exec, vcc
    ''')
        if o['fast']:
            a(f'''
    s_and_b32 s{sT0}, s{sSPIN}, {o['aevery']-1}
    s_cmp_eq_u32 s{sT0}, 0
    s_cbranch_scc1 {label}_b
    ''')
            loads(WS)
            a(f's_branch {label}_c\n{label}_b:')
            if own_b and o['lazy_b']:
                a('s_mov_b64 exec, -1')
                publish_b(*own_b)
                a('s_mov_b64 exec, vcc')
        loads(WSB)
        a(f'{label}_c:\ns_waitcnt vmcnt(0)')
        checks()
        a(f'''
    v_cmp_ne_u32 vcc, 0, v{bad}
    s_cbranch_vccnz {label}
    ''')
    FIRST = WS if o['fast'] else WSB

    stamp('start')
    a(f'''
    s_cmp_ge_u32 s2, 256
    s_cbranch_scc1 L_end
    s_load_dwordx16 s[4:19], s[0:1], 0
    s_load_dwordx8 s[20:27], s[0:1], 64
    v_lshrrev_b32 v4, 6, v0
    v_and_b32 v{vL}, 63, v0
    v_readfirstlane_b32 s3, v4
    v_and_b32 v{vN}, 15, v{vL}
    v_lshrrev_b32 v{vKS}, 4, v{vL}
    s_and_b32 s{sHKV}, s2, 7
    s_lshr_b32 s{sJ}, s2, 3
    s_lshr_b32 s{sB}, s{sJ}, 4
    s_and_b32 s{sC}, s{sJ}, 15
    s_lshr_b32 s{sRG}, s{sJ}, 2
    s_and_b32 s{sCT}, s{sJ}, 3
    s_mov_b32 s{sSEL}, 0x07060500
    s_mov_b32 s{sSEL+1}, 0x07060501
    s_mov_b32 s{sSEL+2}, 0x07060502
    s_mov_b32 s{sSEL+3}, 0x07060503
    s_mov_b32 s{sCHA}, 0x0c0c0400
    s_mov_b32 s{sCHB}, 0x04000c0c
    s_mov_b32 s{sMK}, 0xffffff00
    s_mov_b32 s{sSPIN}, {o['spin']}
    s_cmp_eq_u32 s{sCT}, 3
    s_cselect_b32 s{sEXW}, 7, 15
    s_cmp_eq_u32 s3, 4
    s_cbranch_scc1 L_aux
    ''')

    vm = VM(a)
    vM = 4
    vVoff, vWoff, vQrd, vKrd, vQpoll, vQw = 8, 9, 10, 11, 12, 13
    vOw, vOr, vOP, vAd, vFw, vFr, vFP, vH3, vOut = 14, 15, 16, 17, 18, 19, 20, 21, 22
    vV = 24
    vWO = 56
    vKop = 72
    vQop = 104
    vPA = 72
    vAcc = 88
    vO = 96
    vS = 136
    vTmp = 140
    vMXa, vGf = 160, 161
    NV = 168
    vKoff = vQop
    a(f'''
    v_lshrrev_b32 v{vTmp}, 5, v{vL}                 ; hi
    v_and_b32 v{vTmp+1}, 31, v{vL}                  ; u
    v_xor_b32 v{vTmp+2}, v{vTmp+1}, v{vTmp}
    v_lshlrev_b32 v{vTmp+2}, 4, v{vTmp+2}
    v_lshl_add_u32 v{vKoff}, v{vTmp}, 9, v{vTmp+2}
    v_lshlrev_b32 v{vTmp+3}, 4, v{vN}               ; n*16
    v_lshl_add_u32 v{vVoff}, v{vKS}, 11, v{vTmp+3}
    s_lshl_b32 s{sT0}, s3, 13                       ; w*8192
    s_lshl_b32 s{sT1}, s{sB}, 3
    s_add_u32 s{sT1}, s{sT1}, s{sHKV}
    s_lshl_b32 s{sT1}, s{sT1}, 21
    s_add_u32 s{sT1}, s{sT1}, 1572864
    s_lshl_b32 s{sT2}, s{sC}, 15
    s_add_u32 s{sT1}, s{sT1}, s{sT2}
    s_add_u32 s{sT1}, s{sT1}, s{sT0}
    s_mov_b32 s{sC2}, {hex(f2u(LOG2E/16.0))}
    v_mov_b32 v{vTmp+4}, 0
    ''')
    a({'hkv+c': f's_add_u32 s{sROT}, s{sHKV}, s{sC}\ns_and_b32 s{sROT}, s{sROT}, 7',
       'c': f's_and_b32 s{sROT}, s{sC}, 7',
       'hkvb': f's_lshl_b32 s{sROT}, s{sB}, 2\ns_xor_b32 s{sROT}, s{sROT}, s{sHKV}',
       None: f's_mov_b32 s{sROT}, 0'}[o['rot']])
    a(f'''
    s_mul_i32 s{sT2}, s{sROT}, {(1 << 10) | (1 << 5)}
    v_xor_b32 v{vKoff}, s{sT2}, v{vKoff}
    s_lshl_b32 s{sT2}, s{sROT}, 8
    v_xor_b32 v{vVoff}, s{sT2}, v{vVoff}
    s_lshl_b32 s{sT2}, s{sROT}, 10
    s_xor_b32 s{sKM}, s{sT0}, s{sT2}
    s_waitcnt lgkmcnt(0)
    ''')
    stamp('karg')
    ESC = ' sc1' if o['e_sc1'] else ''
    if not o['e_late']: a(f'global_load_dword v{vT}, v{vTmp+4}, {WS}{ESC}')
    a(f'''
    s_add_u32 s{sKB}, s{sK}, s{sT1}
    s_addc_u32 s{sKB+1}, s{sK+1}, 0
    s_add_u32 s{sVB}, s{sV}, s{sT1}
    s_addc_u32 s{sVB+1}, s{sV+1}, 0
    s_add_u32 s{sWSB}, s{sWS}, {WS_ALT}
    s_addc_u32 s{sWSB+1}, s{sWS+1}, 0
    ''')
    if o.get('noa'): a(f's_add_u32 s{sDUM}, s{sWS}, 0x800000\ns_addc_u32 s{sDUM+1}, s{sWS+1}, 0')
    if not o['e_late']: vm.issue('E')
    if o['b1']:
        a('s_barrier')
    W = o['W']
    def kload(m):
        t = vTmp + 11 + (m & 1)
        a(f's_xor_b32 m0, s{sKM}, {m << 10}')
        a(f'v_xor_b32 v{t}, {(m << 10) | (m << 5)}, v{vKoff}')
        a(f'global_load_lds_dwordx4 v{t}, s[{sKB}:{sKB+1}]{NT("k")}')
        vm.issue(f'K{m}')
    def vload(i):
        t = vTmp + 11 + (i & 1)
        a(f'v_xor_b32 v{t}, {i << 8}, v{vVoff}')
        a(f'global_load_dwordx4 v[{vV+4*i}:{vV+4*i+3}], v{t}, s[{sVB}:{sVB+1}]{NT("v")}')
        vm.issue(f'V{i}')
    vP = vTmp
    npre = o['npre']
    elems = [('K', m) for m in range(8)] + [('V', i) for i in range(npre)] + [('P', 0)] + [('V', i) for i in range(npre, 8)]
    def issue(e):
        k, i = e
        if k == 'K': kload(i)
        elif k == 'V': vload(i)
        else:
            a(f'global_load_dwordx4 v[{vP}:{vP+3}], v{vQpoll}, {FIRST} sc1'); vm.issue('P')
    for n_, e in enumerate(elems[:W]):
        issue(e)
        if o['e_late'] and n_ == 0:
            a(f'global_load_dword v{vT}, v{vTmp+4}, {WS}{ESC}'); vm.issue('E')
    t5, t6, t7 = vTmp+5, vTmp+6, vTmp+7
    a(f'''
    s_movk_i32 s{sT4}, 896
    v_and_b32 v{vWoff}, s{sEXW}, v{vN}
    v_lshlrev_b32 v{vWoff}, 4, v{vWoff}
    v_mad_u32_u24 v{vWoff}, v{vKS}, s{sT4}, v{vWoff}
    s_lshr_b32 s{sT1}, s{sROT}, 1
    v_xor_b32 v{t6}, s{sT1}, v{vN}
    v_xor_b32 v{t5}, v{vKS}, v{t6}
    v_lshlrev_b32 v{t5}, 4, v{t5}
    v_lshl_add_u32 v{vKrd}, v{t6}, 9, v{t5}
    v_add_u32 v{vKrd}, s{sT0}, v{vKrd}
    v_lshrrev_b32 v{t5}, 3, v{vN}
    v_lshlrev_b32 v{t6}, 9, v{t5}
    v_lshl_add_u32 v{vQrd}, v{vKS}, 4, v{t6}
    s_lshl_b32 s{sT1}, s3, 2
    v_lshlrev_b32 v{vMXa}, 4, v{t5}
    v_add_u32 v{vMXa}, s{sT1}, v{vMXa}              ; head*16 + w*4
    ''')
    masks(vM, t6)
    a(f'''
    ; q poll address: QP + hkv*8192 + rh*4096 + b*2048 + (32w + u)*16     rh = l>>5, u = l&31
    s_lshl_b32 s{sT1}, s{sHKV}, 13
    s_lshl_b32 s{sT2}, s{sB}, 11
    s_add_u32 s{sT1}, s{sT1}, s{sT2}
    s_lshl_b32 s{sT2}, s3, 9
    s_add_u32 s{sT1}, s{sT1}, s{sT2}
    s_add_u32 s{sT1}, s{sT1}, {WS_QP}
    v_lshlrev_b32 v{vQpoll}, 12, v{vTmp}
    v_lshl_add_u32 v{vQpoll}, v{vTmp+1}, 4, v{vQpoll}
    v_add_u32 v{vQpoll}, s{sT1}, v{vQpoll}
    s_lshl_b32 s{sT1}, s3, 8
    v_lshlrev_b32 v{vQw}, 3, v{vTmp+1}
    v_lshl_add_u32 v{vQw}, v{vTmp}, 2, v{vQw}
    v_add_u32 v{vQw}, s{sT1}, v{vQw}
    v_and_b32 v{t6}, 1, v{vKS}
    v_lshlrev_b32 v{t6}, 4, v{t6}
    v_lshl_add_u32 v{t6}, v{vN}, 5, v{t6}
    v_add_u32 v{t6}, s{sT0}, v{t6}
    v_lshl_add_u32 v{vOw}, v{vTmp}, 10, v{t6}
    s_and_b32 s{sT1}, s{sROT}, 1
    s_lshl_b32 s{sT1}, s{sT1}, 9
    v_xor_b32 v{vOw}, s{sT1}, v{vOw}
    v_lshl_add_u32 v{vFw}, v{vTmp}, 9, v{t6}
    ; publish role of wave w: h = w>>1, dblk = 8*(w&1) + (l>>3), slot = l&7
    s_lshr_b32 s{sT1}, s3, 1                        ; h
    s_and_b32 s{sT2}, s3, 1
    v_lshrrev_b32 v{t6}, 3, v{vL}                   ; l>>3
    s_lshl_b32 s{sT3}, s{sT2}, 3
    v_add_u32 v{t6}, s{sT3}, v{t6}                  ; dblk
    v_and_b32 v{t7}, 3, v{vL}                       ; slot&3
    v_lshlrev_b32 v{vOr}, 6, v{t6}
    v_lshl_add_u32 v{vOr}, v{t7}, 4, v{vOr}
    s_lshl_b32 s{sT3}, s{sT1}, 10
    v_add_u32 v{vOr}, s{sT3}, v{vOr}
    s_lshl_b32 s{sT3}, s{sHKV}, 1
    s_add_u32 s{sT3}, s{sT3}, s{sT1}
    s_lshl_b32 s{sT3}, s{sT3}, 16
    s_lshl_b32 s{sT4}, s{sB}, 11
    s_add_u32 s{sT3}, s{sT3}, s{sT4}
    s_lshl_b32 s{sT4}, s{sC}, 7
    s_add_u32 s{sT3}, s{sT3}, s{sT4}
    s_add_u32 s{sT3}, s{sT3}, {WS_OP}
    v_lshlrev_b32 v{vOP}, 12, v{t6}
    v_and_b32 v{t7}, 7, v{vL}                       ; slot
    v_lshl_add_u32 v{vOP}, v{t7}, 4, v{vOP}
    v_add_u32 v{vOP}, s{sT3}, v{vOP}
    ; H2 address
    s_lshr_b32 s{sT1}, s{sRG}, 2
    s_lshl_b32 s{sT2}, s{sHKV}, 1
    s_add_u32 s{sT1}, s{sT1}, s{sT2}
    s_and_b32 s{sT2}, s{sRG}, 3
    s_lshl_b32 s{sT2}, s{sT2}, 2
    s_add_u32 s{sT2}, s{sT2}, s3
    s_lshl_b32 s{sT3}, s{sT1}, 16
    s_lshl_b32 s{sT2}, s{sT2}, 12
    s_add_u32 s{sT3}, s{sT3}, s{sT2}
    s_add_u32 s{sT3}, s{sT3}, {WS_OP}
    v_lshlrev_b32 v{vAd}, 11, v{t5}
    v_lshl_add_u32 v{vAd}, v{vKS}, 9, v{vAd}
    v_lshl_add_u32 v{vAd}, v{t7}, 4, v{vAd}
    v_add_u32 v{vAd}, s{sT3}, v{vAd}
    v_lshlrev_b32 v{vFr}, 9, v{vTmp}
    v_lshl_add_u32 v{vFr}, v{vTmp+1}, 4, v{vFr}
    s_lshl_b32 s{sT1}, s{sHKV}, 3
    s_add_u32 s{sT1}, s{sT1}, s{sRG}
    s_lshl_b32 s{sT1}, s{sT1}, 12
    s_lshl_b32 s{sT2}, s{sCT}, 10
    s_add_u32 s{sT1}, s{sT1}, s{sT2}
    s_add_u32 s{sT1}, s{sT1}, {WS_FP}
    v_lshlrev_b32 v{vFP}, 4, v{vL}
    v_add_u32 v{vFP}, s{sT1}, v{vFP}
    ; final-stage role: line lam = (j>>3)*8 + xcd (valid < 28), member = j&7 ; b3 = lam/14, r = lam%14 ; ct3 = r>>2 (r<12) or 3 ; m = r&3 or r-12
    s_lshr_b32 s{sT1}, s{sJ}, 3
    s_lshl_b32 s{sT1}, s{sT1}, 3
    s_add_u32 s{sH3}, s{sT1}, s{sHKV}               ; lam
    s_cmp_ge_u32 s{sH3}, 14
    s_cselect_b32 s{sT2}, 1, 0                      ; b3
    s_mul_i32 s{sT3}, s{sT2}, 14
    s_sub_u32 s{sT3}, s{sH3}, s{sT3}
    s_lshl_b32 s{sT4}, s{sT3}, 3
    s_and_b32 s{sT1}, s{sJ}, 7
    s_add_u32 s{sT4}, s{sT4}, s{sT1}
    s_lshr_b32 s{sT1}, s{sT4}, 5                    ; ct3
    s_lshl_b32 s{sT1}, s{sT1}, 10
    s_and_b32 s{sT3}, s{sT4}, 31
    s_lshl_b32 s{sT3}, s{sT3}, 4
    s_add_u32 s{sT1}, s{sT1}, s{sT3}
    s_lshl_b32 s{sT3}, s{sT2}, 9
    s_add_u32 s{sT1}, s{sT1}, s{sT3}
    s_add_u32 s{sT1}, s{sT1}, {WS_FP}
    v_lshlrev_b32 v{vH3}, 12, v{vL}
    v_add_u32 v{vH3}, s{sT1}, v{vH3}
    s_mul_i32 s{sT2}, s{sT2}, 896
    s_lshl_b32 s{sT4}, s{sT4}, 3
    s_add_u32 s{sT2}, s{sT2}, s{sT4}
    v_lshlrev_b32 v{vOut}, 1, v{vKS}
    v_add_u32 v{vOut}, s{sT2}, v{vOut}
    s_lshl_b32 s{sT1}, s{sHKV}, 9
    s_lshl_b32 s{sT2}, s{sRG}, 6
    s_add_u32 s{sT1}, s{sT1}, s{sT2}
    s_lshl_b32 s{sT2}, s3, 4
    s_add_u32 s{sT1}, s{sT1}, s{sT2}
    s_mul_i32 s{sT1}, s{sT1}, 896
    s_lshl_b32 s{sT2}, s{sCT}, 8
    s_add_u32 s{sT1}, s{sT1}, s{sT2}
    s_add_u32 s{sWO}, s{sWO}, s{sT1}
    s_addc_u32 s{sWO+1}, s{sWO+1}, 0
    s_add_u32 s{sWO2}, s{sWO}, 7168
    s_addc_u32 s{sWO2+1}, s{sWO+1}, 0
    ''')
    tagdone = [False]
    def kop_reads():
        for s in range(8):
            t = vTmp + 4 + (s & 1)
            a(f'v_xor_b32 v{t}, {s << 6}, v{vKrd}')
            a(f'ds_read_b128 v[{vKop+4*s}:{vKop+4*s+3}], v{t}')
    kdone = False
    idxP = elems.index(('P', 0))
    last_pre = min(len(elems) - 1, max(idxP + W - 1, 7 + W))
    if o['vmode'] == 'k6': last_pre = len(elems) - 1
    for i in range(W, last_pre + 1):
        if o['W2'] and i > idxP + 1:
            Wi = o['W2']
            if i - Wi >= 0 and Wi <= i: a(f's_waitcnt vmcnt({min(Wi - 1, 63)})')
        else:
            a(f's_waitcnt vmcnt({W-1})')
        if not tagdone[0]:
            a(f'v_add_u32 v{vT}, 0x01010101, v{vT}'); tagdone[0] = True
            issue(elems[i])
            if o['fast'] and o['prewrite']:
                for k in range(4): a(f'v_xor_b32 v{vO+k}, 0x80808080, v{vT}')
                for k in range(4): a(f'v_perm_b32 v{vO+k}, v{vO+k}, v{vO+k}, s{sSEL+k}')
                a(f'global_store_dwordx4 v{vOP}, v[{vO}:{vO+3}], {WS}'); vm.issue('pw')
            continue
        issue(elems[i])
        if i - W >= 7 and not kdone:
            if o['W2']: vm.wait('K7')
            stamp('kdone'); kop_reads(); kdone = True
    rest = elems[last_pre + 1:]
    assert kdone
    vm.wait('P')
    if o['vmode'] == 'k7b':
        for e in rest: issue(e)
        rest = []
    a('L_h1_chk:')
    tag_check(vP, vTmp+4, vTmp+6)
    a(f'''
    v_cmp_ne_u32 vcc, 0, v{vTmp+6}
    s_cbranch_vccz L_h1_ok
    ''')
    retry_loop('L_h1_r', lambda base: a(f'global_load_dwordx4 v[{vP}:{vP+3}], v{vQpoll}, {base} sc1'),
               lambda: tag_check(vP, vTmp+4, vTmp+6), vTmp+6, 'L_h1_ok')
    a('L_h1_ok:\ns_mov_b64 exec, -1')
    stamp('qpoll'); note(14, 0, sSPIN)
    untag([vP, vP+1, vP+2, vP+3])
    a(f'''
    v_permlane32_swap_b32 v{vP}, v{vP+2}
    v_permlane32_swap_b32 v{vP+1}, v{vP+3}
    v_add_f32 v{vP}, v{vP}, v{vP+2}
    v_add_f32 v{vP+1}, v{vP+1}, v{vP+3}
    v_cvt_pk_bf16_f32 v{vP}, v{vP}, v{vP+1}
    ds_write_b32 v{vQw}, v{vP} offset:{Q_LDS}
    ''')
    for e in rest: issue(e)
    a('s_waitcnt lgkmcnt(0)\ns_barrier')
    stamp('qready')
    wo_done = [False]*4
    def wo_at(where):
        for g in range(4):
            if o['wo_at'][g] == where and not wo_done[g]:
                base = sWO if g < 2 else sWO2
                off = ' offset:3584' if g & 1 else ''
                a(f'global_load_dwordx4 v[{vWO+4*g}:{vWO+4*g+3}], v{vWoff}, s[{base}:{base+1}]{off}{NT("wo")}')
                vm.issue(f'wo{g}'); wo_done[g] = True
    for s in range(8):
        a(f'ds_read_b128 v[{vQop+4*s}:{vQop+4*s+3}], v{vQrd} offset:{Q_LDS + s*64}')
    wo_at('bq')
    for s in range(8):
        if not o['stamps']: a(f's_waitcnt lgkmcnt({7 - s})')
        elif s == 0: a('s_waitcnt lgkmcnt(0)')
        c = '0' if s == 0 else f'v[{vS}:{vS+3}]'
        a(f'v_mfma_f32_16x16x32_bf16 v[{vS}:{vS+3}], v[{vKop+4*s}:{vKop+4*s+3}], v[{vQop+4*s}:{vQop+4*s+3}], {c}')
    wo_at('qk')
    s0, s1, s2_, s3_ = vS, vS+1, vS+2, vS+3
    if o['round_scores']:
        a(f'''
    v_cvt_pk_bf16_f32 v{vTmp}, v{s0}, v{s1}
    v_cvt_pk_bf16_f32 v{vTmp+1}, v{s2_}, v{s3_}
    v_lshlrev_b32 v{s0}, 16, v{vTmp}
    v_and_b32 v{s1}, 0xffff0000, v{vTmp}
    v_lshlrev_b32 v{s2_}, 16, v{vTmp+1}
    v_and_b32 v{s3_}, 0xffff0000, v{vTmp+1}
    ''')
    vMx, vLs = vTmp+2, vTmp+3
    a(f'''
    v_max3_f32 v{vMx}, v{s0}, v{s1}, v{s2_}
    v_max_f32 v{vMx}, v{vMx}, v{s3_}
    ''')
    allreduce_rows('v_max_f32', vMx, vTmp)
    wo_at('b3')
    a(f'''
    v_mul_f32 v{vMx}, s{sC2}, v{vMx}
    v_fma_f32 v{s0}, v{s0}, s{sC2}, -v{vMx}
    v_fma_f32 v{s1}, v{s1}, s{sC2}, -v{vMx}
    v_fma_f32 v{s2_}, v{s2_}, s{sC2}, -v{vMx}
    v_fma_f32 v{s3_}, v{s3_}, s{sC2}, -v{vMx}
    v_exp_f32 v{s0}, v{s0}
    v_exp_f32 v{s1}, v{s1}
    v_exp_f32 v{s2_}, v{s2_}
    v_exp_f32 v{s3_}, v{s3_}
    ''')
    for r in range(4):
        a(f'v_cvt_pk_bf16_f32 v{vTmp+4+r}, v{vS+r}, v{vS+r}')
    def pa(r):
        for k in range(4):
            a(f'v_and_b32 v{vPA+4*r+k}, v{vTmp+4+r}, v{vM+k}')
    def pv(r):
        for h in range(2):
            c = '0' if r == 0 else f'v[{vAcc+4*h}:{vAcc+4*h+3}]'
            i = r*2+h
            a(f'v_mfma_f32_16x16x32_bf16 v[{vAcc+4*h}:{vAcc+4*h+3}], v[{vPA+4*r}:{vPA+4*r+3}], v[{vV+4*i}:{vV+4*i+3}], {c}')
    wo_at('sm')
    pa(0)
    stamp('qk')
    for r in range(4):
        if r < 3: pa(r + 1)
        vm.wait(f'V{2*r+1}')
        if r == 3: stamp('vdone')
        pv(r)
        if r == 0:
            a(f'''
    v_add_f32 v{vLs}, v{s0}, v{s1}
    v_add_f32 v{vTmp+8}, v{s2_}, v{s3_}
    v_add_f32 v{vLs}, v{vLs}, v{vTmp+8}
    ''')
        if r == 1:
            allreduce_rows('v_add_f32', vLs, vTmp)
        if r == 2:
            a(f'''
    s_mov_b32 exec_lo, 0x101
    s_mov_b32 exec_hi, 0
    ds_write_b32 v{vMXa}, v{vMx} offset:{MX_LDS}
    ds_write_b32 v{vMXa}, v{vLs} offset:{LS_LDS}
    s_mov_b64 exec, -1
    ''')
    wo_at('pv')
    MS = f's[{sMSK}:{sMSK+1}]'
    a(f'''
    v_xor_b32 v{vTmp+11}, 512, v{vOw}
    s_lshr_b32 s{sT0}, s3, 1
    s_lshl_b32 s{sT0}, s{sT0}, 4
    v_mov_b32 v{vTmp+9}, s{sT0}                     ; h*16
    v_lshrrev_b32 v{vTmp+8}, 3, v{vN}
    v_lshlrev_b32 v{vTmp+8}, 2, v{vTmp+8}
    ds_read_b32 v{vGf}, v{vTmp+8} offset:{G_LDS}
    v_and_b32 v{vTmp+10}, 4, v{vL}
    v_cmp_ne_u32 {MS}, 0, v{vTmp+10}                ; slot >= 4
    ds_write_b128 v{vOw}, v[{vAcc}:{vAcc+3}]
    ds_write_b128 v{vTmp+11}, v[{vAcc+4}:{vAcc+7}]
    s_waitcnt lgkmcnt(0)
    s_barrier
    ''')
    stamp('pv')
    vMw, vLw = vTmp, vTmp+4
    vFw4 = [vTmp+12, vTmp+14, vTmp+16, vTmp+18]
    a(f'''
    ds_read_b128 v[{vMw}:{vMw+3}], v{vTmp+9} offset:{MX_LDS}
    ds_read_b128 v[{vLw}:{vLw+3}], v{vTmp+9} offset:{LS_LDS}
    ''')
    if o['placechk']:
        a(f'v_mov_b32 v{vTmp+10}, 0\nds_read_b32 v{vTmp+10}, v{vTmp+10} offset:{PV_LDS}')
    for ww in range(4):
        a(f'ds_read_b128 v[{vO+4*ww}:{vO+4*ww+3}], v{vOr} offset:{8192*ww}')
    a('s_waitcnt lgkmcnt(4)' if not o['stamps'] else 's_waitcnt lgkmcnt(0)')
    if o['placechk']: a(f'v_readfirstlane_b32 s{sPV}, v{vTmp+10}')
    a(f'''
    v_max3_f32 v{vTmp+8}, v{vMw}, v{vMw+1}, v{vMw+2}
    v_max_f32 v{vTmp+8}, v{vTmp+8}, v{vMw+3}        ; M
    ''')
    for ww in range(4): a(f'v_sub_f32 v{vFw4[ww]}, v{vMw+ww}, v{vTmp+8}')
    for ww in range(4): a(f'v_exp_f32 v{vFw4[ww]}, v{vFw4[ww]}')
    a(f'v_mul_f32 v{vTmp+9}, v{vFw4[0]}, v{vLw}')
    for ww in range(1, 4): a(f'v_fmac_f32 v{vTmp+9}, v{vFw4[ww]}, v{vLw+ww}')
    a('s_waitcnt lgkmcnt(0)')
    a(f'v_pk_mul_f32 v[{vO}:{vO+1}], v[{vO}:{vO+1}], v[{vFw4[0]}:{vFw4[0]+1}] op_sel_hi:[1,0]')
    a(f'v_pk_mul_f32 v[{vO+2}:{vO+3}], v[{vO+2}:{vO+3}], v[{vFw4[0]}:{vFw4[0]+1}] op_sel_hi:[1,0]')
    for ww in range(1, 4):
        a(f'v_pk_fma_f32 v[{vO}:{vO+1}], v[{vO+4*ww}:{vO+4*ww+1}], v[{vFw4[ww]}:{vFw4[ww]+1}], v[{vO}:{vO+1}] op_sel_hi:[1,0,1]')
        a(f'v_pk_fma_f32 v[{vO+2}:{vO+3}], v[{vO+4*ww+2}:{vO+4*ww+3}], v[{vFw4[ww]}:{vFw4[ww]+1}], v[{vO+2}:{vO+3}] op_sel_hi:[1,0,1]')
    a(f'''
    v_cndmask_b32 v{vO}, v{vO}, v{vTmp+8}, {MS}
    v_cndmask_b32 v{vO+1}, v{vO+1}, v{vTmp+9}, {MS}
    v_cndmask_b32 v{vO+2}, v{vO+2}, v{vTmp+8}, {MS}
    v_cndmask_b32 v{vO+3}, v{vO+3}, v{vTmp+9}, {MS}
    ''')
    tag_insert([vO, vO+1, vO+2, vO+3])
    publish(vm, vOP, vO, 'opub', lazy=True)
    stamp('opub')
    wo_at('pub')
    if o['o_delay']: vm.wait(o['o_delay'])
    vD = vV
    def h2loads(base):
        for k in range(4):
            a(f'global_load_dwordx4 v[{vD+4*k}:{vD+4*k+3}], v{vAd}, {base} offset:{128*k} sc1')
    h2loads(FIRST)
    for k in range(4): vm.issue(f'D{k}')
    wo_at('poll')
    vm.wait('D3')
    stamp('h2f')
    a('L_h2_comp:')
    t = vTmp
    vMk = vV+16
    vWk = [vV+20, vV+22, vV+24, vV+26]
    vMxx, vLp, vX, tt = t, t+1, t+2, t+6
    vBad = t+7
    c = [t+8, t+9, t+10, t+11]; ca, cb = t+12, t+13
    fill = []
    for k in range(4): fill += chk(vD+4*k, ca, cb, c[k])
    fill += [f'v_or3_b32 v{vBad}, v{c[0]}, v{c[1]}, v{c[2]}', f'v_or_b32 v{vBad}, v{vBad}, v{c[3]}']
    def F(n):
        for _ in range(n):
            if fill: a(fill.pop(0))
    for k in range(4):
        a(f'v_mov_b32_dpp v{vMk+k}, v{vD+4*k} row_shl:4 row_mask:0xf bank_mask:0xf bound_ctrl:0')
    untag([vMk, vMk+1, vMk+2, vMk+3])
    a(f'v_max3_f32 v{vMxx}, v{vMk}, v{vMk+1}, v{vMk+2}')
    a(f'v_max_f32 v{vMxx}, v{vMxx}, v{vMk+3}')
    a(f'v_mov_b32 v{tt}, v{vMxx}')
    F(2)
    a(f'v_permlane16_swap_b32 v{vMxx}, v{tt}')
    a(f'v_max_f32 v{vMxx}, v{vMxx}, v{tt}')
    a(f'v_mov_b32 v{tt}, v{vMxx}')
    F(2)
    a(f'v_permlane32_swap_b32 v{vMxx}, v{tt}')
    a(f'v_max_f32 v{vMxx}, v{vMxx}, v{tt}')
    for k in range(4): a(f'v_sub_f32 v{vWk[k]}, v{vMk+k}, v{vMxx}')
    for k in range(4): a(f'v_exp_f32 v{vWk[k]}, v{vWk[k]}')
    F(32)
    a(f'''
    v_cmp_ne_u32 vcc, 0, v{vBad}
    s_cbranch_vccz L_h2_ok
    ''')
    def h2checks():
        for k in range(4):
            for ln in chk(vD+4*k, ca, cb, c[k]): a(ln)
        a(f'v_or3_b32 v{vBad}, v{c[0]}, v{c[1]}, v{c[2]}\nv_or_b32 v{vBad}, v{vBad}, v{c[3]}')
    retry_loop('L_h2_r', h2loads, h2checks, vBad, 'L_h2_ok', own_b=(vOP, vO))
    a('''
    s_mov_b64 exec, -1
    s_branch L_h2_comp
L_h2_ok:
    s_mov_b64 exec, -1
    ''')
    if o['fast'] and o['lazy_b']:
        publish_b(vOP, vO); vm.issue('opub_b')
    stamp('h2'); note(14, 1, sSPIN)
    untag([vD+4*k+1 for k in range(4)] + [vD+4*k+i for k in range(4) for i in (0, 2, 3)])
    a(f'v_mul_f32_dpp v{vLp}, v{vD+1}, v{vWk[0]} row_shl:4 row_mask:0xf bank_mask:0xf bound_ctrl:0')
    a(f'v_pk_mul_f32 v[{vX}:{vX+1}], v[{vD}:{vD+1}], v[{vWk[0]}:{vWk[0]+1}] op_sel_hi:[1,0]')
    a(f'v_pk_mul_f32 v[{vX+2}:{vX+3}], v[{vD+2}:{vD+3}], v[{vWk[0]}:{vWk[0]+1}] op_sel_hi:[1,0]')
    for k in range(1, 4):
        a(f'v_fmac_f32_dpp v{vLp}, v{vD+4*k+1}, v{vWk[k]} row_shl:4 row_mask:0xf bank_mask:0xf bound_ctrl:0')
        a(f'v_pk_fma_f32 v[{vX}:{vX+1}], v[{vD+4*k}:{vD+4*k+1}], v[{vWk[k]}:{vWk[k]+1}], v[{vX}:{vX+1}] op_sel_hi:[1,0,1]')
        a(f'v_pk_fma_f32 v[{vX+2}:{vX+3}], v[{vD+4*k+2}:{vD+4*k+3}], v[{vWk[k]}:{vWk[k]+1}], v[{vX+2}:{vX+3}] op_sel_hi:[1,0,1]')
    a(f'''
    v_mov_b32 v{tt}, v{vLp}
    v_permlane32_swap_b32 v{vX}, v{vX+2}
    v_permlane32_swap_b32 v{vX+1}, v{vX+3}
    v_permlane16_swap_b32 v{vLp}, v{tt}
    v_add_f32 v{vX}, v{vX}, v{vX+2}
    v_add_f32 v{vX+1}, v{vX+1}, v{vX+3}
    v_add_f32 v{vLp}, v{vLp}, v{tt}
    v_mov_b32 v{tt}, v{vLp}
    v_permlane16_swap_b32 v{vX}, v{vX+1}
    v_permlane32_swap_b32 v{vLp}, v{tt}
    v_add_f32 v{vX}, v{vX}, v{vX+1}
    v_add_f32 v{vLp}, v{vLp}, v{tt}
    v_rcp_f32 v{vLp}, v{vLp}
    v_mul_f32 v{vX}, v{vX}, v{vGf}
    v_mul_f32 v{vX}, v{vX}, v{vLp}
    v_cvt_pk_bf16_f32 v{vX}, v{vX}, v{vX}
    v_mov_b32_dpp v{vX}, v{vX} row_shr:4 row_mask:0xf bank_mask:0xa
    ''')
    vAo = vPA
    wo_known = (o['o_delay'] == 'wo3' and all(x_ != 'poll' for x_ in o['wo_at']))
    def ands(g):
        for k in range(4):
            a(f'v_and_b32_dpp v{vAo+4*g+k}, v{vX}, v{vM+k} quad_perm:[{g},{g},{g},{g}] row_mask:0xf bank_mask:0xf')
    ands(0)
    for g in range(4):
        if g < 3: ands(g + 1)
        if not wo_known: vm.wait(f'wo{g}')
        cc = '0' if g == 0 else f'v[{vAcc}:{vAcc+3}]'
        a(f'v_mfma_f32_16x16x32_bf16 v[{vAcc}:{vAcc+3}], v[{vAo+4*g}:{vAo+4*g+3}], v[{vWO+4*g}:{vWO+4*g+3}], {cc}')
    a(f'''
    ds_write_b128 v{vFw}, v[{vAcc}:{vAcc+3}] offset:4096
    s_waitcnt lgkmcnt(0)
    s_barrier
    s_cmp_lg_u32 s3, 0
    s_cbranch_scc1 L_m_done
    ''')
    for ww in range(4):
        a(f'ds_read_b128 v[{vO+4*ww}:{vO+4*ww+3}], v{vFr} offset:{8192*ww+4096}')
    a(f'''
    ds_read_b128 v[{vO+16}:{vO+19}], v{vFr} offset:{F5_LDS}
    s_waitcnt lgkmcnt(0)
    v_pk_add_f32 v[{vO}:{vO+1}], v[{vO}:{vO+1}], v[{vO+4}:{vO+5}]
    v_pk_add_f32 v[{vO+2}:{vO+3}], v[{vO+2}:{vO+3}], v[{vO+6}:{vO+7}]
    v_pk_add_f32 v[{vO+8}:{vO+9}], v[{vO+8}:{vO+9}], v[{vO+12}:{vO+13}]
    v_pk_add_f32 v[{vO+10}:{vO+11}], v[{vO+10}:{vO+11}], v[{vO+14}:{vO+15}]
    v_pk_add_f32 v[{vO}:{vO+1}], v[{vO}:{vO+1}], v[{vO+16}:{vO+17}]
    v_pk_add_f32 v[{vO+2}:{vO+3}], v[{vO+2}:{vO+3}], v[{vO+18}:{vO+19}]
    v_pk_add_f32 v[{vO}:{vO+1}], v[{vO}:{vO+1}], v[{vO+8}:{vO+9}]
    v_pk_add_f32 v[{vO+2}:{vO+3}], v[{vO+2}:{vO+3}], v[{vO+10}:{vO+11}]
    ''')
    tag_insert([vO, vO+1, vO+2, vO+3])
    a(f'global_store_dwordx4 v{vFP}, v[{vO}:{vO+3}], {WS} sc1')
    stamp('fpub')
    vF = vV
    a(f'''
    s_cmp_ge_u32 s{sH3}, 28
    s_cbranch_scc1 L_m_done
    ''')
    if o['h3_ack']: a('s_waitcnt vmcnt(0)')
    if o['h3_pipe'] == 1:
        a(f'''
L_h3_loop:
    global_load_dwordx4 v[{vF}:{vF+3}], v{vH3}, {WS} sc1
    s_waitcnt vmcnt(0)
    ''')
        tag_check(vF, vTmp+2, vTmp+4)
        a(f'''
    v_cmp_ne_u32 vcc, 0, v{vTmp+4}
    s_cbranch_vccz L_h3_ok
    s_mov_b64 exec, vcc
    s_sub_u32 s{sSPIN}, s{sSPIN}, 1
    s_cmp_lg_u32 s{sSPIN}, 0
    s_cbranch_scc1 L_h3_loop
L_h3_ok:
    s_mov_b64 exec, -1
    ''')
    else:
        G = vF + 8
        a(f'''
    s_mov_b64 s[{sMSK}:{sMSK+1}], -1
    global_load_dwordx4 v[{vF}:{vF+3}], v{vH3}, {WS} sc1
L_h3_loop:
    global_load_dwordx4 v[{vF+4}:{vF+7}], v{vH3}, {WS} sc1
    s_waitcnt vmcnt(1)
    ''')
        def absorb(base):
            tag_check(base, vTmp+2, vTmp+4)
            a(f'''
    v_cmp_eq_u32 vcc, 0, v{vTmp+4}
    s_andn2_b64 s[{sMSK}:{sMSK+1}], s[{sMSK}:{sMSK+1}], vcc
    s_mov_b64 s[{sT0}:{sT0+1}], exec
    s_mov_b64 exec, vcc
    v_mov_b32 v{G}, v{base}
    v_mov_b32 v{G+1}, v{base+1}
    v_mov_b32 v{G+2}, v{base+2}
    v_mov_b32 v{G+3}, v{base+3}
    s_mov_b64 exec, s[{sT0}:{sT0+1}]
    ''')
        absorb(vF)
        a(f'''
    s_cmp_eq_u64 s[{sMSK}:{sMSK+1}], 0
    s_cbranch_scc1 L_h3_ok
    s_mov_b64 exec, s[{sMSK}:{sMSK+1}]
    global_load_dwordx4 v[{vF}:{vF+3}], v{vH3}, {WS} sc1
    s_waitcnt vmcnt(1)
    ''')
        absorb(vF+4)
        a(f'''
    s_cmp_eq_u64 s[{sMSK}:{sMSK+1}], 0
    s_cbranch_scc1 L_h3_ok
    s_mov_b64 exec, s[{sMSK}:{sMSK+1}]
    s_sub_u32 s{sSPIN}, s{sSPIN}, 1
    s_cmp_lg_u32 s{sSPIN}, 0
    s_cbranch_scc1 L_h3_loop
L_h3_ok:
    s_mov_b64 exec, -1
    ''')
        vF = G
    stamp('h3'); note(15, 0, sSPIN)
    untag([vF, vF+1, vF+2, vF+3])
    a(f'''
    v_permlane32_swap_b32 v{vF}, v{vF+2}
    v_permlane32_swap_b32 v{vF+1}, v{vF+3}
    v_add_f32 v{vF}, v{vF}, v{vF+2}
    v_add_f32 v{vF+1}, v{vF+1}, v{vF+3}
    v_permlane16_swap_b32 v{vF}, v{vF+1}
    v_add_f32 v{vF}, v{vF}, v{vF+1}
    v_add_f32_dpp v{vF}, v{vF}, v{vF} row_ror:8 row_mask:0xf bank_mask:0xf
    v_add_f32_dpp v{vF}, v{vF}, v{vF} row_ror:4 row_mask:0xf bank_mask:0xf
    v_add_f32_dpp v{vF}, v{vF}, v{vF} row_ror:2 row_mask:0xf bank_mask:0xf
    v_add_f32_dpp v{vF}, v{vF}, v{vF} row_ror:1 row_mask:0xf bank_mask:0xf
    v_cvt_pk_bf16_f32 v{vF}, v{vF}, v{vF}
    s_mov_b32 exec_lo, 0x00010001
    s_mov_b32 exec_hi, 0x00010001
    global_store_short v{vOut}, v{vF}, s[{sOUT}:{sOUT+1}]
    s_cmp_lg_u32 s2, 0
    s_cbranch_scc1 L_m_done
    v_mov_b32 v{vTmp}, 0
    s_mov_b64 exec, 1
    global_store_dword v{vTmp}, v{vT}, {WS} sc1
L_m_done:
    s_mov_b64 exec, -1
    ''')
    stamp('end')
    a('s_branch L_fin')

    a('L_aux:')
    vm = VM(a)
    if o['prio']:
        a('s_setprio 3')
    vA16, vWq, vTr, vXr = 4, 5, 6, 7
    vXB = 8
    vWA = 36
    vD0, vD1 = 68, 72
    vt = 76
    aM = 96
    aXA = 100
    aW1 = 128
    aW1off, aHP, aQP, aXd, aW2off, aAh, aFw = 156, 157, 158, 159, 160, 161, 162
    aRG = 164
    aW2 = 8
    aH = 40
    aA = 56
    a(f'''
    v_lshlrev_b32 v{vA16}, 4, v{vL}
    v_lshrrev_b32 v{vt}, 2, v{vL}
    v_and_b32 v{vt+1}, 3, v{vL}
    v_lshlrev_b32 v{vt+1}, 4, v{vt+1}
    v_lshl_add_u32 v{vWq}, v{vt}, 13, v{vt+1}
    s_and_b32 s{sT0}, s{sJ}, 1                      ; rh
    s_lshr_b32 s{sT1}, s{sJ}, 1                     ; ct32
    s_mul_i32 s{sT2}, s{sT0}, {224*8192}
    s_lshl_b32 s{sT3}, s{sHKV}, 10
    s_add_u32 s{sT2}, s{sT2}, s{sT3}
    s_lshl_b32 s{sT3}, s{sT1}, 6
    s_add_u32 s{sT2}, s{sT2}, s{sT3}
    v_mov_b32 v{vt+2}, 0
    s_waitcnt lgkmcnt(0)
    ''')
    stamp('karg')
    a(f'''
    s_add_u32 s{sWQ}, s{sWQ}, s{sT2}
    s_addc_u32 s{sWQ+1}, s{sWQ+1}, 0
    {'' if o['e_late'] else f'global_load_dword v{vT}, v{vt+2}, {WS}{ESC}'}
    s_mov_b32 m0, {X_LDS}
    s_add_u32 s{sWSB}, s{sWS}, {WS_ALT}
    global_load_lds_dwordx4 v{vA16}, s[{sX}:{sX+1}]
    s_addc_u32 s{sWSB+1}, s{sWS+1}, 0
    s_mov_b32 exec_lo, -1
    s_mov_b32 exec_hi, 0x0000ffff
    global_load_lds_dwordx4 v{vA16}, s[{sX}:{sX+1}] offset:1024
    s_mov_b32 m0, {GW_LDS}
    s_mov_b32 exec_hi, 0x00ffffff
    global_load_lds_dwordx4 v{vA16}, s[{sGW}:{sGW+1}]
    s_mov_b64 exec, -1
    ''')
    if o.get('noa'): a(f's_add_u32 s{sDUM}, s{sWS}, 0x800000\ns_addc_u32 s{sDUM+1}, s{sWS+1}, 0')
    for n in (('x0', 'x1', 'gw') if o['e_late'] else ('E', 'x0', 'x1', 'gw')): vm.issue(n)
    for s in range(14):
        a(f's_mov_b32 m0, {WQ_LDS + s*1024}')
        if s > 0:
            a(f's_add_u32 s{sWQ}, s{sWQ}, {16*8192}\ns_addc_u32 s{sWQ+1}, s{sWQ+1}, 0')
        else:
            a('s_nop 0')
        a(f'global_load_lds_dwordx4 v{vWq}, s[{sWQ}:{sWQ+1}]{NT("wq")}')
        vm.issue(f'wq{s}')
    if o['e_late']:
        a(f'global_load_dword v{vT}, v{vt+2}, {WS}{ESC}'); vm.issue('E')
    if o['b1'] and o.get('b1_after') is None:
        a('s_barrier')
    a(f'''
    v_lshrrev_b32 v{vt}, 2, v{vN}
    v_lshlrev_b32 v{vt}, 6, v{vt}
    v_and_b32 v{vt+1}, 3, v{vN}
    v_lshl_add_u32 v{vt}, v{vt+1}, 3, v{vt}
    v_lshl_add_u32 v{vTr}, v{vKS}, 9, v{vt}
    v_lshrrev_b32 v{vt+3}, 3, v{vN}                 ; b = n>>3
    v_mul_u32_u24 v{vt}, 896, v{vt+3}
    v_lshl_add_u32 v{vXr}, v{vKS}, 4, v{vt}
    s_mul_i32 s{sT2}, s{sT0}, 448
    v_add_u32 v{vXr}, s{sT2}, v{vXr}
    s_lshl_b32 s{sT2}, s{sHKV}, 1
    s_add_u32 s{sT2}, s{sT2}, s{sT0}
    s_lshl_b32 s{sT2}, s{sT2}, 12
    s_lshl_b32 s{sT3}, s{sT1}, 7
    s_add_u32 s{sT2}, s{sT2}, s{sT3}
    s_add_u32 s{sT2}, s{sT2}, {WS_QP}
    v_lshlrev_b32 v{aQP}, 11, v{vt+3}
    v_and_b32 v{vt+1}, 1, v{vL}
    v_lshl_add_u32 v{aQP}, v{vt+1}, 6, v{aQP}
    v_lshl_add_u32 v{aQP}, v{vKS}, 4, v{aQP}
    v_add_u32 v{aQP}, s{sT2}, v{aQP}
    ''')
    masks(aM, vt+4)
    a(f'''
    s_mov_b32 s{sFX}, {hex(FXPERM)}
    s_lshl_b32 s{sT2}, s{sHKV}, 2
    s_lshr_b32 s{sFX}, s{sFX}, s{sT2}
    s_and_b32 s{sFX}, s{sFX}, 7
    s_cmp_eq_u32 s{sRG}, 4
    s_cselect_b32 s{sHASF2}, {3 if o['lightmap'] else 99}, s{sRG}
    {'' if o['lightmap'] else f's_mov_b32 s{sHASF2}, s{sRG}'}
    s_cmp_lt_u32 s{sRG}, {3 if o['lightmap'] else 4}
    s_cselect_b32 s{sF1}, 1, 0
    s_cmp_eq_u32 s{sRG}, {4 if o['lightmap'] else 99}
    s_cselect_b32 s{sF1}, 1, s{sF1}
    s_lshl_b32 s{sOI}, s{sHASF2}, 2
    s_add_u32 s{sOI}, s{sOI}, s{sCT}
    s_lshl_b32 s{sT2}, s{sFX}, 1
    s_add_u32 s{sT2}, s{sT2}, s{sB}                 ; 2*fx + (j>>4)
    s_add_u32 s{sT3}, s{sFX}, 6
    s_cmp_lt_u32 s{sFX}, 6
    s_cselect_b32 s{sT3}, s{sT2}, s{sT3}            ; ct128
    s_cselect_b32 s{sF1}, 1, s{sF1}
    s_cselect_b32 s{sPI}, s{sC}, s{sOI}             ; pi
    s_cselect_b32 s{sHASF2}, s{sRG}, s{sHASF2}      ; rgf
    s_and_b32 s{sPI}, s{sPI}, 15
    s_mul_i32 s{sT4}, s{sPI}, 28                    ; r0 = 28*pi
    s_mul_i32 s{sU}, s{sT4}, 3584
    s_lshl_b32 s{sOI}, s{sT3}, 8
    s_add_u32 s{sU}, s{sU}, s{sOI}
    s_add_u32 s{sW1}, s{sW1}, s{sU}
    s_addc_u32 s{sW1+1}, s{sW1+1}, 0
    v_mul_u32_u24 v{aW1off}, 3584, v{vKS}
    v_lshl_add_u32 v{aW1off}, v{vN}, 4, v{aW1off}
    s_mul_i32 s{sU}, s{sPI}, 14336
    s_lshl_b32 s{sOI}, s{sT3}, 9
    s_add_u32 s{sU}, s{sU}, s{sOI}
    s_add_u32 s{sU}, s{sU}, {WS_HP}
    v_lshrrev_b32 v{vt+7}, 5, v{vL}
    v_mul_u32_u24 v{aHP}, 7168, v{vt+7}
    v_and_b32 v{vt+8}, 31, v{vL}
    v_lshl_add_u32 v{aHP}, v{vt+8}, 4, v{aHP}
    v_add_u32 v{aHP}, s{sU}, v{aHP}
    v_mul_u32_u24 v{aXd}, 896, v{vt+3}
    v_lshl_add_u32 v{aXd}, v{vKS}, 1, v{aXd}
    s_lshl_b32 s{sU}, s{sT4}, 1
    v_add_u32 v{aXd}, s{sU}, v{aXd}
    s_lshl_b32 s{sU}, s{sFX}, 3
    s_lshl_b32 s{sT2}, s{sFX}, 2
    s_add_u32 s{sT2}, s{sT2}, 24
    s_cmp_lt_u32 s{sFX}, 6
    s_cselect_b32 s{sU}, s{sU}, s{sT2}
    s_add_u32 s{sU}, s{sU}, s{sHASF2}
    s_min_u32 s{sU}, s{sU}, 55
    s_lshr_b32 s{sT2}, s{sU}, 2
    s_lshl_b32 s{sT2}, s{sT2}, 7
    s_and_b32 s{sT3}, s{sU}, 1
    s_lshl_b32 s{sT3}, s{sT3}, 6
    s_add_u32 s{sT2}, s{sT2}, s{sT3}
    s_bfe_u32 s{sT3}, s{sU}, 0x10001
    s_lshl_b32 s{sT3}, s{sT3}, 2
    s_add_u32 s{sT2}, s{sT2}, s{sT3}
    s_mul_i32 s{sT2}, s{sT2}, 896
    s_lshl_b32 s{sT3}, s{sCT}, 8
    s_add_u32 s{sT2}, s{sT2}, s{sT3}
    s_add_u32 s{sW2}, s{sW2}, s{sT2}
    s_addc_u32 s{sW2+1}, s{sW2+1}, 0
    v_and_b32 v{vt+8}, s{sEXW}, v{vN}
    v_mul_u32_u24 v{aW2off}, 896, v{vKS}
    v_lshl_add_u32 v{aW2off}, v{vt+8}, 4, v{aW2off}
    ; H poll address: pi*14336 + b*7168 + u*128 + slot*16 ; pi = 4k + (l>>4), b = (l>>3)&1, slot = l&7
    v_mul_u32_u24 v{aAh}, 14336, v{vKS}
    v_mul_u32_u24 v{vt+8}, 7168, v{vt+3}
    v_add_u32 v{aAh}, v{aAh}, v{vt+8}
    v_and_b32 v{vt+8}, 7, v{vL}
    v_lshl_add_u32 v{aAh}, v{vt+8}, 4, v{aAh}
    s_lshl_b32 s{sT2}, s{sU}, 7
    s_add_u32 s{sT2}, s{sT2}, {WS_HP}
    v_add_u32 v{aAh}, s{sT2}, v{aAh}
    v_and_b32 v{vt+8}, 1, v{vKS}
    v_lshlrev_b32 v{vt+8}, 4, v{vt+8}
    v_lshl_add_u32 v{vt+8}, v{vN}, 5, v{vt+8}
    v_lshl_add_u32 v{aFw}, v{vt+7}, 9, v{vt+8}
    v_cmp_eq_u32 vcc, 1, v{vt+1}
    ''')
    vm.wait('gw')
    stamp('qready')
    if not o['e_late']: a(f'v_add_u32 v{vT}, 0x01010101, v{vT}')
    for s in range(7):
        a(f'ds_read_b128 v[{vXB+4*s}:{vXB+4*s+3}], v{vXr} offset:{X_LDS + 64*s}')
    for s in range(7):
        wa = vWA + 16*(s & 1)
        vm.wait(f'wq{2*s+1}')
        if o['b1'] and o.get('b1_after') == 2*s+1: a('s_barrier')
        for cg in range(2):
            for hf in range(2):
                a(f'ds_read_b64_tr_b16 v[{wa+8*cg+2*hf}:{wa+8*cg+2*hf+1}], v{vTr} offset:{WQ_LDS + s*2048 + hf*256 + cg*32}')
        a('s_waitcnt lgkmcnt(0)')
        for cg in range(2):
            d = vD0 if cg == 0 else vD1
            c_ = '0' if s == 0 else f'v[{d}:{d+3}]'
            a(f'v_mfma_f32_16x16x32_bf16 v[{d}:{d+3}], v[{wa+8*cg}:{wa+8*cg+3}], v[{vXB+4*s}:{vXB+4*s+3}], {c_}')
    stamp('a_wq')
    if o['e_late']:
        vm.wait('E'); a(f'v_add_u32 v{vT}, 0x01010101, v{vT}')
    for k in range(4):
        a(f'v_cndmask_b32 v{vD0+k}, v{vD0+k}, v{vD1+k}, vcc')
    tag_insert([vD0, vD0+1, vD0+2, vD0+3])
    a('s_mov_b32 exec_lo, 0x03030303\ns_mov_b32 exec_hi, 0x03030303')
    if o['fast'] and o['placechk'] and not o.get('nob'):
        if o.get('noa'):
            a(f'global_store_dwordx4 v{aQP}, v[{vD0}:{vD0+3}], s[{sDUM}:{sDUM+1}]')
        else:
            a(f'global_store_dwordx4 v{aQP}, v[{vD0}:{vD0+3}], {WS}')
        vm.issue('qpub_a')
        a(f'''
    s_getreg_b32 s{sPV}, hwreg(HW_REG_XCC_ID)
    s_lshl_b32 s{sPV}, s{sPV}, 8
    s_lshl_b32 s{sOI}, s2, 7
    s_add_u32 s{sOI}, s{sOI}, {WS_REG}
    s_mov_b32 exec_lo, 0x000c000c
    s_mov_b32 exec_hi, 0x000c000c
    v_and_b32 v{vt+16}, 1, v{vL}
    v_lshl_add_u32 v{vt+16}, v{vKS}, 1, v{vt+16}    ; slot = (l>>4)*2 + (l&1)
    v_lshlrev_b32 v{vt+16}, 4, v{vt+16}
    v_add_u32 v{aQP}, s{sOI}, v{vt+16}
    v_mov_b32 v{vD0}, s{sPV}
    v_mov_b32 v{vD0+1}, s{sPV}
    v_mov_b32 v{vD0+2}, s{sPV}
    v_mov_b32 v{vD0+3}, s{sPV}
    ''')
        tag_insert([vD0, vD0+1, vD0+2, vD0+3])
        a(f'''
    s_mov_b32 exec_lo, 0x030f030f
    s_mov_b32 exec_hi, 0x030f030f
    global_store_dwordx4 v{aQP}, v[{vD0}:{vD0+3}], {WSB} sc1
    ''')
        vm.issue('qpub')
    else:
        publish(vm, aQP, vD0, 'qpub')
    a('s_mov_b64 exec, -1')
    stamp('kdone')
    if o['aux_lowprio']: a('s_setprio 0')
    if o['fast'] and o['prewrite']:
        a(f'''
    s_cmp_eq_u32 s{sF1}, 0
    s_cbranch_scc1 L_a_nopw
    ''')
        for k in range(4): a(f'v_xor_b32 v{vt+12+k}, 0x80808080, v{vT}')
        for k in range(4): a(f'v_perm_b32 v{vt+12+k}, v{vt+12+k}, v{vt+12+k}, s{sSEL+k}')
        a(f'global_store_dwordx4 v{aHP}, v[{vt+12}:{vt+15}], {WS}')
        a('L_a_nopw:')
    g0 = vXB
    a(f'''
    v_mov_b32 v{vt+8}, 0
    v_mov_b32 v{vt+9}, 0
    s_mov_b32 exec_lo, -1
    s_mov_b32 exec_hi, 0x00ffffff
    ds_read_b128 v[{g0}:{g0+3}], v{vA16} offset:{X_LDS}
    ds_read_b128 v[{g0+4}:{g0+7}], v{vA16} offset:{X_LDS+896}
    ds_read_b128 v[{g0+8}:{g0+11}], v{vA16} offset:{GW_LDS}
    s_waitcnt lgkmcnt(0)
    ''')
    for k in range(4):
        a(f'v_dot2_f32_bf16 v{vt+8}, v{g0+k}, v{g0+8+k}, v{vt+8}')
        a(f'v_dot2_f32_bf16 v{vt+9}, v{g0+4+k}, v{g0+8+k}, v{vt+9}')
    a('s_mov_b64 exec, -1')
    for g in range(7):
        a(f'ds_read_u16 v{g0+12+g}, v{aXd} offset:{X_LDS + 8*g}')
    for n in (8, 4, 2, 1):
        for r in (vt+8, vt+9):
            a(f'v_add_f32_dpp v{r}, v{r}, v{r} row_ror:{n} row_mask:0xf bank_mask:0xf')
    allreduce_rows('v_add_f32', vt+8, vt+10)
    allreduce_rows('v_add_f32', vt+9, vt+10)
    a(f'''
    v_and_b32 v{vt+10}, 1, v{vL}
    v_cmp_eq_u32 vcc, 1, v{vt+10}
    v_cndmask_b32 v{vt+8}, v{vt+8}, v{vt+9}, vcc
    v_cvt_pk_bf16_f32 v{vt+8}, v{vt+8}, v{vt+8}
    v_lshlrev_b32 v{vt+8}, 16, v{vt+8}
    v_mul_f32 v{vt+8}, {hex(f2u(-LOG2E))}, v{vt+8}
    v_exp_f32 v{vt+8}, v{vt+8}
    v_add_f32 v{vt+8}, 1.0, v{vt+8}
    v_rcp_f32 v{vt+8}, v{vt+8}
    v_cvt_pk_bf16_f32 v{vt+8}, v{vt+8}, v{vt+8}
    v_lshlrev_b32 v{vt+8}, 16, v{vt+8}
    v_sub_f32 v{vt+9}, 1.0, v{vt+8}
    v_cvt_pk_bf16_f32 v{vt+9}, v{vt+9}, v{vt+9}
    v_lshlrev_b32 v{vt+9}, 16, v{vt+9}
    v_lshlrev_b32 v{vt+10}, 2, v{vt+10}
    s_mov_b64 exec, 3
    ds_write_b32 v{vt+10}, v{vt+8} offset:{G_LDS}
    s_mov_b64 exec, -1
    v_readlane_b32 s{sT2}, v{vt+9}, 0
    v_readlane_b32 s{sT3}, v{vt+9}, 1
    v_cmp_gt_u32 vcc, 32, v{vL}
    v_mov_b32 v{vt+11}, s{sT3}
    v_mov_b32 v{vt+12}, s{sT2}
    v_cndmask_b32 v{vt+11}, v{vt+11}, v{vt+12}, vcc
    s_waitcnt lgkmcnt(0)
    ''')
    for g in range(7):
        a(f'v_lshl_or_b32 v{g0+12+g}, v{g0+12+g}, 16, v{g0+12+g}')
    for g in range(7):
        for k in range(4):
            a(f'v_and_b32 v{aXA+4*g+k}, v{g0+12+g}, v{aM+k}')
    stamp('qpoll')
    a('s_barrier')
    if o['placechk']:
        a(f'''
    v_and_b32 v{vt+16}, 31, v{vL}
    v_lshlrev_b32 v{vt+16}, 10, v{vt+16}
    s_lshl_b32 s{sOI}, s{sHKV}, 7
    s_add_u32 s{sOI}, s{sOI}, {WS_REG}
    v_add_u32 v{vt+16}, s{sOI}, v{vt+16}
    global_load_dwordx4 v[{aRG}:{aRG+3}], v{vt+16}, {WSB} sc1
    ''')
        vm.issue('regchk')

    def verdict():
        if not o['placechk']: return
        tag_check(aRG, vt+12, vt+14)
        a(f'''
    v_lshrrev_b32 v{vt+15}, 8, v{aRG}
    s_lshr_b32 s{sOI}, s{sPV}, 8
    v_xor_b32 v{vt+15}, s{sOI}, v{vt+15}
    v_or_b32 v{vt+14}, v{vt+14}, v{vt+15}
    v_cmp_ne_u32 vcc, 0, v{vt+14}
    s_cmp_eq_u64 vcc, 0
    s_cselect_b32 s{sPV}, {0 if o.get('noa') else 1}, 0
    v_mov_b32 v{vt+14}, s{sPV}
    v_mov_b32 v{vt+15}, 0
    ds_write_b32 v{vt+15}, v{vt+14} offset:{PV_LDS}
    s_waitcnt lgkmcnt(0)
    ''')
        if o['stamps']: a(f's_mov_b32 s{64+2*14}, s{sPV}')
    a(f'''
    s_cmp_eq_u32 s{sF1}, 0
    s_cbranch_scc1 L_a_none
    ''')
    for g in range(7):
        a(f'global_load_dwordx4 v[{aW1+4*g}:{aW1+4*g+3}], v{aW1off}, s[{sW1}:{sW1+1}]{NT("w1")}')
        vm.issue(f'w1_{g}')
        if g < 6:
            a(f's_add_u32 s{sW1}, s{sW1}, {4*3584}\ns_addc_u32 s{sW1+1}, s{sW1+1}, 0')
    def w2loads():
        for g in range(8):
            a(f'global_load_dwordx4 v[{aW2+4*g}:{aW2+4*g+3}], v{aW2off}, s[{sW2}:{sW2+1}]{NT("w2")}')
            vm.issue(f'w2_{g}')
            if g < 7:
                a(f's_add_u32 s{sW2}, s{sW2}, {8*896}\ns_addc_u32 s{sW2+1}, s{sW2+1}, 0')
    if o.get('w2_at', 'bq') == 'bq': w2loads()
    if o['placechk']:
        vm.wait('regchk'); verdict()
    a('s_barrier')
    vm.wait('w1_6')
    stamp('vdone')
    for g in range(7):
        c_ = '0' if g == 0 else f'v[{vD0}:{vD0+3}]'
        a(f'v_mfma_f32_16x16x32_bf16 v[{vD0}:{vD0+3}], v[{aXA+4*g}:{aXA+4*g+3}], v[{aW1+4*g}:{aW1+4*g+3}], {c_}')
    tag_insert([vD0, vD0+1, vD0+2, vD0+3])
    publish(vm, aHP, vD0, 'hpub', lazy=True)
    stamp('opub')
    if o.get('w2_at', 'bq') == 'pub': w2loads()
    if o['h_delay']: vm.wait(o['h_delay'])
    def hloads(base):
        for k in range(4):
            a(f'v_add_u32 v{vt+12}, {4*k*14336}, v{aAh}\nglobal_load_dwordx4 v[{aH+4*k}:{aH+4*k+3}], v{vt+12}, {base} sc1')
    cc4 = [vt, vt+1, vt+2, vt+3]
    def hchecks():
        for k in range(4):
            for ln in chk(aH+4*k, vt+4, vt+5, cc4[k]): a(ln)
        a(f'v_or3_b32 v{vt}, v{vt}, v{vt+1}, v{vt+2}\nv_or_b32 v{vt}, v{vt}, v{vt+3}')
    hloads(FIRST)
    for k in range(4): vm.issue(f'H{k}')
    if o.get('w2_at', 'bq') == 'poll': w2loads()
    vm.wait('H3')
    stamp('h2f')
    hchecks()
    a(f'''
    v_cmp_ne_u32 vcc, 0, v{vt}
    s_cbranch_vccz L_ah_ok
    ''')
    retry_loop('L_ah_r', hloads, hchecks, vt, 'L_ah_ok', own_b=(aHP, vD0))
    a('L_ah_ok:\ns_mov_b64 exec, -1')
    if o['fast'] and o['lazy_b']:
        publish_b(aHP, vD0); vm.issue('hpub_b')
    stamp('h2'); note(15, 1, sSPIN)
    untag(range(aH, aH+16))
    a(f'''
    v_pk_add_f32 v[{aH}:{aH+1}], v[{aH}:{aH+1}], v[{aH+4}:{aH+5}]
    v_pk_add_f32 v[{aH+2}:{aH+3}], v[{aH+2}:{aH+3}], v[{aH+6}:{aH+7}]
    v_pk_add_f32 v[{aH+8}:{aH+9}], v[{aH+8}:{aH+9}], v[{aH+12}:{aH+13}]
    v_pk_add_f32 v[{aH+10}:{aH+11}], v[{aH+10}:{aH+11}], v[{aH+14}:{aH+15}]
    v_pk_add_f32 v[{aH}:{aH+1}], v[{aH}:{aH+1}], v[{aH+8}:{aH+9}]
    v_pk_add_f32 v[{aH+2}:{aH+3}], v[{aH+2}:{aH+3}], v[{aH+10}:{aH+11}]
    v_permlane32_swap_b32 v{aH}, v{aH+2}
    v_permlane32_swap_b32 v{aH+1}, v{aH+3}
    v_add_f32 v{aH}, v{aH}, v{aH+2}
    v_add_f32 v{aH+1}, v{aH+1}, v{aH+3}
    v_permlane16_swap_b32 v{aH}, v{aH+1}
    v_add_f32 v{aH}, v{aH}, v{aH+1}
    v_max_f32 v{aH}, 0, v{aH}
    v_cvt_pk_bf16_f32 v{aH}, v{aH}, v{aH}
    ''')
    for g in range(8):
        A = aA + 4*(g & 1)
        tb = aH + 1 + (g & 1)
        a(f'v_mov_b32_dpp v{tb}, v{aH} row_newbcast:{g} row_mask:0xf bank_mask:0x3')
        a(f'v_mov_b32_dpp v{tb}, v{aH} row_newbcast:{8+g} row_mask:0xf bank_mask:0xc')
        for k in range(4):
            a(f'v_and_b32 v{A+k}, v{tb}, v{aM+k}')
        vm.wait(f'w2_{g}')
        c_ = '0' if g == 0 else f'v[{vD1}:{vD1+3}]'
        a(f'v_mfma_f32_16x16x32_bf16 v[{vD1}:{vD1+3}], v[{A}:{A+3}], v[{aW2+4*g}:{aW2+4*g+3}], {c_}')
    for k in range(4):
        a(f'v_mul_f32 v{vD1+k}, v{vt+11}, v{vD1+k}')
    a(f'''
L_a_wr:
    ds_write_b128 v{aFw}, v[{vD1}:{vD1+3}] offset:{F5_LDS}
    s_waitcnt lgkmcnt(0)
    ''')
    stamp('fpub')
    a(f'''
    s_barrier
    s_branch L_fin
L_a_none:
    v_mov_b32 v{vD1}, 0
    v_mov_b32 v{vD1+1}, 0
    v_mov_b32 v{vD1+2}, 0
    v_mov_b32 v{vD1+3}, 0
    ''')
    if o['placechk']:
        a('s_waitcnt vmcnt(0)'); verdict()
    a('''
    s_barrier
    s_branch L_a_wr
    ''')
    a('L_fin:')
    if o['probe']:
        pname, K = o['probe']
        i = SI[pname]
        a(f'''
    s_waitcnt lgkmcnt(0)
    s_cmp_lg_u32 s3, 0
    s_cbranch_scc1 L_end
    v_mov_b32 v4, 0
    s_mov_b64 exec, 1
    v_mov_b32 v6, s64
    v_not_b32 v6, v6
    global_atomic_umax v4, v6, s[{sDBG}:{sDBG+1}] sc1
    v_mov_b32 v7, s{64+2*i}
    global_atomic_umax v4, v7, s[{sDBG}:{sDBG+1}] offset:4 sc1
    s_waitcnt vmcnt(0)
    v_mov_b32 v8, 1
    global_atomic_add v9, v4, v8, s[{sDBG}:{sDBG+1}] offset:8 sc0 sc1
    s_waitcnt vmcnt(0)
    v_readfirstlane_b32 s60, v9
    s_cmp_lg_u32 s60, 255
    s_cbranch_scc1 L_end
    global_load_dwordx2 v[10:11], v4, s[{sDBG}:{sDBG+1}] sc1
    s_waitcnt vmcnt(0)
    v_readfirstlane_b32 s60, v10
    v_readfirstlane_b32 s61, v11
    s_not_b32 s60, s60
    s_sub_u32 s61, s61, s60
    s_min_u32 s61, s61, 5000
    v_mov_b32 v12, s61
    global_store_dword v4, v12, s[{sDBG}:{sDBG+1}] offset:12 sc1
    s_mul_i32 s61, s61, {K}
    s_memrealtime s[62:63]
    s_waitcnt lgkmcnt(0)
    s_add_u32 s61, s61, s62
L_probe_spin:
    s_memrealtime s[62:63]
    s_waitcnt lgkmcnt(0)
    s_sub_u32 s60, s61, s62
    s_cmp_gt_i32 s60, 0
    s_cbranch_scc1 L_probe_spin
    ''')
    elif o['stamps']:
        a(f'''
    s_waitcnt lgkmcnt(0)
    s_lshl_b32 s{sT0}, s2, 10
    s_lshl_b32 s{sT1}, s3, 7
    s_add_u32 s{sT0}, s{sT0}, s{sT1}
    s_add_u32 s{sT0}, s{sT0}, {WS_STAMP}
    v_mov_b32 v4, s{sT0}
    s_mov_b64 exec, 1
    ''')
        for i in range(16):
            a(f'''
    v_mov_b32 v6, s{64+2*i}
    v_mov_b32 v7, s{65+2*i}
    global_store_dwordx2 v4, v[6:7], {WS} offset:{8*i}
    s_nop 1
    ''')
    a('''
L_end:
    s_endpgm
    ''')
    body, n = hazard.fix(a.text())
    return wrap(body, (256,1,1), (320,1,1), LDS_BYTES, vgpr=NV, sgpr=102), STAMPS

if __name__ == '__main__':
    opts = json.loads(sys.argv[2]) if len(sys.argv) > 2 else {}
    s, names = gen(opts)
    open(sys.argv[1], 'w').write(s)
```

```python
import sys, json, struct
from asmgen import *
import hazard

WS_EPOCH = 0x0
WS_QP    = 0x1000
WS_HP    = 0x20000
WS_FP    = 0x60000
WS_REG   = 0xA0000
WS_OP    = 0x100000
WS_ALT   = 0x200000
WS_STAMP = 0x1000000
K_LDS  = 0
WQ_LDS = 32768
F5_LDS = WQ_LDS
X_LDS  = 47104
GW_LDS = 49152
Q_LDS  = 50176
G_LDS  = 51200
MX_LDS = 51216
LS_LDS = 51248
PV_LDS = 51280
LDS_BYTES = 51328

LOG2E = 1.4426950408889634
def f2u(x): return struct.unpack('<I', struct.pack('<f', x))[0]

DEFAULTS = dict(probe=None, stamps=False, round_scores=True, spin=1000000, b1=True, prio=True, W=5, npre=4, vmode='k6', placechk=True, h3_ack=True, h3_pipe=1, ffn_light=(4, 5), lightmap=True, wsoff=0, pretouch=False, aux_lowprio=True, e_sc1=True, e_late=False, xnt=False,
                nt_wq=True, nt_k=True, nt_v=True, nt_wo=True, nt_w1=True, nt_w2=True,
                wo_at=['bq', 'qk', 'sm', 'pv'],
                o_delay='wo3',
                h_delay='w2_7', fast=True, aevery=16, rot='hkv+c', prewrite=False, lazy_b=False, W2=None)
STAMPS = ['start', 'karg', 'h2f', 'kdone', 'qpoll', 'qready', 'qk', 'vdone', 'pv', 'opub', 'h2', 'fpub', 'h3', 'end', 'a_wq', 'a_x']

class VM:
    def __init__(self, a): self.a = a; self.ops = []
    def issue(self, name): self.ops.append(name)
    def wait(self, name):
        i = max(k for k, n in enumerate(self.ops) if n == name)
        self.a(f's_waitcnt vmcnt({len(self.ops) - 1 - i})')
    def waitall(self): self.a('s_waitcnt vmcnt(0)')

def gen(opts):
    o = dict(DEFAULTS); o.update(opts)
    if o['probe']: o['stamps'] = True
    def NT(k): return (' ' + o.get('fl_' + k, 'nt')) if o['nt_' + k] else ''
    a = Asm()
    SI = {n: i for i, n in enumerate(STAMPS)}
    def stamp(name):
        if o['stamps']:
            i = SI[name]
            a(f's_memrealtime s[{64+2*i}:{65+2*i}]')
    def note(slot, half, sreg):
        if o['stamps']: a(f's_mov_b32 s{64+2*slot+half}, s{sreg}')
    sX, sK, sV, sWQ, sWO, sW1, sW2, sGW, sOUT, sDBG, sWS = 4, 6, 8, 10, 12, 16, 18, 20, 22, 24, 26
    sDUM = 98
    sPV = 100
    sMK = 101
    sWSB = 14
    sHKV, sJ, sB, sC = 28, 29, 30, 31
    sT0, sT1, sT2, sT3 = 32, 33, 34, 35
    sWO2 = 36; sKM = 38; sOI = 39
    sSEL = 40; sCHA, sCHB = 44, 45
    sSPIN = 46; sT4 = 47
    sKB, sVB = 48, 50
    sRG, sCT, sU = 52, 53, 54
    sH3 = 55
    sMSK = 56
    sC2 = 59; sF1 = 58; sROT = 63; sFX = 57; sPI = 96
    light = list(o['ffn_light']); heavy = [x for x in range(8) if x not in light]
    FXPERM = 0
    for i_, x_ in enumerate(heavy + light): FXPERM |= i_ << (4*x_)
    sEXW = 60
    sHASF2 = 62
    WS = f's[{sWS}:{sWS+1}]'; WSB = f's[{sWSB}:{sWSB+1}]'
    vL, vN, vKS, vT = 0, 1, 2, 3

    def tag_insert(regs):
        for i, r in enumerate(regs):
            a(f'v_perm_b32 v{r}, v{r}, v{vT}, s{sSEL+i}')
    def chk(base, ca, cb, dst):
        return [f'v_perm_b32 v{ca}, v{base+1}, v{base}, s{sCHA}', f'v_perm_b32 v{cb}, v{base+3}, v{base+2}, s{sCHB}',
                f'v_bitop3_b32 v{dst}, v{ca}, v{cb}, v{vT} bitop3:0x56']
    def tag_check(base, tmp, dst):
        for ln in chk(base, tmp, tmp+1, dst): a(ln)
    def untag(regs):
        for r in regs: a(f'v_and_b32 v{r}, s{sMK}, v{r}')
    def allreduce_rows(op, r, t):
        a(f'v_mov_b32 v{t}, v{r}')
        a(f'v_permlane16_swap_b32 v{t}, v{r}')
        a(f'{op} v{r}, v{r}, v{t}')
        a(f'v_mov_b32 v{t}, v{r}')
        a(f'v_permlane32_swap_b32 v{t}, v{r}')
        a(f'{op} v{r}, v{r}, v{t}')
    def masks(dst, t):
        a(f'''
    v_and_b32 v{t}, 1, v{vL}
    v_cmp_eq_u32 vcc, 1, v{t}
    v_mov_b32 v{t+1}, 0xffff
    v_mov_b32 v{t+2}, 0xffff0000
    v_cndmask_b32 v{t+1}, v{t+1}, v{t+2}, vcc
    v_bfe_u32 v{t+2}, v{vL}, 1, 2
    ''')
        for k in range(4):
            a(f'''
    v_cmp_eq_u32 vcc, {k}, v{t+2}
    v_cndmask_b32 v{dst+k}, 0, v{t+1}, vcc
    ''')
    def publish_b(vaddr, data):
        a(f'global_store_dwordx4 v{vaddr}, v[{data}:{data+3}], {WSB} sc1')
    def publish(vm, vaddr, data, name, lazy=False):
        if o['fast']:
            if o.get('noa'):
                a(f'global_store_dwordx4 v{vaddr}, v[{data}:{data+3}], {WS} offset:0' .replace(WS, f's[{sDUM}:{sDUM+1}]'))
            else:
                a(f'global_store_dwordx4 v{vaddr}, v[{data}:{data+3}], {WS}{o.get("afl", "")}')
            vm.issue(name + '_a')
        if lazy and o['fast'] and o['placechk']:
            vm.ops[-1] = name
            a(f's_cmp_lg_u32 s{sPV}, 0\ns_cbranch_scc1 L_skipb_{name}')
            a(f'global_store_dwordx4 v{vaddr}, v[{data}:{data+3}], {WSB} sc1')
            a(f'L_skipb_{name}:')
            return
        if lazy and o['fast'] and o['lazy_b']:
            vm.ops[-1] = name
            return
        if o.get('nob'):
            vm.ops[-1] = name
            return
        a(f'global_store_dwordx4 v{vaddr}, v[{data}:{data+3}], {WSB} sc1'); vm.issue(name)
    def retry_loop(label, loads, checks, bad, okl, own_b=None):
        a(f'''
{label}:
    s_sub_u32 s{sSPIN}, s{sSPIN}, 1
    s_cmp_eq_u32 s{sSPIN}, 0
    s_cbranch_scc1 {okl}
    s_mov_b64 exec, vcc
    ''')
        if o['fast']:
            a(f'''
    s_and_b32 s{sT0}, s{sSPIN}, {o['aevery']-1}
    s_cmp_eq_u32 s{sT0}, 0
    s_cbranch_scc1 {label}_b
    ''')
            loads(WS)
            a(f's_branch {label}_c\n{label}_b:')
            if own_b and o['lazy_b']:
                a('s_mov_b64 exec, -1')
                publish_b(*own_b)
                a('s_mov_b64 exec, vcc')
        loads(WSB)
        a(f'{label}_c:\ns_waitcnt vmcnt(0)')
        checks()
        a(f'''
    v_cmp_ne_u32 vcc, 0, v{bad}
    s_cbranch_vccnz {label}
    ''')
    FIRST = WS if o['fast'] else WSB

    stamp('start')
    a(f'''
    s_cmp_ge_u32 s2, 256
    s_cbranch_scc1 L_end
    s_load_dwordx16 s[4:19], s[0:1], 0
    s_load_dwordx8 s[20:27], s[0:1], 64
    v_lshrrev_b32 v4, 6, v0
    v_and_b32 v{vL}, 63, v0
    v_readfirstlane_b32 s3, v4
    v_and_b32 v{vN}, 15, v{vL}
    v_lshrrev_b32 v{vKS}, 4, v{vL}
    s_and_b32 s{sHKV}, s2, 7
    s_lshr_b32 s{sJ}, s2, 3
    s_lshr_b32 s{sB}, s{sJ}, 4
    s_and_b32 s{sC}, s{sJ}, 15
    s_lshr_b32 s{sRG}, s{sJ}, 2
    s_and_b32 s{sCT}, s{sJ}, 3
    s_mov_b32 s{sSEL}, 0x07060500
    s_mov_b32 s{sSEL+1}, 0x07060501
    s_mov_b32 s{sSEL+2}, 0x07060502
    s_mov_b32 s{sSEL+3}, 0x07060503
    s_mov_b32 s{sCHA}, 0x0c0c0400
    s_mov_b32 s{sCHB}, 0x04000c0c
    s_mov_b32 s{sMK}, 0xffffff00
    s_mov_b32 s{sSPIN}, {o['spin']}
    s_cmp_eq_u32 s{sCT}, 3
    s_cselect_b32 s{sEXW}, 7, 15
    s_cmp_eq_u32 s3, 4
    s_cbranch_scc1 L_aux
    ''')

    vm = VM(a)
    vM = 4
    vVoff, vWoff, vQrd, vKrd, vQpoll, vQw = 8, 9, 10, 11, 12, 13
    vOw, vOr, vOP, vAd, vFw, vFr, vFP, vH3, vOut = 14, 15, 16, 17, 18, 19, 20, 21, 22
    vV = 24
    vWO = 56
    vKop = 72
    vQop = 104
    vPA = 72
    vAcc = 88
    vO = 96
    vS = 136
    vTmp = 140
    vMXa, vGf = 160, 161
    NV = 168
    vKoff = vQop
    a(f'''
    v_lshrrev_b32 v{vTmp}, 5, v{vL}                 ; hi
    v_and_b32 v{vTmp+1}, 31, v{vL}                  ; u
    v_xor_b32 v{vTmp+2}, v{vTmp+1}, v{vTmp}
    v_lshlrev_b32 v{vTmp+2}, 4, v{vTmp+2}
    v_lshl_add_u32 v{vKoff}, v{vTmp}, 9, v{vTmp+2}
    v_lshlrev_b32 v{vTmp+3}, 4, v{vN}               ; n*16
    v_lshl_add_u32 v{vVoff}, v{vKS}, 11, v{vTmp+3}
    s_lshl_b32 s{sT0}, s3, 13                       ; w*8192
    s_lshl_b32 s{sT1}, s{sB}, 3
    s_add_u32 s{sT1}, s{sT1}, s{sHKV}
    s_lshl_b32 s{sT1}, s{sT1}, 21
    s_add_u32 s{sT1}, s{sT1}, 1572864
    s_lshl_b32 s{sT2}, s{sC}, 15
    s_add_u32 s{sT1}, s{sT1}, s{sT2}
    s_add_u32 s{sT1}, s{sT1}, s{sT0}
    s_mov_b32 s{sC2}, {hex(f2u(LOG2E/16.0))}
    v_mov_b32 v{vTmp+4}, 0
    ''')
    a({'hkv+c': f's_add_u32 s{sROT}, s{sHKV}, s{sC}\ns_and_b32 s{sROT}, s{sROT}, 7',
       'c': f's_and_b32 s{sROT}, s{sC}, 7',
       'hkvb': f's_lshl_b32 s{sROT}, s{sB}, 2\ns_xor_b32 s{sROT}, s{sROT}, s{sHKV}',
       None: f's_mov_b32 s{sROT}, 0'}[o['rot']])
    a(f'''
    s_mul_i32 s{sT2}, s{sROT}, {(1 << 10) | (1 << 5)}
    v_xor_b32 v{vKoff}, s{sT2}, v{vKoff}
    s_lshl_b32 s{sT2}, s{sROT}, 8
    v_xor_b32 v{vVoff}, s{sT2}, v{vVoff}
    s_lshl_b32 s{sT2}, s{sROT}, 10
    s_xor_b32 s{sKM}, s{sT0}, s{sT2}
    s_waitcnt lgkmcnt(0)
    ''')
    if o['wsoff']: a(f's_add_u32 s{sWS}, s{sWS}, {hex(o["wsoff"])}\ns_addc_u32 s{sWS+1}, s{sWS+1}, 0')
    stamp('karg')
    ESC = ' sc1' if o['e_sc1'] else ''
    if not o['e_late']: a(f'global_load_dword v{vT}, v{vTmp+4}, {WS}{ESC}')
    a(f'''
    s_add_u32 s{sKB}, s{sK}, s{sT1}
    s_addc_u32 s{sKB+1}, s{sK+1}, 0
    s_add_u32 s{sVB}, s{sV}, s{sT1}
    s_addc_u32 s{sVB+1}, s{sV+1}, 0
    s_add_u32 s{sWSB}, s{sWS}, {WS_ALT}
    s_addc_u32 s{sWSB+1}, s{sWS+1}, 0
    ''')
    if o.get('noa'): a(f's_add_u32 s{sDUM}, s{sWS}, 0x800000\ns_addc_u32 s{sDUM+1}, s{sWS+1}, 0')
    if not o['e_late']: vm.issue('E')
    if o['b1']:
        a('s_barrier')
    W = o['W']
    def kload(m):
        t = vTmp + 11 + (m & 1)
        a(f's_xor_b32 m0, s{sKM}, {m << 10}')
        a(f'v_xor_b32 v{t}, {(m << 10) | (m << 5)}, v{vKoff}')
        a(f'global_load_lds_dwordx4 v{t}, s[{sKB}:{sKB+1}]{NT("k")}')
        vm.issue(f'K{m}')
    def vload(i):
        t = vTmp + 11 + (i & 1)
        a(f'v_xor_b32 v{t}, {i << 8}, v{vVoff}')
        a(f'global_load_dwordx4 v[{vV+4*i}:{vV+4*i+3}], v{t}, s[{sVB}:{sVB+1}]{NT("v")}')
        vm.issue(f'V{i}')
    vP = vTmp
    npre = o['npre']
    elems = [('K', m) for m in range(8)] + [('V', i) for i in range(npre)] + [('P', 0)] + [('V', i) for i in range(npre, 8)]
    def issue(e):
        k, i = e
        if k == 'K': kload(i)
        elif k == 'V': vload(i)
        else:
            a(f'global_load_dwordx4 v[{vP}:{vP+3}], v{vQpoll}, {FIRST} sc1'); vm.issue('P')
    for n_, e in enumerate(elems[:W]):
        issue(e)
        if o['e_late'] and n_ == 0:
            a(f'global_load_dword v{vT}, v{vTmp+4}, {WS}{ESC}'); vm.issue('E')
    t5, t6, t7 = vTmp+5, vTmp+6, vTmp+7
    a(f'''
    s_movk_i32 s{sT4}, 896
    v_and_b32 v{vWoff}, s{sEXW}, v{vN}
    v_lshlrev_b32 v{vWoff}, 4, v{vWoff}
    v_mad_u32_u24 v{vWoff}, v{vKS}, s{sT4}, v{vWoff}
    s_lshr_b32 s{sT1}, s{sROT}, 1
    v_xor_b32 v{t6}, s{sT1}, v{vN}
    v_xor_b32 v{t5}, v{vKS}, v{t6}
    v_lshlrev_b32 v{t5}, 4, v{t5}
    v_lshl_add_u32 v{vKrd}, v{t6}, 9, v{t5}
    v_add_u32 v{vKrd}, s{sT0}, v{vKrd}
    v_lshrrev_b32 v{t5}, 3, v{vN}
    v_lshlrev_b32 v{t6}, 9, v{t5}
    v_lshl_add_u32 v{vQrd}, v{vKS}, 4, v{t6}
    s_lshl_b32 s{sT1}, s3, 2
    v_lshlrev_b32 v{vMXa}, 4, v{t5}
    v_add_u32 v{vMXa}, s{sT1}, v{vMXa}              ; head*16 + w*4
    ''')
    masks(vM, t6)
    a(f'''
    ; q poll address: QP + hkv*8192 + rh*4096 + b*2048 + (32w + u)*16     rh = l>>5, u = l&31
    s_lshl_b32 s{sT1}, s{sHKV}, 13
    s_lshl_b32 s{sT2}, s{sB}, 11
    s_add_u32 s{sT1}, s{sT1}, s{sT2}
    s_lshl_b32 s{sT2}, s3, 9
    s_add_u32 s{sT1}, s{sT1}, s{sT2}
    s_add_u32 s{sT1}, s{sT1}, {WS_QP}
    v_lshlrev_b32 v{vQpoll}, 12, v{vTmp}
    v_lshl_add_u32 v{vQpoll}, v{vTmp+1}, 4, v{vQpoll}
    v_add_u32 v{vQpoll}, s{sT1}, v{vQpoll}
    s_lshl_b32 s{sT1}, s3, 8
    v_lshlrev_b32 v{vQw}, 3, v{vTmp+1}
    v_lshl_add_u32 v{vQw}, v{vTmp}, 2, v{vQw}
    v_add_u32 v{vQw}, s{sT1}, v{vQw}
    v_and_b32 v{t6}, 1, v{vKS}
    v_lshlrev_b32 v{t6}, 4, v{t6}
    v_lshl_add_u32 v{t6}, v{vN}, 5, v{t6}
    v_add_u32 v{t6}, s{sT0}, v{t6}
    v_lshl_add_u32 v{vOw}, v{vTmp}, 10, v{t6}
    s_and_b32 s{sT1}, s{sROT}, 1
    s_lshl_b32 s{sT1}, s{sT1}, 9
    v_xor_b32 v{vOw}, s{sT1}, v{vOw}
    v_lshl_add_u32 v{vFw}, v{vTmp}, 9, v{t6}
    ; publish role of wave w: h = w>>1, dblk = 8*(w&1) + (l>>3), slot = l&7
    s_lshr_b32 s{sT1}, s3, 1                        ; h
    s_and_b32 s{sT2}, s3, 1
    v_lshrrev_b32 v{t6}, 3, v{vL}                   ; l>>3
    s_lshl_b32 s{sT3}, s{sT2}, 3
    v_add_u32 v{t6}, s{sT3}, v{t6}                  ; dblk
    v_and_b32 v{t7}, 3, v{vL}                       ; slot&3
    v_lshlrev_b32 v{vOr}, 6, v{t6}
    v_lshl_add_u32 v{vOr}, v{t7}, 4, v{vOr}
    s_lshl_b32 s{sT3}, s{sT1}, 10
    v_add_u32 v{vOr}, s{sT3}, v{vOr}
    s_lshl_b32 s{sT3}, s{sHKV}, 1
    s_add_u32 s{sT3}, s{sT3}, s{sT1}
    s_lshl_b32 s{sT3}, s{sT3}, 16
    s_lshl_b32 s{sT4}, s{sB}, 11
    s_add_u32 s{sT3}, s{sT3}, s{sT4}
    s_lshl_b32 s{sT4}, s{sC}, 7
    s_add_u32 s{sT3}, s{sT3}, s{sT4}
    s_add_u32 s{sT3}, s{sT3}, {WS_OP}
    v_lshlrev_b32 v{vOP}, 12, v{t6}
    v_and_b32 v{t7}, 7, v{vL}                       ; slot
    v_lshl_add_u32 v{vOP}, v{t7}, 4, v{vOP}
    v_add_u32 v{vOP}, s{sT3}, v{vOP}
    ; H2 address
    s_lshr_b32 s{sT1}, s{sRG}, 2
    s_lshl_b32 s{sT2}, s{sHKV}, 1
    s_add_u32 s{sT1}, s{sT1}, s{sT2}
    s_and_b32 s{sT2}, s{sRG}, 3
    s_lshl_b32 s{sT2}, s{sT2}, 2
    s_add_u32 s{sT2}, s{sT2}, s3
    s_lshl_b32 s{sT3}, s{sT1}, 16
    s_lshl_b32 s{sT2}, s{sT2}, 12
    s_add_u32 s{sT3}, s{sT3}, s{sT2}
    s_add_u32 s{sT3}, s{sT3}, {WS_OP}
    v_lshlrev_b32 v{vAd}, 11, v{t5}
    v_lshl_add_u32 v{vAd}, v{vKS}, 9, v{vAd}
    v_lshl_add_u32 v{vAd}, v{t7}, 4, v{vAd}
    v_add_u32 v{vAd}, s{sT3}, v{vAd}
    v_lshlrev_b32 v{vFr}, 9, v{vTmp}
    v_lshl_add_u32 v{vFr}, v{vTmp+1}, 4, v{vFr}
    s_lshl_b32 s{sT1}, s{sHKV}, 3
    s_add_u32 s{sT1}, s{sT1}, s{sRG}
    s_lshl_b32 s{sT1}, s{sT1}, 12
    s_lshl_b32 s{sT2}, s{sCT}, 10
    s_add_u32 s{sT1}, s{sT1}, s{sT2}
    s_add_u32 s{sT1}, s{sT1}, {WS_FP}
    v_lshlrev_b32 v{vFP}, 4, v{vL}
    v_add_u32 v{vFP}, s{sT1}, v{vFP}
    ; final-stage role: line lam = (j>>3)*8 + xcd (valid < 28), member = j&7 ; b3 = lam/14, r = lam%14 ; ct3 = r>>2 (r<12) or 3 ; m = r&3 or r-12
    s_lshr_b32 s{sT1}, s{sJ}, 3
    s_lshl_b32 s{sT1}, s{sT1}, 3
    s_add_u32 s{sH3}, s{sT1}, s{sHKV}               ; lam
    s_cmp_ge_u32 s{sH3}, 14
    s_cselect_b32 s{sT2}, 1, 0                      ; b3
    s_mul_i32 s{sT3}, s{sT2}, 14
    s_sub_u32 s{sT3}, s{sH3}, s{sT3}
    s_lshl_b32 s{sT4}, s{sT3}, 3
    s_and_b32 s{sT1}, s{sJ}, 7
    s_add_u32 s{sT4}, s{sT4}, s{sT1}
    s_lshr_b32 s{sT1}, s{sT4}, 5                    ; ct3
    s_lshl_b32 s{sT1}, s{sT1}, 10
    s_and_b32 s{sT3}, s{sT4}, 31
    s_lshl_b32 s{sT3}, s{sT3}, 4
    s_add_u32 s{sT1}, s{sT1}, s{sT3}
    s_lshl_b32 s{sT3}, s{sT2}, 9
    s_add_u32 s{sT1}, s{sT1}, s{sT3}
    s_add_u32 s{sT1}, s{sT1}, {WS_FP}
    v_lshlrev_b32 v{vH3}, 12, v{vL}
    v_add_u32 v{vH3}, s{sT1}, v{vH3}
    s_mul_i32 s{sT2}, s{sT2}, 896
    s_lshl_b32 s{sT4}, s{sT4}, 3
    s_add_u32 s{sT2}, s{sT2}, s{sT4}
    v_lshlrev_b32 v{vOut}, 1, v{vKS}
    v_add_u32 v{vOut}, s{sT2}, v{vOut}
    s_lshl_b32 s{sT1}, s{sHKV}, 9
    s_lshl_b32 s{sT2}, s{sRG}, 6
    s_add_u32 s{sT1}, s{sT1}, s{sT2}
    s_lshl_b32 s{sT2}, s3, 4
    s_add_u32 s{sT1}, s{sT1}, s{sT2}
    s_mul_i32 s{sT1}, s{sT1}, 896
    s_lshl_b32 s{sT2}, s{sCT}, 8
    s_add_u32 s{sT1}, s{sT1}, s{sT2}
    s_add_u32 s{sWO}, s{sWO}, s{sT1}
    s_addc_u32 s{sWO+1}, s{sWO+1}, 0
    s_add_u32 s{sWO2}, s{sWO}, 7168
    s_addc_u32 s{sWO2+1}, s{sWO+1}, 0
    ''')
    tagdone = [False]
    def kop_reads():
        for s in range(8):
            t = vTmp + 4 + (s & 1)
            a(f'v_xor_b32 v{t}, {s << 6}, v{vKrd}')
            a(f'ds_read_b128 v[{vKop+4*s}:{vKop+4*s+3}], v{t}')
    kdone = False
    idxP = elems.index(('P', 0))
    last_pre = min(len(elems) - 1, max(idxP + W - 1, 7 + W))
    if o['vmode'] == 'k6': last_pre = len(elems) - 1
    for i in range(W, last_pre + 1):
        if o['W2'] and i > idxP + 1:
            Wi = o['W2']
            if i - Wi >= 0 and Wi <= i: a(f's_waitcnt vmcnt({min(Wi - 1, 63)})')
        else:
            a(f's_waitcnt vmcnt({W-1})')
        if not tagdone[0]:
            a(f'v_add_u32 v{vT}, 0x01010101, v{vT}'); tagdone[0] = True
            issue(elems[i])
            if o['fast'] and o['prewrite']:
                for k in range(4): a(f'v_xor_b32 v{vO+k}, 0x80808080, v{vT}')
                for k in range(4): a(f'v_perm_b32 v{vO+k}, v{vO+k}, v{vO+k}, s{sSEL+k}')
                a(f'global_store_dwordx4 v{vOP}, v[{vO}:{vO+3}], {WS}'); vm.issue('pw')
            continue
        issue(elems[i])
        if i - W >= 7 and not kdone:
            if o['W2']: vm.wait('K7')
            stamp('kdone'); kop_reads(); kdone = True
    rest = elems[last_pre + 1:]
    assert kdone
    vm.wait('P')
    if o['vmode'] == 'k7b':
        for e in rest: issue(e)
        rest = []
    a('L_h1_chk:')
    tag_check(vP, vTmp+4, vTmp+6)
    a(f'''
    v_cmp_ne_u32 vcc, 0, v{vTmp+6}
    s_cbranch_vccz L_h1_ok
    ''')
    retry_loop('L_h1_r', lambda base: a(f'global_load_dwordx4 v[{vP}:{vP+3}], v{vQpoll}, {base} sc1'),
               lambda: tag_check(vP, vTmp+4, vTmp+6), vTmp+6, 'L_h1_ok')
    a('L_h1_ok:\ns_mov_b64 exec, -1')
    stamp('qpoll'); note(14, 0, sSPIN)
    untag([vP, vP+1, vP+2, vP+3])
    a(f'''
    v_permlane32_swap_b32 v{vP}, v{vP+2}
    v_permlane32_swap_b32 v{vP+1}, v{vP+3}
    v_add_f32 v{vP}, v{vP}, v{vP+2}
    v_add_f32 v{vP+1}, v{vP+1}, v{vP+3}
    v_cvt_pk_bf16_f32 v{vP}, v{vP}, v{vP+1}
    ds_write_b32 v{vQw}, v{vP} offset:{Q_LDS}
    ''')
    for e in rest: issue(e)
    a('s_waitcnt lgkmcnt(0)\ns_barrier')
    stamp('qready')
    wo_done = [False]*4
    def wo_at(where):
        for g in range(4):
            if o['wo_at'][g] == where and not wo_done[g]:
                base = sWO if g < 2 else sWO2
                off = ' offset:3584' if g & 1 else ''
                a(f'global_load_dwordx4 v[{vWO+4*g}:{vWO+4*g+3}], v{vWoff}, s[{base}:{base+1}]{off}{NT("wo")}')
                vm.issue(f'wo{g}'); wo_done[g] = True
    for s in range(8):
        a(f'ds_read_b128 v[{vQop+4*s}:{vQop+4*s+3}], v{vQrd} offset:{Q_LDS + s*64}')
    if o['pretouch'] and o['fast']:
        a(f's_lshl_b32 s{sT1}, s{sCT}, 7\nv_add_u32 v{vTmp+13}, s{sT1}, v{vAd}')
        a(f'global_load_dwordx4 v[164:167], v{vTmp+13}, {WS} sc1'); vm.issue('pt')
    wo_at('bq')
    for s in range(8):
        if not o['stamps']: a(f's_waitcnt lgkmcnt({7 - s})')
        elif s == 0: a('s_waitcnt lgkmcnt(0)')
        c = '0' if s == 0 else f'v[{vS}:{vS+3}]'
        a(f'v_mfma_f32_16x16x32_bf16 v[{vS}:{vS+3}], v[{vKop+4*s}:{vKop+4*s+3}], v[{vQop+4*s}:{vQop+4*s+3}], {c}')
    wo_at('qk')
    s0, s1, s2_, s3_ = vS, vS+1, vS+2, vS+3
    if o['round_scores']:
        a(f'''
    v_cvt_pk_bf16_f32 v{vTmp}, v{s0}, v{s1}
    v_cvt_pk_bf16_f32 v{vTmp+1}, v{s2_}, v{s3_}
    v_lshlrev_b32 v{s0}, 16, v{vTmp}
    v_and_b32 v{s1}, 0xffff0000, v{vTmp}
    v_lshlrev_b32 v{s2_}, 16, v{vTmp+1}
    v_and_b32 v{s3_}, 0xffff0000, v{vTmp+1}
    ''')
    vMx, vLs = vTmp+2, vTmp+3
    a(f'''
    v_max3_f32 v{vMx}, v{s0}, v{s1}, v{s2_}
    v_max_f32 v{vMx}, v{vMx}, v{s3_}
    ''')
    allreduce_rows('v_max_f32', vMx, vTmp)
    wo_at('b3')
    a(f'''
    v_mul_f32 v{vMx}, s{sC2}, v{vMx}
    v_fma_f32 v{s0}, v{s0}, s{sC2}, -v{vMx}
    v_fma_f32 v{s1}, v{s1}, s{sC2}, -v{vMx}
    v_fma_f32 v{s2_}, v{s2_}, s{sC2}, -v{vMx}
    v_fma_f32 v{s3_}, v{s3_}, s{sC2}, -v{vMx}
    v_exp_f32 v{s0}, v{s0}
    v_exp_f32 v{s1}, v{s1}
    v_exp_f32 v{s2_}, v{s2_}
    v_exp_f32 v{s3_}, v{s3_}
    ''')
    for r in range(4):
        a(f'v_cvt_pk_bf16_f32 v{vTmp+4+r}, v{vS+r}, v{vS+r}')
    def pa(r):
        for k in range(4):
            a(f'v_and_b32 v{vPA+4*r+k}, v{vTmp+4+r}, v{vM+k}')
    def pv(r):
        for h in range(2):
            c = '0' if r == 0 else f'v[{vAcc+4*h}:{vAcc+4*h+3}]'
            i = r*2+h
            a(f'v_mfma_f32_16x16x32_bf16 v[{vAcc+4*h}:{vAcc+4*h+3}], v[{vPA+4*r}:{vPA+4*r+3}], v[{vV+4*i}:{vV+4*i+3}], {c}')
    wo_at('sm')
    pa(0)
    stamp('qk')
    for r in range(4):
        if r < 3: pa(r + 1)
        vm.wait(f'V{2*r+1}')
        if r == 3: stamp('vdone')
        pv(r)
        if r == 0:
            a(f'''
    v_add_f32 v{vLs}, v{s0}, v{s1}
    v_add_f32 v{vTmp+8}, v{s2_}, v{s3_}
    v_add_f32 v{vLs}, v{vLs}, v{vTmp+8}
    ''')
        if r == 1:
            allreduce_rows('v_add_f32', vLs, vTmp)
        if r == 2:
            a(f'''
    s_mov_b32 exec_lo, 0x101
    s_mov_b32 exec_hi, 0
    ds_write_b32 v{vMXa}, v{vMx} offset:{MX_LDS}
    ds_write_b32 v{vMXa}, v{vLs} offset:{LS_LDS}
    s_mov_b64 exec, -1
    ''')
    wo_at('pv')
    MS = f's[{sMSK}:{sMSK+1}]'
    a(f'''
    v_xor_b32 v{vTmp+11}, 512, v{vOw}
    s_lshr_b32 s{sT0}, s3, 1
    s_lshl_b32 s{sT0}, s{sT0}, 4
    v_mov_b32 v{vTmp+9}, s{sT0}                     ; h*16
    v_lshrrev_b32 v{vTmp+8}, 3, v{vN}
    v_lshlrev_b32 v{vTmp+8}, 2, v{vTmp+8}
    ds_read_b32 v{vGf}, v{vTmp+8} offset:{G_LDS}
    v_and_b32 v{vTmp+10}, 4, v{vL}
    v_cmp_ne_u32 {MS}, 0, v{vTmp+10}                ; slot >= 4
    ds_write_b128 v{vOw}, v[{vAcc}:{vAcc+3}]
    ds_write_b128 v{vTmp+11}, v[{vAcc+4}:{vAcc+7}]
    s_waitcnt lgkmcnt(0)
    s_barrier
    ''')
    stamp('pv')
    vMw, vLw = vTmp, vTmp+4
    vFw4 = [vTmp+12, vTmp+14, vTmp+16, vTmp+18]
    a(f'''
    ds_read_b128 v[{vMw}:{vMw+3}], v{vTmp+9} offset:{MX_LDS}
    ds_read_b128 v[{vLw}:{vLw+3}], v{vTmp+9} offset:{LS_LDS}
    ''')
    if o['placechk']:
        a(f'v_mov_b32 v{vTmp+10}, 0\nds_read_b32 v{vTmp+10}, v{vTmp+10} offset:{PV_LDS}')
    for ww in range(4):
        a(f'ds_read_b128 v[{vO+4*ww}:{vO+4*ww+3}], v{vOr} offset:{8192*ww}')
    a('s_waitcnt lgkmcnt(4)' if not o['stamps'] else 's_waitcnt lgkmcnt(0)')
    if o['placechk']: a(f'v_readfirstlane_b32 s{sPV}, v{vTmp+10}')
    a(f'''
    v_max3_f32 v{vTmp+8}, v{vMw}, v{vMw+1}, v{vMw+2}
    v_max_f32 v{vTmp+8}, v{vTmp+8}, v{vMw+3}        ; M
    ''')
    for ww in range(4): a(f'v_sub_f32 v{vFw4[ww]}, v{vMw+ww}, v{vTmp+8}')
    for ww in range(4): a(f'v_exp_f32 v{vFw4[ww]}, v{vFw4[ww]}')
    a(f'v_mul_f32 v{vTmp+9}, v{vFw4[0]}, v{vLw}')
    for ww in range(1, 4): a(f'v_fmac_f32 v{vTmp+9}, v{vFw4[ww]}, v{vLw+ww}')
    a('s_waitcnt lgkmcnt(0)')
    a(f'v_pk_mul_f32 v[{vO}:{vO+1}], v[{vO}:{vO+1}], v[{vFw4[0]}:{vFw4[0]+1}] op_sel_hi:[1,0]')
    a(f'v_pk_mul_f32 v[{vO+2}:{vO+3}], v[{vO+2}:{vO+3}], v[{vFw4[0]}:{vFw4[0]+1}] op_sel_hi:[1,0]')
    for ww in range(1, 4):
        a(f'v_pk_fma_f32 v[{vO}:{vO+1}], v[{vO+4*ww}:{vO+4*ww+1}], v[{vFw4[ww]}:{vFw4[ww]+1}], v[{vO}:{vO+1}] op_sel_hi:[1,0,1]')
        a(f'v_pk_fma_f32 v[{vO+2}:{vO+3}], v[{vO+4*ww+2}:{vO+4*ww+3}], v[{vFw4[ww]}:{vFw4[ww]+1}], v[{vO+2}:{vO+3}] op_sel_hi:[1,0,1]')
    a(f'''
    v_cndmask_b32 v{vO}, v{vO}, v{vTmp+8}, {MS}
    v_cndmask_b32 v{vO+1}, v{vO+1}, v{vTmp+9}, {MS}
    v_cndmask_b32 v{vO+2}, v{vO+2}, v{vTmp+8}, {MS}
    v_cndmask_b32 v{vO+3}, v{vO+3}, v{vTmp+9}, {MS}
    ''')
    tag_insert([vO, vO+1, vO+2, vO+3])
    publish(vm, vOP, vO, 'opub', lazy=True)
    stamp('opub')
    wo_at('pub')
    if o['o_delay']: vm.wait(o['o_delay'])
    vD = vV
    def h2loads(base):
        for k in range(4):
            a(f'global_load_dwordx4 v[{vD+4*k}:{vD+4*k+3}], v{vAd}, {base} offset:{128*k} sc1')
    h2loads(FIRST)
    for k in range(4): vm.issue(f'D{k}')
    wo_at('poll')
    vm.wait('D3')
    stamp('h2f')
    a('L_h2_comp:')
    t = vTmp
    vMk = vV+16
    vWk = [vV+20, vV+22, vV+24, vV+26]
    vMxx, vLp, vX, tt = t, t+1, t+2, t+6
    vBad = t+7
    c = [t+8, t+9, t+10, t+11]; ca, cb = t+12, t+13
    fill = []
    for k in range(4): fill += chk(vD+4*k, ca, cb, c[k])
    fill += [f'v_or3_b32 v{vBad}, v{c[0]}, v{c[1]}, v{c[2]}', f'v_or_b32 v{vBad}, v{vBad}, v{c[3]}']
    def F(n):
        for _ in range(n):
            if fill: a(fill.pop(0))
    for k in range(4):
        a(f'v_mov_b32_dpp v{vMk+k}, v{vD+4*k} row_shl:4 row_mask:0xf bank_mask:0xf bound_ctrl:0')
    untag([vMk, vMk+1, vMk+2, vMk+3])
    a(f'v_max3_f32 v{vMxx}, v{vMk}, v{vMk+1}, v{vMk+2}')
    a(f'v_max_f32 v{vMxx}, v{vMxx}, v{vMk+3}')
    a(f'v_mov_b32 v{tt}, v{vMxx}')
    F(2)
    a(f'v_permlane16_swap_b32 v{vMxx}, v{tt}')
    a(f'v_max_f32 v{vMxx}, v{vMxx}, v{tt}')
    a(f'v_mov_b32 v{tt}, v{vMxx}')
    F(2)
    a(f'v_permlane32_swap_b32 v{vMxx}, v{tt}')
    a(f'v_max_f32 v{vMxx}, v{vMxx}, v{tt}')
    for k in range(4): a(f'v_sub_f32 v{vWk[k]}, v{vMk+k}, v{vMxx}')
    for k in range(4): a(f'v_exp_f32 v{vWk[k]}, v{vWk[k]}')
    F(32)
    a(f'''
    v_cmp_ne_u32 vcc, 0, v{vBad}
    s_cbranch_vccz L_h2_ok
    ''')
    def h2checks():
        for k in range(4):
            for ln in chk(vD+4*k, ca, cb, c[k]): a(ln)
        a(f'v_or3_b32 v{vBad}, v{c[0]}, v{c[1]}, v{c[2]}\nv_or_b32 v{vBad}, v{vBad}, v{c[3]}')
    retry_loop('L_h2_r', h2loads, h2checks, vBad, 'L_h2_ok', own_b=(vOP, vO))
    a('''
    s_mov_b64 exec, -1
    s_branch L_h2_comp
L_h2_ok:
    s_mov_b64 exec, -1
    ''')
    if o['fast'] and o['lazy_b']:
        publish_b(vOP, vO); vm.issue('opub_b')
    stamp('h2'); note(14, 1, sSPIN)
    untag([vD+4*k+1 for k in range(4)] + [vD+4*k+i for k in range(4) for i in (0, 2, 3)])
    a(f'v_mul_f32_dpp v{vLp}, v{vD+1}, v{vWk[0]} row_shl:4 row_mask:0xf bank_mask:0xf bound_ctrl:0')
    a(f'v_pk_mul_f32 v[{vX}:{vX+1}], v[{vD}:{vD+1}], v[{vWk[0]}:{vWk[0]+1}] op_sel_hi:[1,0]')
    a(f'v_pk_mul_f32 v[{vX+2}:{vX+3}], v[{vD+2}:{vD+3}], v[{vWk[0]}:{vWk[0]+1}] op_sel_hi:[1,0]')
    for k in range(1, 4):
        a(f'v_fmac_f32_dpp v{vLp}, v{vD+4*k+1}, v{vWk[k]} row_shl:4 row_mask:0xf bank_mask:0xf bound_ctrl:0')
        a(f'v_pk_fma_f32 v[{vX}:{vX+1}], v[{vD+4*k}:{vD+4*k+1}], v[{vWk[k]}:{vWk[k]+1}], v[{vX}:{vX+1}] op_sel_hi:[1,0,1]')
        a(f'v_pk_fma_f32 v[{vX+2}:{vX+3}], v[{vD+4*k+2}:{vD+4*k+3}], v[{vWk[k]}:{vWk[k]+1}], v[{vX+2}:{vX+3}] op_sel_hi:[1,0,1]')
    a(f'''
    v_mov_b32 v{tt}, v{vLp}
    v_permlane32_swap_b32 v{vX}, v{vX+2}
    v_permlane32_swap_b32 v{vX+1}, v{vX+3}
    v_permlane16_swap_b32 v{vLp}, v{tt}
    v_add_f32 v{vX}, v{vX}, v{vX+2}
    v_add_f32 v{vX+1}, v{vX+1}, v{vX+3}
    v_add_f32 v{vLp}, v{vLp}, v{tt}
    v_mov_b32 v{tt}, v{vLp}
    v_permlane16_swap_b32 v{vX}, v{vX+1}
    v_permlane32_swap_b32 v{vLp}, v{tt}
    v_add_f32 v{vX}, v{vX}, v{vX+1}
    v_add_f32 v{vLp}, v{vLp}, v{tt}
    v_rcp_f32 v{vLp}, v{vLp}
    v_mul_f32 v{vX}, v{vX}, v{vGf}
    v_mul_f32 v{vX}, v{vX}, v{vLp}
    v_cvt_pk_bf16_f32 v{vX}, v{vX}, v{vX}
    v_mov_b32_dpp v{vX}, v{vX} row_shr:4 row_mask:0xf bank_mask:0xa
    ''')
    vAo = vPA
    wo_known = (o['o_delay'] == 'wo3' and all(x_ != 'poll' for x_ in o['wo_at']))
    def ands(g):
        for k in range(4):
            a(f'v_and_b32_dpp v{vAo+4*g+k}, v{vX}, v{vM+k} quad_perm:[{g},{g},{g},{g}] row_mask:0xf bank_mask:0xf')
    ands(0)
    for g in range(4):
        if g < 3: ands(g + 1)
        if not wo_known: vm.wait(f'wo{g}')
        cc = '0' if g == 0 else f'v[{vAcc}:{vAcc+3}]'
        a(f'v_mfma_f32_16x16x32_bf16 v[{vAcc}:{vAcc+3}], v[{vAo+4*g}:{vAo+4*g+3}], v[{vWO+4*g}:{vWO+4*g+3}], {cc}')
    a(f'''
    ds_write_b128 v{vFw}, v[{vAcc}:{vAcc+3}] offset:4096
    s_waitcnt lgkmcnt(0)
    s_barrier
    s_cmp_lg_u32 s3, 0
    s_cbranch_scc1 L_m_done
    ''')
    for ww in range(4):
        a(f'ds_read_b128 v[{vO+4*ww}:{vO+4*ww+3}], v{vFr} offset:{8192*ww+4096}')
    a(f'''
    ds_read_b128 v[{vO+16}:{vO+19}], v{vFr} offset:{F5_LDS}
    s_waitcnt lgkmcnt(0)
    v_pk_add_f32 v[{vO}:{vO+1}], v[{vO}:{vO+1}], v[{vO+4}:{vO+5}]
    v_pk_add_f32 v[{vO+2}:{vO+3}], v[{vO+2}:{vO+3}], v[{vO+6}:{vO+7}]
    v_pk_add_f32 v[{vO+8}:{vO+9}], v[{vO+8}:{vO+9}], v[{vO+12}:{vO+13}]
    v_pk_add_f32 v[{vO+10}:{vO+11}], v[{vO+10}:{vO+11}], v[{vO+14}:{vO+15}]
    v_pk_add_f32 v[{vO}:{vO+1}], v[{vO}:{vO+1}], v[{vO+16}:{vO+17}]
    v_pk_add_f32 v[{vO+2}:{vO+3}], v[{vO+2}:{vO+3}], v[{vO+18}:{vO+19}]
    v_pk_add_f32 v[{vO}:{vO+1}], v[{vO}:{vO+1}], v[{vO+8}:{vO+9}]
    v_pk_add_f32 v[{vO+2}:{vO+3}], v[{vO+2}:{vO+3}], v[{vO+10}:{vO+11}]
    ''')
    tag_insert([vO, vO+1, vO+2, vO+3])
    a(f'global_store_dwordx4 v{vFP}, v[{vO}:{vO+3}], {WS} sc1')
    stamp('fpub')
    vF = vV
    a(f'''
    s_cmp_ge_u32 s{sH3}, 28
    s_cbranch_scc1 L_m_done
    ''')
    if o['h3_ack']: a('s_waitcnt vmcnt(0)')
    if o['h3_pipe'] == 1:
        a(f'''
L_h3_loop:
    global_load_dwordx4 v[{vF}:{vF+3}], v{vH3}, {WS} sc1
    s_waitcnt vmcnt(0)
    ''')
        tag_check(vF, vTmp+2, vTmp+4)
        a(f'''
    v_cmp_ne_u32 vcc, 0, v{vTmp+4}
    s_cbranch_vccz L_h3_ok
    s_mov_b64 exec, vcc
    s_sub_u32 s{sSPIN}, s{sSPIN}, 1
    s_cmp_lg_u32 s{sSPIN}, 0
    s_cbranch_scc1 L_h3_loop
L_h3_ok:
    s_mov_b64 exec, -1
    ''')
    else:
        G = vF + 8
        a(f'''
    s_mov_b64 s[{sMSK}:{sMSK+1}], -1
    global_load_dwordx4 v[{vF}:{vF+3}], v{vH3}, {WS} sc1
L_h3_loop:
    global_load_dwordx4 v[{vF+4}:{vF+7}], v{vH3}, {WS} sc1
    s_waitcnt vmcnt(1)
    ''')
        def absorb(base):
            tag_check(base, vTmp+2, vTmp+4)
            a(f'''
    v_cmp_eq_u32 vcc, 0, v{vTmp+4}
    s_andn2_b64 s[{sMSK}:{sMSK+1}], s[{sMSK}:{sMSK+1}], vcc
    s_mov_b64 s[{sT0}:{sT0+1}], exec
    s_mov_b64 exec, vcc
    v_mov_b32 v{G}, v{base}
    v_mov_b32 v{G+1}, v{base+1}
    v_mov_b32 v{G+2}, v{base+2}
    v_mov_b32 v{G+3}, v{base+3}
    s_mov_b64 exec, s[{sT0}:{sT0+1}]
    ''')
        absorb(vF)
        a(f'''
    s_cmp_eq_u64 s[{sMSK}:{sMSK+1}], 0
    s_cbranch_scc1 L_h3_ok
    s_mov_b64 exec, s[{sMSK}:{sMSK+1}]
    global_load_dwordx4 v[{vF}:{vF+3}], v{vH3}, {WS} sc1
    s_waitcnt vmcnt(1)
    ''')
        absorb(vF+4)
        a(f'''
    s_cmp_eq_u64 s[{sMSK}:{sMSK+1}], 0
    s_cbranch_scc1 L_h3_ok
    s_mov_b64 exec, s[{sMSK}:{sMSK+1}]
    s_sub_u32 s{sSPIN}, s{sSPIN}, 1
    s_cmp_lg_u32 s{sSPIN}, 0
    s_cbranch_scc1 L_h3_loop
L_h3_ok:
    s_mov_b64 exec, -1
    ''')
        vF = G
    stamp('h3'); note(15, 0, sSPIN)
    untag([vF, vF+1, vF+2, vF+3])
    a(f'''
    v_permlane32_swap_b32 v{vF}, v{vF+2}
    v_permlane32_swap_b32 v{vF+1}, v{vF+3}
    v_add_f32 v{vF}, v{vF}, v{vF+2}
    v_add_f32 v{vF+1}, v{vF+1}, v{vF+3}
    v_permlane16_swap_b32 v{vF}, v{vF+1}
    v_add_f32 v{vF}, v{vF}, v{vF+1}
    v_add_f32_dpp v{vF}, v{vF}, v{vF} row_ror:8 row_mask:0xf bank_mask:0xf
    v_add_f32_dpp v{vF}, v{vF}, v{vF} row_ror:4 row_mask:0xf bank_mask:0xf
    v_add_f32_dpp v{vF}, v{vF}, v{vF} row_ror:2 row_mask:0xf bank_mask:0xf
    v_add_f32_dpp v{vF}, v{vF}, v{vF} row_ror:1 row_mask:0xf bank_mask:0xf
    v_cvt_pk_bf16_f32 v{vF}, v{vF}, v{vF}
    s_mov_b32 exec_lo, 0x00010001
    s_mov_b32 exec_hi, 0x00010001
    global_store_short v{vOut}, v{vF}, s[{sOUT}:{sOUT+1}]
    s_cmp_lg_u32 s2, 0
    s_cbranch_scc1 L_m_done
    v_mov_b32 v{vTmp}, 0
    s_mov_b64 exec, 1
    global_store_dword v{vTmp}, v{vT}, {WS} sc1
L_m_done:
    s_mov_b64 exec, -1
    ''')
    stamp('end')
    a('s_branch L_fin')

    a('L_aux:')
    vm = VM(a)
    if o['prio']:
        a('s_setprio 3')
    vA16, vWq, vTr, vXr = 4, 5, 6, 7
    vXB = 8
    vWA = 36
    vD0, vD1 = 68, 72
    vt = 76
    aM = 96
    aXA = 100
    aW1 = 128
    aW1off, aHP, aQP, aXd, aW2off, aAh, aFw = 156, 157, 158, 159, 160, 161, 162
    aRG = 164
    aW2 = 8
    aH = 40
    aA = 56
    a(f'''
    v_lshlrev_b32 v{vA16}, 4, v{vL}
    v_lshrrev_b32 v{vt}, 2, v{vL}
    v_and_b32 v{vt+1}, 3, v{vL}
    v_lshlrev_b32 v{vt+1}, 4, v{vt+1}
    v_lshl_add_u32 v{vWq}, v{vt}, 13, v{vt+1}
    s_and_b32 s{sT0}, s{sJ}, 1                      ; rh
    s_lshr_b32 s{sT1}, s{sJ}, 1                     ; ct32
    s_mul_i32 s{sT2}, s{sT0}, {224*8192}
    s_lshl_b32 s{sT3}, s{sHKV}, 10
    s_add_u32 s{sT2}, s{sT2}, s{sT3}
    s_lshl_b32 s{sT3}, s{sT1}, 6
    s_add_u32 s{sT2}, s{sT2}, s{sT3}
    v_mov_b32 v{vt+2}, 0
    s_waitcnt lgkmcnt(0)
    ''')
    if o['wsoff']: a(f's_add_u32 s{sWS}, s{sWS}, {hex(o["wsoff"])}\ns_addc_u32 s{sWS+1}, s{sWS+1}, 0')
    stamp('karg')
    a(f'''
    s_add_u32 s{sWQ}, s{sWQ}, s{sT2}
    s_addc_u32 s{sWQ+1}, s{sWQ+1}, 0
    {'' if o['e_late'] else f'global_load_dword v{vT}, v{vt+2}, {WS}{ESC}'}
    s_mov_b32 m0, {X_LDS}
    s_add_u32 s{sWSB}, s{sWS}, {WS_ALT}
    global_load_lds_dwordx4 v{vA16}, s[{sX}:{sX+1}]
    s_addc_u32 s{sWSB+1}, s{sWS+1}, 0
    s_mov_b32 exec_lo, -1
    s_mov_b32 exec_hi, 0x0000ffff
    global_load_lds_dwordx4 v{vA16}, s[{sX}:{sX+1}] offset:1024
    s_mov_b32 m0, {GW_LDS}
    s_mov_b32 exec_hi, 0x00ffffff
    global_load_lds_dwordx4 v{vA16}, s[{sGW}:{sGW+1}]
    s_mov_b64 exec, -1
    ''')
    if o.get('noa'): a(f's_add_u32 s{sDUM}, s{sWS}, 0x800000\ns_addc_u32 s{sDUM+1}, s{sWS+1}, 0')
    for n in (('x0', 'x1', 'gw') if o['e_late'] else ('E', 'x0', 'x1', 'gw')): vm.issue(n)
    for s in range(14):
        a(f's_mov_b32 m0, {WQ_LDS + s*1024}')
        if s > 0:
            a(f's_add_u32 s{sWQ}, s{sWQ}, {16*8192}\ns_addc_u32 s{sWQ+1}, s{sWQ+1}, 0')
        else:
            a('s_nop 0')
        a(f'global_load_lds_dwordx4 v{vWq}, s[{sWQ}:{sWQ+1}]{NT("wq")}')
        vm.issue(f'wq{s}')
    if o['e_late']:
        a(f'global_load_dword v{vT}, v{vt+2}, {WS}{ESC}'); vm.issue('E')
    if o['b1'] and o.get('b1_after') is None:
        a('s_barrier')
    a(f'''
    v_lshrrev_b32 v{vt}, 2, v{vN}
    v_lshlrev_b32 v{vt}, 6, v{vt}
    v_and_b32 v{vt+1}, 3, v{vN}
    v_lshl_add_u32 v{vt}, v{vt+1}, 3, v{vt}
    v_lshl_add_u32 v{vTr}, v{vKS}, 9, v{vt}
    v_lshrrev_b32 v{vt+3}, 3, v{vN}                 ; b = n>>3
    v_mul_u32_u24 v{vt}, 896, v{vt+3}
    v_lshl_add_u32 v{vXr}, v{vKS}, 4, v{vt}
    s_mul_i32 s{sT2}, s{sT0}, 448
    v_add_u32 v{vXr}, s{sT2}, v{vXr}
    s_lshl_b32 s{sT2}, s{sHKV}, 1
    s_add_u32 s{sT2}, s{sT2}, s{sT0}
    s_lshl_b32 s{sT2}, s{sT2}, 12
    s_lshl_b32 s{sT3}, s{sT1}, 7
    s_add_u32 s{sT2}, s{sT2}, s{sT3}
    s_add_u32 s{sT2}, s{sT2}, {WS_QP}
    v_lshlrev_b32 v{aQP}, 11, v{vt+3}
    v_and_b32 v{vt+1}, 1, v{vL}
    v_lshl_add_u32 v{aQP}, v{vt+1}, 6, v{aQP}
    v_lshl_add_u32 v{aQP}, v{vKS}, 4, v{aQP}
    v_add_u32 v{aQP}, s{sT2}, v{aQP}
    ''')
    masks(aM, vt+4)
    a(f'''
    s_mov_b32 s{sFX}, {hex(FXPERM)}
    s_lshl_b32 s{sT2}, s{sHKV}, 2
    s_lshr_b32 s{sFX}, s{sFX}, s{sT2}
    s_and_b32 s{sFX}, s{sFX}, 7
    s_cmp_eq_u32 s{sRG}, 4
    s_cselect_b32 s{sHASF2}, {3 if o['lightmap'] else 99}, s{sRG}
    {'' if o['lightmap'] else f's_mov_b32 s{sHASF2}, s{sRG}'}
    s_cmp_lt_u32 s{sRG}, {3 if o['lightmap'] else 4}
    s_cselect_b32 s{sF1}, 1, 0
    s_cmp_eq_u32 s{sRG}, {4 if o['lightmap'] else 99}
    s_cselect_b32 s{sF1}, 1, s{sF1}
    s_lshl_b32 s{sOI}, s{sHASF2}, 2
    s_add_u32 s{sOI}, s{sOI}, s{sCT}
    s_lshl_b32 s{sT2}, s{sFX}, 1
    s_add_u32 s{sT2}, s{sT2}, s{sB}                 ; 2*fx + (j>>4)
    s_add_u32 s{sT3}, s{sFX}, 6
    s_cmp_lt_u32 s{sFX}, 6
    s_cselect_b32 s{sT3}, s{sT2}, s{sT3}            ; ct128
    s_cselect_b32 s{sF1}, 1, s{sF1}
    s_cselect_b32 s{sPI}, s{sC}, s{sOI}             ; pi
    s_cselect_b32 s{sHASF2}, s{sRG}, s{sHASF2}      ; rgf
    s_and_b32 s{sPI}, s{sPI}, 15
    s_mul_i32 s{sT4}, s{sPI}, 28                    ; r0 = 28*pi
    s_mul_i32 s{sU}, s{sT4}, 3584
    s_lshl_b32 s{sOI}, s{sT3}, 8
    s_add_u32 s{sU}, s{sU}, s{sOI}
    s_add_u32 s{sW1}, s{sW1}, s{sU}
    s_addc_u32 s{sW1+1}, s{sW1+1}, 0
    v_mul_u32_u24 v{aW1off}, 3584, v{vKS}
    v_lshl_add_u32 v{aW1off}, v{vN}, 4, v{aW1off}
    s_mul_i32 s{sU}, s{sPI}, 14336
    s_lshl_b32 s{sOI}, s{sT3}, 9
    s_add_u32 s{sU}, s{sU}, s{sOI}
    s_add_u32 s{sU}, s{sU}, {WS_HP}
    v_lshrrev_b32 v{vt+7}, 5, v{vL}
    v_mul_u32_u24 v{aHP}, 7168, v{vt+7}
    v_and_b32 v{vt+8}, 31, v{vL}
    v_lshl_add_u32 v{aHP}, v{vt+8}, 4, v{aHP}
    v_add_u32 v{aHP}, s{sU}, v{aHP}
    v_mul_u32_u24 v{aXd}, 896, v{vt+3}
    v_lshl_add_u32 v{aXd}, v{vKS}, 1, v{aXd}
    s_lshl_b32 s{sU}, s{sT4}, 1
    v_add_u32 v{aXd}, s{sU}, v{aXd}
    s_lshl_b32 s{sU}, s{sFX}, 3
    s_lshl_b32 s{sT2}, s{sFX}, 2
    s_add_u32 s{sT2}, s{sT2}, 24
    s_cmp_lt_u32 s{sFX}, 6
    s_cselect_b32 s{sU}, s{sU}, s{sT2}
    s_add_u32 s{sU}, s{sU}, s{sHASF2}
    s_min_u32 s{sU}, s{sU}, 55
    s_lshr_b32 s{sT2}, s{sU}, 2
    s_lshl_b32 s{sT2}, s{sT2}, 7
    s_and_b32 s{sT3}, s{sU}, 1
    s_lshl_b32 s{sT3}, s{sT3}, 6
    s_add_u32 s{sT2}, s{sT2}, s{sT3}
    s_bfe_u32 s{sT3}, s{sU}, 0x10001
    s_lshl_b32 s{sT3}, s{sT3}, 2
    s_add_u32 s{sT2}, s{sT2}, s{sT3}
    s_mul_i32 s{sT2}, s{sT2}, 896
    s_lshl_b32 s{sT3}, s{sCT}, 8
    s_add_u32 s{sT2}, s{sT2}, s{sT3}
    s_add_u32 s{sW2}, s{sW2}, s{sT2}
    s_addc_u32 s{sW2+1}, s{sW2+1}, 0
    v_and_b32 v{vt+8}, s{sEXW}, v{vN}
    v_mul_u32_u24 v{aW2off}, 896, v{vKS}
    v_lshl_add_u32 v{aW2off}, v{vt+8}, 4, v{aW2off}
    ; H poll address: pi*14336 + b*7168 + u*128 + slot*16 ; pi = 4k + (l>>4), b = (l>>3)&1, slot = l&7
    v_mul_u32_u24 v{aAh}, 14336, v{vKS}
    v_mul_u32_u24 v{vt+8}, 7168, v{vt+3}
    v_add_u32 v{aAh}, v{aAh}, v{vt+8}
    v_and_b32 v{vt+8}, 7, v{vL}
    v_lshl_add_u32 v{aAh}, v{vt+8}, 4, v{aAh}
    s_lshl_b32 s{sT2}, s{sU}, 7
    s_add_u32 s{sT2}, s{sT2}, {WS_HP}
    v_add_u32 v{aAh}, s{sT2}, v{aAh}
    v_and_b32 v{vt+8}, 1, v{vKS}
    v_lshlrev_b32 v{vt+8}, 4, v{vt+8}
    v_lshl_add_u32 v{vt+8}, v{vN}, 5, v{vt+8}
    v_lshl_add_u32 v{aFw}, v{vt+7}, 9, v{vt+8}
    v_cmp_eq_u32 vcc, 1, v{vt+1}
    ''')
    vm.wait('gw')
    stamp('qready')
    if not o['e_late']: a(f'v_add_u32 v{vT}, 0x01010101, v{vT}')
    for s in range(7):
        a(f'ds_read_b128 v[{vXB+4*s}:{vXB+4*s+3}], v{vXr} offset:{X_LDS + 64*s}')
    for s in range(7):
        wa = vWA + 16*(s & 1)
        vm.wait(f'wq{2*s+1}')
        if o['b1'] and o.get('b1_after') == 2*s+1: a('s_barrier')
        for cg in range(2):
            for hf in range(2):
                a(f'ds_read_b64_tr_b16 v[{wa+8*cg+2*hf}:{wa+8*cg+2*hf+1}], v{vTr} offset:{WQ_LDS + s*2048 + hf*256 + cg*32}')
        a('s_waitcnt lgkmcnt(0)')
        for cg in range(2):
            d = vD0 if cg == 0 else vD1
            c_ = '0' if s == 0 else f'v[{d}:{d+3}]'
            a(f'v_mfma_f32_16x16x32_bf16 v[{d}:{d+3}], v[{wa+8*cg}:{wa+8*cg+3}], v[{vXB+4*s}:{vXB+4*s+3}], {c_}')
    stamp('a_wq')
    if o['e_late']:
        vm.wait('E'); a(f'v_add_u32 v{vT}, 0x01010101, v{vT}')
    for k in range(4):
        a(f'v_cndmask_b32 v{vD0+k}, v{vD0+k}, v{vD1+k}, vcc')
    tag_insert([vD0, vD0+1, vD0+2, vD0+3])
    a('s_mov_b32 exec_lo, 0x03030303\ns_mov_b32 exec_hi, 0x03030303')
    if o['fast'] and o['placechk'] and not o.get('nob'):
        if o.get('noa'):
            a(f'global_store_dwordx4 v{aQP}, v[{vD0}:{vD0+3}], s[{sDUM}:{sDUM+1}]')
        else:
            a(f'global_store_dwordx4 v{aQP}, v[{vD0}:{vD0+3}], {WS}{o.get("afl", "")}')
        vm.issue('qpub_a')
        a(f'''
    s_getreg_b32 s{sPV}, hwreg(HW_REG_XCC_ID)
    s_lshl_b32 s{sPV}, s{sPV}, 8
    s_lshl_b32 s{sOI}, s2, 7
    s_add_u32 s{sOI}, s{sOI}, {WS_REG}
    s_mov_b32 exec_lo, 0x000c000c
    s_mov_b32 exec_hi, 0x000c000c
    v_and_b32 v{vt+16}, 1, v{vL}
    v_lshl_add_u32 v{vt+16}, v{vKS}, 1, v{vt+16}    ; slot = (l>>4)*2 + (l&1)
    v_lshlrev_b32 v{vt+16}, 4, v{vt+16}
    v_add_u32 v{aQP}, s{sOI}, v{vt+16}
    v_mov_b32 v{vD0}, s{sPV}
    v_mov_b32 v{vD0+1}, s{sPV}
    v_mov_b32 v{vD0+2}, s{sPV}
    v_mov_b32 v{vD0+3}, s{sPV}
    ''')
        tag_insert([vD0, vD0+1, vD0+2, vD0+3])
        a(f'''
    s_mov_b32 exec_lo, 0x030f030f
    s_mov_b32 exec_hi, 0x030f030f
    global_store_dwordx4 v{aQP}, v[{vD0}:{vD0+3}], {WSB} sc1
    ''')
        vm.issue('qpub')
    else:
        publish(vm, aQP, vD0, 'qpub')
    a('s_mov_b64 exec, -1')
    stamp('kdone')
    if o['aux_lowprio']: a('s_setprio 0')
    if o['fast'] and o['prewrite']:
        a(f'''
    s_cmp_eq_u32 s{sF1}, 0
    s_cbranch_scc1 L_a_nopw
    ''')
        for k in range(4): a(f'v_xor_b32 v{vt+12+k}, 0x80808080, v{vT}')
        for k in range(4): a(f'v_perm_b32 v{vt+12+k}, v{vt+12+k}, v{vt+12+k}, s{sSEL+k}')
        a(f'global_store_dwordx4 v{aHP}, v[{vt+12}:{vt+15}], {WS}')
        a('L_a_nopw:')
    g0 = vXB
    a(f'''
    v_mov_b32 v{vt+8}, 0
    v_mov_b32 v{vt+9}, 0
    s_mov_b32 exec_lo, -1
    s_mov_b32 exec_hi, 0x00ffffff
    ds_read_b128 v[{g0}:{g0+3}], v{vA16} offset:{X_LDS}
    ds_read_b128 v[{g0+4}:{g0+7}], v{vA16} offset:{X_LDS+896}
    ds_read_b128 v[{g0+8}:{g0+11}], v{vA16} offset:{GW_LDS}
    s_waitcnt lgkmcnt(0)
    ''')
    for k in range(4):
        a(f'v_dot2_f32_bf16 v{vt+8}, v{g0+k}, v{g0+8+k}, v{vt+8}')
        a(f'v_dot2_f32_bf16 v{vt+9}, v{g0+4+k}, v{g0+8+k}, v{vt+9}')
    a('s_mov_b64 exec, -1')
    for g in range(7):
        a(f'ds_read_u16 v{g0+12+g}, v{aXd} offset:{X_LDS + 8*g}')
    for n in (8, 4, 2, 1):
        for r in (vt+8, vt+9):
            a(f'v_add_f32_dpp v{r}, v{r}, v{r} row_ror:{n} row_mask:0xf bank_mask:0xf')
    allreduce_rows('v_add_f32', vt+8, vt+10)
    allreduce_rows('v_add_f32', vt+9, vt+10)
    a(f'''
    v_and_b32 v{vt+10}, 1, v{vL}
    v_cmp_eq_u32 vcc, 1, v{vt+10}
    v_cndmask_b32 v{vt+8}, v{vt+8}, v{vt+9}, vcc
    v_cvt_pk_bf16_f32 v{vt+8}, v{vt+8}, v{vt+8}
    v_lshlrev_b32 v{vt+8}, 16, v{vt+8}
    v_mul_f32 v{vt+8}, {hex(f2u(-LOG2E))}, v{vt+8}
    v_exp_f32 v{vt+8}, v{vt+8}
    v_add_f32 v{vt+8}, 1.0, v{vt+8}
    v_rcp_f32 v{vt+8}, v{vt+8}
    v_cvt_pk_bf16_f32 v{vt+8}, v{vt+8}, v{vt+8}
    v_lshlrev_b32 v{vt+8}, 16, v{vt+8}
    v_sub_f32 v{vt+9}, 1.0, v{vt+8}
    v_cvt_pk_bf16_f32 v{vt+9}, v{vt+9}, v{vt+9}
    v_lshlrev_b32 v{vt+9}, 16, v{vt+9}
    v_lshlrev_b32 v{vt+10}, 2, v{vt+10}
    s_mov_b64 exec, 3
    ds_write_b32 v{vt+10}, v{vt+8} offset:{G_LDS}
    s_mov_b64 exec, -1
    v_readlane_b32 s{sT2}, v{vt+9}, 0
    v_readlane_b32 s{sT3}, v{vt+9}, 1
    v_cmp_gt_u32 vcc, 32, v{vL}
    v_mov_b32 v{vt+11}, s{sT3}
    v_mov_b32 v{vt+12}, s{sT2}
    v_cndmask_b32 v{vt+11}, v{vt+11}, v{vt+12}, vcc
    s_waitcnt lgkmcnt(0)
    ''')
    for g in range(7):
        a(f'v_lshl_or_b32 v{g0+12+g}, v{g0+12+g}, 16, v{g0+12+g}')
    for g in range(7):
        for k in range(4):
            a(f'v_and_b32 v{aXA+4*g+k}, v{g0+12+g}, v{aM+k}')
    stamp('qpoll')
    a('s_barrier')
    if o['placechk']:
        a(f'''
    v_and_b32 v{vt+16}, 31, v{vL}
    v_lshlrev_b32 v{vt+16}, 10, v{vt+16}
    s_lshl_b32 s{sOI}, s{sHKV}, 7
    s_add_u32 s{sOI}, s{sOI}, {WS_REG}
    v_add_u32 v{vt+16}, s{sOI}, v{vt+16}
    global_load_dwordx4 v[{aRG}:{aRG+3}], v{vt+16}, {WSB} sc1
    ''')
        vm.issue('regchk')

    def verdict():
        if not o['placechk']: return
        tag_check(aRG, vt+12, vt+14)
        a(f'''
    v_lshrrev_b32 v{vt+15}, 8, v{aRG}
    s_lshr_b32 s{sOI}, s{sPV}, 8
    v_xor_b32 v{vt+15}, s{sOI}, v{vt+15}
    v_or_b32 v{vt+14}, v{vt+14}, v{vt+15}
    v_cmp_ne_u32 vcc, 0, v{vt+14}
    s_cmp_eq_u64 vcc, 0
    s_cselect_b32 s{sPV}, {0 if o.get('noa') else 1}, 0
    v_mov_b32 v{vt+14}, s{sPV}
    v_mov_b32 v{vt+15}, 0
    ds_write_b32 v{vt+15}, v{vt+14} offset:{PV_LDS}
    s_waitcnt lgkmcnt(0)
    ''')
        if o['stamps']: a(f's_mov_b32 s{64+2*14}, s{sPV}')
    a(f'''
    s_cmp_eq_u32 s{sF1}, 0
    s_cbranch_scc1 L_a_none
    ''')
    if o['pretouch'] and o['fast']:
        a(f's_mul_i32 s{sOI}, s{sCT}, {4*14336}\nv_add_u32 v{vt+12}, s{sOI}, v{aAh}')
        a(f'global_load_dwordx4 v[{aH}:{aH+3}], v{vt+12}, {WS} sc1'); vm.issue('pt')
    for g in range(7):
        a(f'global_load_dwordx4 v[{aW1+4*g}:{aW1+4*g+3}], v{aW1off}, s[{sW1}:{sW1+1}]{NT("w1")}')
        vm.issue(f'w1_{g}')
        if g < 6:
            a(f's_add_u32 s{sW1}, s{sW1}, {4*3584}\ns_addc_u32 s{sW1+1}, s{sW1+1}, 0')
    def w2loads():
        for g in range(8):
            a(f'global_load_dwordx4 v[{aW2+4*g}:{aW2+4*g+3}], v{aW2off}, s[{sW2}:{sW2+1}]{NT("w2")}')
            vm.issue(f'w2_{g}')
            if g < 7:
                a(f's_add_u32 s{sW2}, s{sW2}, {8*896}\ns_addc_u32 s{sW2+1}, s{sW2+1}, 0')
    if o.get('w2_at', 'bq') == 'bq': w2loads()
    if o['placechk']:
        vm.wait('regchk'); verdict()
    a('s_barrier')
    vm.wait('w1_6')
    stamp('vdone')
    for g in range(7):
        c_ = '0' if g == 0 else f'v[{vD0}:{vD0+3}]'
        a(f'v_mfma_f32_16x16x32_bf16 v[{vD0}:{vD0+3}], v[{aXA+4*g}:{aXA+4*g+3}], v[{aW1+4*g}:{aW1+4*g+3}], {c_}')
    tag_insert([vD0, vD0+1, vD0+2, vD0+3])
    publish(vm, aHP, vD0, 'hpub', lazy=True)
    stamp('opub')
    if o.get('w2_at', 'bq') == 'pub': w2loads()
    if o['h_delay']: vm.wait(o['h_delay'])
    def hloads(base):
        for k in range(4):
            a(f'v_add_u32 v{vt+12}, {4*k*14336}, v{aAh}\nglobal_load_dwordx4 v[{aH+4*k}:{aH+4*k+3}], v{vt+12}, {base} sc1')
    cc4 = [vt, vt+1, vt+2, vt+3]
    def hchecks():
        for k in range(4):
            for ln in chk(aH+4*k, vt+4, vt+5, cc4[k]): a(ln)
        a(f'v_or3_b32 v{vt}, v{vt}, v{vt+1}, v{vt+2}\nv_or_b32 v{vt}, v{vt}, v{vt+3}')
    hloads(FIRST)
    for k in range(4): vm.issue(f'H{k}')
    if o.get('w2_at', 'bq') == 'poll': w2loads()
    vm.wait('H3')
    stamp('h2f')
    hchecks()
    a(f'''
    v_cmp_ne_u32 vcc, 0, v{vt}
    s_cbranch_vccz L_ah_ok
    ''')
    retry_loop('L_ah_r', hloads, hchecks, vt, 'L_ah_ok', own_b=(aHP, vD0))
    a('L_ah_ok:\ns_mov_b64 exec, -1')
    if o['fast'] and o['lazy_b']:
        publish_b(aHP, vD0); vm.issue('hpub_b')
    stamp('h2'); note(15, 1, sSPIN)
    untag(range(aH, aH+16))
    a(f'''
    v_pk_add_f32 v[{aH}:{aH+1}], v[{aH}:{aH+1}], v[{aH+4}:{aH+5}]
    v_pk_add_f32 v[{aH+2}:{aH+3}], v[{aH+2}:{aH+3}], v[{aH+6}:{aH+7}]
    v_pk_add_f32 v[{aH+8}:{aH+9}], v[{aH+8}:{aH+9}], v[{aH+12}:{aH+13}]
    v_pk_add_f32 v[{aH+10}:{aH+11}], v[{aH+10}:{aH+11}], v[{aH+14}:{aH+15}]
    v_pk_add_f32 v[{aH}:{aH+1}], v[{aH}:{aH+1}], v[{aH+8}:{aH+9}]
    v_pk_add_f32 v[{aH+2}:{aH+3}], v[{aH+2}:{aH+3}], v[{aH+10}:{aH+11}]
    v_permlane32_swap_b32 v{aH}, v{aH+2}
    v_permlane32_swap_b32 v{aH+1}, v{aH+3}
    v_add_f32 v{aH}, v{aH}, v{aH+2}
    v_add_f32 v{aH+1}, v{aH+1}, v{aH+3}
    v_permlane16_swap_b32 v{aH}, v{aH+1}
    v_add_f32 v{aH}, v{aH}, v{aH+1}
    v_max_f32 v{aH}, 0, v{aH}
    v_cvt_pk_bf16_f32 v{aH}, v{aH}, v{aH}
    ''')
    for g in range(8):
        A = aA + 4*(g & 1)
        tb = aH + 1 + (g & 1)
        a(f'v_mov_b32_dpp v{tb}, v{aH} row_newbcast:{g} row_mask:0xf bank_mask:0x3')
        a(f'v_mov_b32_dpp v{tb}, v{aH} row_newbcast:{8+g} row_mask:0xf bank_mask:0xc')
        for k in range(4):
            a(f'v_and_b32 v{A+k}, v{tb}, v{aM+k}')
        vm.wait(f'w2_{g}')
        c_ = '0' if g == 0 else f'v[{vD1}:{vD1+3}]'
        a(f'v_mfma_f32_16x16x32_bf16 v[{vD1}:{vD1+3}], v[{A}:{A+3}], v[{aW2+4*g}:{aW2+4*g+3}], {c_}')
    for k in range(4):
        a(f'v_mul_f32 v{vD1+k}, v{vt+11}, v{vD1+k}')
    a(f'''
L_a_wr:
    ds_write_b128 v{aFw}, v[{vD1}:{vD1+3}] offset:{F5_LDS}
    s_waitcnt lgkmcnt(0)
    ''')
    stamp('fpub')
    a(f'''
    s_barrier
    s_branch L_fin
L_a_none:
    v_mov_b32 v{vD1}, 0
    v_mov_b32 v{vD1+1}, 0
    v_mov_b32 v{vD1+2}, 0
    v_mov_b32 v{vD1+3}, 0
    ''')
    if o['placechk']:
        a('s_waitcnt vmcnt(0)'); verdict()
    a('''
    s_barrier
    s_branch L_a_wr
    ''')
    a('L_fin:')
    if o['probe']:
        pname, K = o['probe']
        i = SI[pname]
        a(f'''
    s_waitcnt lgkmcnt(0)
    s_cmp_lg_u32 s3, 0
    s_cbranch_scc1 L_end
    v_mov_b32 v4, 0
    s_mov_b64 exec, 1
    v_mov_b32 v6, s64
    v_not_b32 v6, v6
    global_atomic_umax v4, v6, s[{sDBG}:{sDBG+1}] sc1
    v_mov_b32 v7, s{64+2*i}
    global_atomic_umax v4, v7, s[{sDBG}:{sDBG+1}] offset:4 sc1
    s_waitcnt vmcnt(0)
    v_mov_b32 v8, 1
    global_atomic_add v9, v4, v8, s[{sDBG}:{sDBG+1}] offset:8 sc0 sc1
    s_waitcnt vmcnt(0)
    v_readfirstlane_b32 s60, v9
    s_cmp_lg_u32 s60, 255
    s_cbranch_scc1 L_end
    global_load_dwordx2 v[10:11], v4, s[{sDBG}:{sDBG+1}] sc1
    s_waitcnt vmcnt(0)
    v_readfirstlane_b32 s60, v10
    v_readfirstlane_b32 s61, v11
    s_not_b32 s60, s60
    s_sub_u32 s61, s61, s60
    s_min_u32 s61, s61, 5000
    v_mov_b32 v12, s61
    global_store_dword v4, v12, s[{sDBG}:{sDBG+1}] offset:12 sc1
    s_mul_i32 s61, s61, {K}
    s_memrealtime s[62:63]
    s_waitcnt lgkmcnt(0)
    s_add_u32 s61, s61, s62
L_probe_spin:
    s_memrealtime s[62:63]
    s_waitcnt lgkmcnt(0)
    s_sub_u32 s60, s61, s62
    s_cmp_gt_i32 s60, 0
    s_cbranch_scc1 L_probe_spin
    ''')
    elif o['stamps']:
        a(f'''
    s_waitcnt lgkmcnt(0)
    s_lshl_b32 s{sT0}, s2, 10
    s_lshl_b32 s{sT1}, s3, 7
    s_add_u32 s{sT0}, s{sT0}, s{sT1}
    s_add_u32 s{sT0}, s{sT0}, {WS_STAMP}
    s_sub_u32 s{sWS}, s{sWS}, {hex(o['wsoff'])}
    s_subb_u32 s{sWS+1}, s{sWS+1}, 0
    v_mov_b32 v4, s{sT0}
    s_mov_b64 exec, 1
    ''')
        for i in range(16):
            a(f'''
    v_mov_b32 v6, s{64+2*i}
    v_mov_b32 v7, s{65+2*i}
    global_store_dwordx2 v4, v[6:7], {WS} offset:{8*i}
    s_nop 1
    ''')
    a('''
L_end:
    s_endpgm
    ''')
    body, n = hazard.fix(a.text())
    return wrap(body, (256,1,1), (320,1,1), LDS_BYTES, vgpr=NV, sgpr=102, desc=True), STAMPS

if __name__ == '__main__':
    opts = json.loads(sys.argv[2]) if len(sys.argv) > 2 else {}
    s, names = gen(opts)
    open(sys.argv[1], 'w').write(s)
```

```python
NAME = 'gated_mix__sliding_block_cached__dense_activation_relu__decode'
KNAME = NAME + '_kernel'

HEADER = """; Kernarg layout for this problem (96 bytes, ptrs only, base s[0:1]):
"""

DESC = """; ---------------------------------------------------------------------------------------------------------
; ---------------------------------------------------------------------------------------------------------
"""

class Asm:
    def __init__(self):
        self.lines = []
    def __call__(self, s):
        for ln in s.strip('\n').split('\n'):
            self.lines.append(ln)
    def label(self, name):
        self.lines.append(name + ':')
    def text(self):
        return '\n'.join(self.lines) + '\n'

def wrap(body, grid, block, lds, vgpr=256, sgpr=102, accum=None, kname=KNAME, desc=False):
    if accum is None:
        accum = (vgpr + 3) // 4 * 4
    s = HEADER + (DESC if desc else '')
    s += f"; @launch grid=({grid[0]},{grid[1]},{grid[2]}) block=({block[0]},{block[1]},{block[2]}) lds={lds}\n"
    s += '.amdgcn_target "amdgcn-amd-amdhsa--gfx950"\n.text\n'
    s += f".globl {kname}\n.p2align 8\n.type {kname},@function\n{kname}:\n"
    s += body
    s += ".section .rodata,\"a\"\n.p2align 6\n"
    s += f".amdhsa_kernel {kname}\n"
    s += f"  .amdhsa_next_free_vgpr {vgpr}\n  .amdhsa_next_free_sgpr {sgpr}\n  .amdhsa_accum_offset {accum}\n"
    s += "  .amdhsa_group_segment_fixed_size 0\n  .amdhsa_kernarg_size 96\n  .amdhsa_user_sgpr_count 2\n"
    s += "  .amdhsa_user_sgpr_kernarg_segment_ptr 1\n  .amdhsa_system_sgpr_workgroup_id_x 1\n"
    s += ".end_amdhsa_kernel\n"
    return s
```

```python
import sys, json, struct
from asmgen import *
import hazard

WS_EPOCH = 0x0
WS_QP    = 0x1000
WS_HP    = 0x22000
WS_FP    = 0x60000
WS_REG   = 0xA0000
WS_OP    = 0x100000
WS_ALT   = 0x200000
WS_STAMP = 0x1000000
K_LDS  = 0
WQ_LDS = 32768
F5_LDS = WQ_LDS
X_LDS  = 47104
GW_LDS = 49152
Q_LDS  = 50176
G_LDS  = 51200
MX_LDS = 51216
LS_LDS = 51248
PV_LDS = 51280
LDS_BYTES = 51328

LOG2E = 1.4426950408889634
def f2u(x): return struct.unpack('<I', struct.pack('<f', x))[0]

DEFAULTS = dict(probe=None, stamps=False, round_scores=True, spin=20000, b1=True, prio=True, W=5, npre=4, vmode='k6', placechk=True, h3_ack=True, h3_pipe=1, ffn_light=(6, 7), aux_lowprio=True, e_sc1=True, e_late=False, xnt=False,
                nt_wq=True, nt_k=True, nt_v=True, nt_wo=True, nt_w1=True, nt_w2=True,
                wo_at=['bq', 'qk', 'sm', 'pv'],
                o_delay='wo3',
                h_delay='w2_7', fast=True, aevery=16, rot='hkv+c', prewrite=False, lazy_b=False, W2=None)
STAMPS = ['start', 'karg', 'h2f', 'kdone', 'qpoll', 'qready', 'qk', 'vdone', 'pv', 'opub', 'h2', 'fpub', 'h3', 'end', 'a_wq', 'a_x']

class VM:
    def __init__(self, a): self.a = a; self.ops = []
    def issue(self, name): self.ops.append(name)
    def wait(self, name):
        i = max(k for k, n in enumerate(self.ops) if n == name)
        self.a(f's_waitcnt vmcnt({len(self.ops) - 1 - i})')
    def waitall(self): self.a('s_waitcnt vmcnt(0)')

def gen(opts):
    o = dict(DEFAULTS); o.update(opts)
    if o['probe']: o['stamps'] = True
    def NT(k): return ' nt' if o['nt_' + k] else ''
    a = Asm()
    SI = {n: i for i, n in enumerate(STAMPS)}
    def stamp(name):
        if o['stamps']:
            i = SI[name]
            a(f's_memrealtime s[{64+2*i}:{65+2*i}]')
    def note(slot, half, sreg):
        if o['stamps']: a(f's_mov_b32 s{64+2*slot+half}, s{sreg}')
    sX, sK, sV, sWQ, sWO, sW1, sW2, sGW, sOUT, sDBG, sWS = 4, 6, 8, 10, 12, 16, 18, 20, 22, 24, 26
    sDUM = 98
    sPV = 100
    sMK = 101
    sWSB = 14
    sHKV, sJ, sB, sC = 28, 29, 30, 31
    sT0, sT1, sT2, sT3 = 32, 33, 34, 35
    sWO2 = 36; sKM = 38; sOI = 39
    sSEL = 40; sCHA, sCHB = 44, 45
    sSPIN = 46; sT4 = 47
    sKB, sVB = 48, 50
    sRG, sCT, sU = 52, 53, 54
    sH3 = 55
    sMSK = 56
    sC2 = 59; sF1 = 58; sROT = 63; sFX = 57
    light = list(o['ffn_light']); heavy = [x for x in range(8) if x not in light]
    FXPERM = 0
    for i_, x_ in enumerate(heavy + light): FXPERM |= i_ << (4*x_)
    sEXW = 60
    sHASF2 = 62
    WS = f's[{sWS}:{sWS+1}]'; WSB = f's[{sWSB}:{sWSB+1}]'
    vL, vN, vKS, vT = 0, 1, 2, 3

    def tag_insert(regs):
        for i, r in enumerate(regs):
            a(f'v_perm_b32 v{r}, v{r}, v{vT}, s{sSEL+i}')
    def chk(base, ca, cb, dst):
        return [f'v_perm_b32 v{ca}, v{base+1}, v{base}, s{sCHA}', f'v_perm_b32 v{cb}, v{base+3}, v{base+2}, s{sCHB}',
                f'v_bitop3_b32 v{dst}, v{ca}, v{cb}, v{vT} bitop3:0x56']
    def tag_check(base, tmp, dst):
        for ln in chk(base, tmp, tmp+1, dst): a(ln)
    def untag(regs):
        for r in regs: a(f'v_and_b32 v{r}, s{sMK}, v{r}')
    def allreduce_rows(op, r, t):
        a(f'v_mov_b32 v{t}, v{r}')
        a(f'v_permlane16_swap_b32 v{t}, v{r}')
        a(f'{op} v{r}, v{r}, v{t}')
        a(f'v_mov_b32 v{t}, v{r}')
        a(f'v_permlane32_swap_b32 v{t}, v{r}')
        a(f'{op} v{r}, v{r}, v{t}')
    def masks(dst, t):
        a(f'''
    v_and_b32 v{t}, 1, v{vL}
    v_cmp_eq_u32 vcc, 1, v{t}
    v_mov_b32 v{t+1}, 0xffff
    v_mov_b32 v{t+2}, 0xffff0000
    v_cndmask_b32 v{t+1}, v{t+1}, v{t+2}, vcc
    v_bfe_u32 v{t+2}, v{vL}, 1, 2
    ''')
        for k in range(4):
            a(f'''
    v_cmp_eq_u32 vcc, {k}, v{t+2}
    v_cndmask_b32 v{dst+k}, 0, v{t+1}, vcc
    ''')
    def publish_b(vaddr, data):
        a(f'global_store_dwordx4 v{vaddr}, v[{data}:{data+3}], {WSB} sc1')
    def publish(vm, vaddr, data, name, lazy=False):
        if o['fast']:
            if o.get('noa'):
                a(f'global_store_dwordx4 v{vaddr}, v[{data}:{data+3}], {WS} offset:0' .replace(WS, f's[{sDUM}:{sDUM+1}]'))
            else:
                a(f'global_store_dwordx4 v{vaddr}, v[{data}:{data+3}], {WS}')
            vm.issue(name + '_a')
        if lazy and o['fast'] and o['placechk']:
            vm.ops[-1] = name
            a(f's_cmp_lg_u32 s{sPV}, 0\ns_cbranch_scc1 L_skipb_{name}')
            a(f'global_store_dwordx4 v{vaddr}, v[{data}:{data+3}], {WSB} sc1')
            a(f'L_skipb_{name}:')
            return
        if lazy and o['fast'] and o['lazy_b']:
            vm.ops[-1] = name
            return
        if o.get('nob'):
            vm.ops[-1] = name
            return
        a(f'global_store_dwordx4 v{vaddr}, v[{data}:{data+3}], {WSB} sc1'); vm.issue(name)
    def retry_loop(label, loads, checks, bad, okl, own_b=None):
        a(f'''
{label}:
    s_sub_u32 s{sSPIN}, s{sSPIN}, 1
    s_cmp_eq_u32 s{sSPIN}, 0
    s_cbranch_scc1 {okl}
    s_mov_b64 exec, vcc
    ''')
        if o['fast']:
            a(f'''
    s_and_b32 s{sT0}, s{sSPIN}, {o['aevery']-1}
    s_cmp_eq_u32 s{sT0}, 0
    s_cbranch_scc1 {label}_b
    ''')
            loads(WS)
            a(f's_branch {label}_c\n{label}_b:')
            if own_b and o['lazy_b']:
                a('s_mov_b64 exec, -1')
                publish_b(*own_b)
                a('s_mov_b64 exec, vcc')
        loads(WSB)
        a(f'{label}_c:\ns_waitcnt vmcnt(0)')
        checks()
        a(f'''
    v_cmp_ne_u32 vcc, 0, v{bad}
    s_cbranch_vccnz {label}
    ''')
    FIRST = WS if o['fast'] else WSB

    stamp('start')
    a(f'''
    s_cmp_ge_u32 s2, 256
    s_cbranch_scc1 L_end
    s_load_dwordx16 s[4:19], s[0:1], 0
    s_load_dwordx8 s[20:27], s[0:1], 64
    v_lshrrev_b32 v4, 6, v0
    v_and_b32 v{vL}, 63, v0
    v_readfirstlane_b32 s3, v4
    v_and_b32 v{vN}, 15, v{vL}
    v_lshrrev_b32 v{vKS}, 4, v{vL}
    s_and_b32 s{sHKV}, s2, 7
    s_lshr_b32 s{sJ}, s2, 3
    s_lshr_b32 s{sB}, s{sJ}, 4
    s_and_b32 s{sC}, s{sJ}, 15
    s_lshr_b32 s{sRG}, s{sJ}, 2
    s_and_b32 s{sCT}, s{sJ}, 3
    s_mov_b32 s{sSEL}, 0x07060500
    s_mov_b32 s{sSEL+1}, 0x07060501
    s_mov_b32 s{sSEL+2}, 0x07060502
    s_mov_b32 s{sSEL+3}, 0x07060503
    s_mov_b32 s{sCHA}, 0x0c0c0400
    s_mov_b32 s{sCHB}, 0x04000c0c
    s_mov_b32 s{sMK}, 0xffffff00
    s_mov_b32 s{sSPIN}, {o['spin']}
    s_cmp_eq_u32 s{sCT}, 3
    s_cselect_b32 s{sEXW}, 7, 15
    s_cmp_eq_u32 s3, 4
    s_cbranch_scc1 L_aux
    ''')

    vm = VM(a)
    vM = 4
    vVoff, vWoff, vQrd, vKrd, vQpoll, vQw = 8, 9, 10, 11, 12, 13
    vOw, vOr, vOP, vAd, vFw, vFr, vFP, vH3, vOut = 14, 15, 16, 17, 18, 19, 20, 21, 22
    vV = 24
    vWO = 56
    vKop = 72
    vQop = 104
    vPA = 72
    vAcc = 88
    vO = 96
    vS = 136
    vTmp = 140
    vMXa, vGf = 160, 161
    vQpoll2 = 162; vP2 = 164
    NV = 168
    vKoff = vQop
    a(f'''
    v_lshrrev_b32 v{vTmp}, 5, v{vL}                 ; hi
    v_and_b32 v{vTmp+1}, 31, v{vL}                  ; u
    v_xor_b32 v{vTmp+2}, v{vTmp+1}, v{vTmp}
    v_lshlrev_b32 v{vTmp+2}, 4, v{vTmp+2}
    v_lshl_add_u32 v{vKoff}, v{vTmp}, 9, v{vTmp+2}
    v_lshlrev_b32 v{vTmp+3}, 4, v{vN}               ; n*16
    v_lshl_add_u32 v{vVoff}, v{vKS}, 11, v{vTmp+3}
    s_lshl_b32 s{sT0}, s3, 13                       ; w*8192
    s_lshl_b32 s{sT1}, s{sB}, 3
    s_add_u32 s{sT1}, s{sT1}, s{sHKV}
    s_lshl_b32 s{sT1}, s{sT1}, 21
    s_add_u32 s{sT1}, s{sT1}, 1572864
    s_lshl_b32 s{sT2}, s{sC}, 15
    s_add_u32 s{sT1}, s{sT1}, s{sT2}
    s_add_u32 s{sT1}, s{sT1}, s{sT0}
    s_mov_b32 s{sC2}, {hex(f2u(LOG2E/16.0))}
    v_mov_b32 v{vTmp+4}, 0
    ''')
    a({'hkv+c': f's_add_u32 s{sROT}, s{sHKV}, s{sC}\ns_and_b32 s{sROT}, s{sROT}, 7',
       'c': f's_and_b32 s{sROT}, s{sC}, 7',
       'hkvb': f's_lshl_b32 s{sROT}, s{sB}, 2\ns_xor_b32 s{sROT}, s{sROT}, s{sHKV}',
       None: f's_mov_b32 s{sROT}, 0'}[o['rot']])
    a(f'''
    s_mul_i32 s{sT2}, s{sROT}, {(1 << 10) | (1 << 5)}
    v_xor_b32 v{vKoff}, s{sT2}, v{vKoff}
    s_lshl_b32 s{sT2}, s{sROT}, 8
    v_xor_b32 v{vVoff}, s{sT2}, v{vVoff}
    s_lshl_b32 s{sT2}, s{sROT}, 10
    s_xor_b32 s{sKM}, s{sT0}, s{sT2}
    s_waitcnt lgkmcnt(0)
    ''')
    stamp('karg')
    ESC = ' sc1' if o['e_sc1'] else ''
    if not o['e_late']: a(f'global_load_dword v{vT}, v{vTmp+4}, {WS}{ESC}')
    a(f'''
    s_add_u32 s{sKB}, s{sK}, s{sT1}
    s_addc_u32 s{sKB+1}, s{sK+1}, 0
    s_add_u32 s{sVB}, s{sV}, s{sT1}
    s_addc_u32 s{sVB+1}, s{sV+1}, 0
    s_add_u32 s{sWSB}, s{sWS}, {WS_ALT}
    s_addc_u32 s{sWSB+1}, s{sWS+1}, 0
    ''')
    if o.get('noa'): a(f's_add_u32 s{sDUM}, s{sWS}, 0x800000\ns_addc_u32 s{sDUM+1}, s{sWS+1}, 0')
    if not o['e_late']: vm.issue('E')
    if o['b1']:
        a('s_barrier')
    W = o['W']
    def kload(m):
        t = vTmp + 11 + (m & 1)
        a(f's_xor_b32 m0, s{sKM}, {m << 10}')
        a(f'v_xor_b32 v{t}, {(m << 10) | (m << 5)}, v{vKoff}')
        a(f'global_load_lds_dwordx4 v{t}, s[{sKB}:{sKB+1}]{NT("k")}')
        vm.issue(f'K{m}')
    def vload(i):
        t = vTmp + 11 + (i & 1)
        a(f'v_xor_b32 v{t}, {i << 8}, v{vVoff}')
        a(f'global_load_dwordx4 v[{vV+4*i}:{vV+4*i+3}], v{t}, s[{sVB}:{sVB+1}]{NT("v")}')
        vm.issue(f'V{i}')
    vP = vTmp
    npre = o['npre']
    elems = [('K', m) for m in range(8)] + [('V', i) for i in range(npre)] + [('P', 0)] + [('V', i) for i in range(npre, 8)]
    def issue(e):
        k, i = e
        if k == 'K': kload(i)
        elif k == 'V': vload(i)
        else:
            a(f'global_load_dwordx4 v[{vP}:{vP+3}], v{vQpoll}, {FIRST} sc1'); vm.issue('P0')
            a(f'global_load_dwordx4 v[{vP2}:{vP2+3}], v{vQpoll2}, {FIRST} sc1'); vm.issue('P')
    for n_, e in enumerate(elems[:W]):
        issue(e)
        if o['e_late'] and n_ == 0:
            a(f'global_load_dword v{vT}, v{vTmp+4}, {WS}{ESC}'); vm.issue('E')
    t5, t6, t7 = vTmp+5, vTmp+6, vTmp+7
    a(f'''
    s_movk_i32 s{sT4}, 896
    v_and_b32 v{vWoff}, s{sEXW}, v{vN}
    v_lshlrev_b32 v{vWoff}, 4, v{vWoff}
    v_mad_u32_u24 v{vWoff}, v{vKS}, s{sT4}, v{vWoff}
    s_lshr_b32 s{sT1}, s{sROT}, 1
    v_xor_b32 v{t6}, s{sT1}, v{vN}
    v_xor_b32 v{t5}, v{vKS}, v{t6}
    v_lshlrev_b32 v{t5}, 4, v{t5}
    v_lshl_add_u32 v{vKrd}, v{t6}, 9, v{t5}
    v_add_u32 v{vKrd}, s{sT0}, v{vKrd}
    v_lshrrev_b32 v{t5}, 3, v{vN}
    v_lshlrev_b32 v{t6}, 9, v{t5}
    v_lshl_add_u32 v{vQrd}, v{vKS}, 4, v{t6}
    s_lshl_b32 s{sT1}, s3, 2
    v_lshlrev_b32 v{vMXa}, 4, v{t5}
    v_add_u32 v{vMXa}, s{sT1}, v{vMXa}              ; head*16 + w*4
    ''')
    masks(vM, t6)
    a(f'''
    ; q poll address: QP + hkv*16384 + rp*4096 + b*2048 + (32w + u)*16     rp = l>>5 (+2 for the second load), u = l&31
    s_lshl_b32 s{sT1}, s{sHKV}, 14
    s_lshl_b32 s{sT2}, s{sB}, 11
    s_add_u32 s{sT1}, s{sT1}, s{sT2}
    s_lshl_b32 s{sT2}, s3, 9
    s_add_u32 s{sT1}, s{sT1}, s{sT2}
    s_add_u32 s{sT1}, s{sT1}, {WS_QP}
    v_lshlrev_b32 v{vQpoll}, 12, v{vTmp}
    v_lshl_add_u32 v{vQpoll}, v{vTmp+1}, 4, v{vQpoll}
    v_add_u32 v{vQpoll}, s{sT1}, v{vQpoll}
    v_add_u32 v{vQpoll2}, 8192, v{vQpoll}
    s_lshl_b32 s{sT1}, s3, 8
    v_lshlrev_b32 v{vQw}, 3, v{vTmp+1}
    v_lshl_add_u32 v{vQw}, v{vTmp}, 2, v{vQw}
    v_add_u32 v{vQw}, s{sT1}, v{vQw}
    v_and_b32 v{t6}, 1, v{vKS}
    v_lshlrev_b32 v{t6}, 4, v{t6}
    v_lshl_add_u32 v{t6}, v{vN}, 5, v{t6}
    v_add_u32 v{t6}, s{sT0}, v{t6}
    v_lshl_add_u32 v{vOw}, v{vTmp}, 10, v{t6}
    s_and_b32 s{sT1}, s{sROT}, 1
    s_lshl_b32 s{sT1}, s{sT1}, 9
    v_xor_b32 v{vOw}, s{sT1}, v{vOw}
    v_lshl_add_u32 v{vFw}, v{vTmp}, 9, v{t6}
    ; publish role of wave w: h = w>>1, dblk = 8*(w&1) + (l>>3), slot = l&7
    s_lshr_b32 s{sT1}, s3, 1                        ; h
    s_and_b32 s{sT2}, s3, 1
    v_lshrrev_b32 v{t6}, 3, v{vL}                   ; l>>3
    s_lshl_b32 s{sT3}, s{sT2}, 3
    v_add_u32 v{t6}, s{sT3}, v{t6}                  ; dblk
    v_and_b32 v{t7}, 3, v{vL}                       ; slot&3
    v_lshlrev_b32 v{vOr}, 6, v{t6}
    v_lshl_add_u32 v{vOr}, v{t7}, 4, v{vOr}
    s_lshl_b32 s{sT3}, s{sT1}, 10
    v_add_u32 v{vOr}, s{sT3}, v{vOr}
    s_lshl_b32 s{sT3}, s{sHKV}, 1
    s_add_u32 s{sT3}, s{sT3}, s{sT1}
    s_lshl_b32 s{sT3}, s{sT3}, 16
    s_lshl_b32 s{sT4}, s{sB}, 11
    s_add_u32 s{sT3}, s{sT3}, s{sT4}
    s_lshl_b32 s{sT4}, s{sC}, 7
    s_add_u32 s{sT3}, s{sT3}, s{sT4}
    s_add_u32 s{sT3}, s{sT3}, {WS_OP}
    v_lshlrev_b32 v{vOP}, 12, v{t6}
    v_and_b32 v{t7}, 7, v{vL}                       ; slot
    v_lshl_add_u32 v{vOP}, v{t7}, 4, v{vOP}
    v_add_u32 v{vOP}, s{sT3}, v{vOP}
    ; H2 address
    s_lshr_b32 s{sT1}, s{sRG}, 2
    s_lshl_b32 s{sT2}, s{sHKV}, 1
    s_add_u32 s{sT1}, s{sT1}, s{sT2}
    s_and_b32 s{sT2}, s{sRG}, 3
    s_lshl_b32 s{sT2}, s{sT2}, 2
    s_add_u32 s{sT2}, s{sT2}, s3
    s_lshl_b32 s{sT3}, s{sT1}, 16
    s_lshl_b32 s{sT2}, s{sT2}, 12
    s_add_u32 s{sT3}, s{sT3}, s{sT2}
    s_add_u32 s{sT3}, s{sT3}, {WS_OP}
    v_lshlrev_b32 v{vAd}, 11, v{t5}
    v_lshl_add_u32 v{vAd}, v{vKS}, 9, v{vAd}
    v_lshl_add_u32 v{vAd}, v{t7}, 4, v{vAd}
    v_add_u32 v{vAd}, s{sT3}, v{vAd}
    v_lshlrev_b32 v{vFr}, 9, v{vTmp}
    v_lshl_add_u32 v{vFr}, v{vTmp+1}, 4, v{vFr}
    s_lshl_b32 s{sT1}, s{sHKV}, 3
    s_add_u32 s{sT1}, s{sT1}, s{sRG}
    s_lshl_b32 s{sT1}, s{sT1}, 12
    s_lshl_b32 s{sT2}, s{sCT}, 10
    s_add_u32 s{sT1}, s{sT1}, s{sT2}
    s_add_u32 s{sT1}, s{sT1}, {WS_FP}
    v_lshlrev_b32 v{vFP}, 4, v{vL}
    v_add_u32 v{vFP}, s{sT1}, v{vFP}
    ; final-stage role: line lam = (j>>3)*8 + xcd (valid < 28), member = j&7 ; b3 = lam/14, r = lam%14 ; ct3 = r>>2 (r<12) or 3 ; m = r&3 or r-12
    s_lshr_b32 s{sT1}, s{sJ}, 3
    s_lshl_b32 s{sT1}, s{sT1}, 3
    s_add_u32 s{sH3}, s{sT1}, s{sHKV}               ; lam
    s_cmp_ge_u32 s{sH3}, 14
    s_cselect_b32 s{sT2}, 1, 0                      ; b3
    s_mul_i32 s{sT3}, s{sT2}, 14
    s_sub_u32 s{sT3}, s{sH3}, s{sT3}
    s_lshl_b32 s{sT4}, s{sT3}, 3
    s_and_b32 s{sT1}, s{sJ}, 7
    s_add_u32 s{sT4}, s{sT4}, s{sT1}
    s_lshr_b32 s{sT1}, s{sT4}, 5                    ; ct3
    s_lshl_b32 s{sT1}, s{sT1}, 10
    s_and_b32 s{sT3}, s{sT4}, 31
    s_lshl_b32 s{sT3}, s{sT3}, 4
    s_add_u32 s{sT1}, s{sT1}, s{sT3}
    s_lshl_b32 s{sT3}, s{sT2}, 9
    s_add_u32 s{sT1}, s{sT1}, s{sT3}
    s_add_u32 s{sT1}, s{sT1}, {WS_FP}
    v_lshlrev_b32 v{vH3}, 12, v{vL}
    v_add_u32 v{vH3}, s{sT1}, v{vH3}
    s_mul_i32 s{sT2}, s{sT2}, 896
    s_lshl_b32 s{sT4}, s{sT4}, 3
    s_add_u32 s{sT2}, s{sT2}, s{sT4}
    v_lshlrev_b32 v{vOut}, 1, v{vKS}
    v_add_u32 v{vOut}, s{sT2}, v{vOut}
    s_lshl_b32 s{sT1}, s{sHKV}, 9
    s_lshl_b32 s{sT2}, s{sRG}, 6
    s_add_u32 s{sT1}, s{sT1}, s{sT2}
    s_lshl_b32 s{sT2}, s3, 4
    s_add_u32 s{sT1}, s{sT1}, s{sT2}
    s_mul_i32 s{sT1}, s{sT1}, 896
    s_lshl_b32 s{sT2}, s{sCT}, 8
    s_add_u32 s{sT1}, s{sT1}, s{sT2}
    s_add_u32 s{sWO}, s{sWO}, s{sT1}
    s_addc_u32 s{sWO+1}, s{sWO+1}, 0
    s_add_u32 s{sWO2}, s{sWO}, 7168
    s_addc_u32 s{sWO2+1}, s{sWO+1}, 0
    ''')
    tagdone = [False]
    def kop_reads():
        for s in range(8):
            t = vTmp + 4 + (s & 1)
            a(f'v_xor_b32 v{t}, {s << 6}, v{vKrd}')
            a(f'ds_read_b128 v[{vKop+4*s}:{vKop+4*s+3}], v{t}')
    kdone = False
    idxP = elems.index(('P', 0))
    last_pre = min(len(elems) - 1, max(idxP + W - 1, 7 + W))
    if o['vmode'] == 'k6': last_pre = len(elems) - 1
    for i in range(W, last_pre + 1):
        if o['W2'] and i > idxP + 1:
            Wi = o['W2']
            if i - Wi >= 0 and Wi <= i: a(f's_waitcnt vmcnt({min(Wi - 1, 63)})')
        else:
            a(f's_waitcnt vmcnt({W-1})')
        if not tagdone[0]:
            a(f'v_add_u32 v{vT}, 0x01010101, v{vT}'); tagdone[0] = True
            issue(elems[i])
            if o['fast'] and o['prewrite']:
                for k in range(4): a(f'v_xor_b32 v{vO+k}, 0x80808080, v{vT}')
                for k in range(4): a(f'v_perm_b32 v{vO+k}, v{vO+k}, v{vO+k}, s{sSEL+k}')
                a(f'global_store_dwordx4 v{vOP}, v[{vO}:{vO+3}], {WS}'); vm.issue('pw')
            continue
        issue(elems[i])
        if i - W >= 7 and not kdone:
            if o['W2']: vm.wait('K7')
            stamp('kdone'); kop_reads(); kdone = True
    rest = elems[last_pre + 1:]
    assert kdone
    vm.wait('P')
    if o['vmode'] == 'k7b':
        for e in rest: issue(e)
        rest = []
    a('L_h1_chk:')
    def h1checks():
        tag_check(vP, vTmp+4, vTmp+6)
        tag_check(vP2, vTmp+4, vTmp+7)
        a(f'v_or_b32 v{vTmp+6}, v{vTmp+6}, v{vTmp+7}')
    def h1loads(base):
        a(f'global_load_dwordx4 v[{vP}:{vP+3}], v{vQpoll}, {base} sc1')
        a(f'global_load_dwordx4 v[{vP2}:{vP2+3}], v{vQpoll2}, {base} sc1')
    h1checks()
    a(f'''
    v_cmp_ne_u32 vcc, 0, v{vTmp+6}
    s_cbranch_vccz L_h1_ok
    ''')
    retry_loop('L_h1_r', h1loads, h1checks, vTmp+6, 'L_h1_ok')
    a('L_h1_ok:\ns_mov_b64 exec, -1')
    stamp('qpoll'); note(14, 0, sSPIN)
    untag([vP, vP+1, vP+2, vP+3, vP2, vP2+1, vP2+2, vP2+3])
    a(f'''
    v_pk_add_f32 v[{vP}:{vP+1}], v[{vP}:{vP+1}], v[{vP2}:{vP2+1}]
    v_pk_add_f32 v[{vP+2}:{vP+3}], v[{vP+2}:{vP+3}], v[{vP2+2}:{vP2+3}]
    v_permlane32_swap_b32 v{vP}, v{vP+2}
    v_permlane32_swap_b32 v{vP+1}, v{vP+3}
    v_add_f32 v{vP}, v{vP}, v{vP+2}
    v_add_f32 v{vP+1}, v{vP+1}, v{vP+3}
    v_cvt_pk_bf16_f32 v{vP}, v{vP}, v{vP+1}
    ds_write_b32 v{vQw}, v{vP} offset:{Q_LDS}
    ''')
    for e in rest: issue(e)
    a('s_waitcnt lgkmcnt(0)\ns_barrier')
    stamp('qready')
    wo_done = [False]*4
    def wo_at(where):
        for g in range(4):
            if o['wo_at'][g] == where and not wo_done[g]:
                base = sWO if g < 2 else sWO2
                off = ' offset:3584' if g & 1 else ''
                a(f'global_load_dwordx4 v[{vWO+4*g}:{vWO+4*g+3}], v{vWoff}, s[{base}:{base+1}]{off}{NT("wo")}')
                vm.issue(f'wo{g}'); wo_done[g] = True
    for s in range(8):
        a(f'ds_read_b128 v[{vQop+4*s}:{vQop+4*s+3}], v{vQrd} offset:{Q_LDS + s*64}')
    wo_at('bq')
    for s in range(8):
        if not o['stamps']: a(f's_waitcnt lgkmcnt({7 - s})')
        elif s == 0: a('s_waitcnt lgkmcnt(0)')
        c = '0' if s == 0 else f'v[{vS}:{vS+3}]'
        a(f'v_mfma_f32_16x16x32_bf16 v[{vS}:{vS+3}], v[{vKop+4*s}:{vKop+4*s+3}], v[{vQop+4*s}:{vQop+4*s+3}], {c}')
    wo_at('qk')
    s0, s1, s2_, s3_ = vS, vS+1, vS+2, vS+3
    if o['round_scores']:
        a(f'''
    v_cvt_pk_bf16_f32 v{vTmp}, v{s0}, v{s1}
    v_cvt_pk_bf16_f32 v{vTmp+1}, v{s2_}, v{s3_}
    v_lshlrev_b32 v{s0}, 16, v{vTmp}
    v_and_b32 v{s1}, 0xffff0000, v{vTmp}
    v_lshlrev_b32 v{s2_}, 16, v{vTmp+1}
    v_and_b32 v{s3_}, 0xffff0000, v{vTmp+1}
    ''')
    vMx, vLs = vTmp+2, vTmp+3
    a(f'''
    v_max3_f32 v{vMx}, v{s0}, v{s1}, v{s2_}
    v_max_f32 v{vMx}, v{vMx}, v{s3_}
    ''')
    allreduce_rows('v_max_f32', vMx, vTmp)
    wo_at('b3')
    a(f'''
    v_mul_f32 v{vMx}, s{sC2}, v{vMx}
    v_fma_f32 v{s0}, v{s0}, s{sC2}, -v{vMx}
    v_fma_f32 v{s1}, v{s1}, s{sC2}, -v{vMx}
    v_fma_f32 v{s2_}, v{s2_}, s{sC2}, -v{vMx}
    v_fma_f32 v{s3_}, v{s3_}, s{sC2}, -v{vMx}
    v_exp_f32 v{s0}, v{s0}
    v_exp_f32 v{s1}, v{s1}
    v_exp_f32 v{s2_}, v{s2_}
    v_exp_f32 v{s3_}, v{s3_}
    ''')
    for r in range(4):
        a(f'v_cvt_pk_bf16_f32 v{vTmp+4+r}, v{vS+r}, v{vS+r}')
    def pa(r):
        for k in range(4):
            a(f'v_and_b32 v{vPA+4*r+k}, v{vTmp+4+r}, v{vM+k}')
    def pv(r):
        for h in range(2):
            c = '0' if r == 0 else f'v[{vAcc+4*h}:{vAcc+4*h+3}]'
            i = r*2+h
            a(f'v_mfma_f32_16x16x32_bf16 v[{vAcc+4*h}:{vAcc+4*h+3}], v[{vPA+4*r}:{vPA+4*r+3}], v[{vV+4*i}:{vV+4*i+3}], {c}')
    wo_at('sm')
    pa(0)
    stamp('qk')
    for r in range(4):
        vm.wait(f'V{2*r+1}')
        if r == 3: stamp('vdone')
        pv(r)
        if r < 3: pa(r + 1)
        if r == 0:
            a(f'''
    v_add_f32 v{vLs}, v{s0}, v{s1}
    v_add_f32 v{vTmp+8}, v{s2_}, v{s3_}
    v_add_f32 v{vLs}, v{vLs}, v{vTmp+8}
    ''')
        if r == 1:
            allreduce_rows('v_add_f32', vLs, vTmp)
        if r == 2:
            a(f'''
    s_mov_b32 exec_lo, 0x101
    s_mov_b32 exec_hi, 0
    ds_write_b32 v{vMXa}, v{vMx} offset:{MX_LDS}
    ds_write_b32 v{vMXa}, v{vLs} offset:{LS_LDS}
    s_mov_b64 exec, -1
    ''')
    wo_at('pv')
    MS = f's[{sMSK}:{sMSK+1}]'
    a(f'''
    v_xor_b32 v{vTmp+11}, 512, v{vOw}
    s_lshr_b32 s{sT0}, s3, 1
    s_lshl_b32 s{sT0}, s{sT0}, 4
    v_mov_b32 v{vTmp+9}, s{sT0}                     ; h*16
    v_lshrrev_b32 v{vTmp+8}, 3, v{vN}
    v_lshlrev_b32 v{vTmp+8}, 2, v{vTmp+8}
    ds_read_b32 v{vGf}, v{vTmp+8} offset:{G_LDS}
    v_and_b32 v{vTmp+10}, 4, v{vL}
    v_cmp_ne_u32 {MS}, 0, v{vTmp+10}                ; slot >= 4
    ds_write_b128 v{vOw}, v[{vAcc}:{vAcc+3}]
    ds_write_b128 v{vTmp+11}, v[{vAcc+4}:{vAcc+7}]
    s_waitcnt lgkmcnt(0)
    s_barrier
    ''')
    stamp('pv')
    vMw, vLw = vTmp, vTmp+4
    vFw4 = [vTmp+12, vTmp+14, vTmp+16, vTmp+18]
    a(f'''
    ds_read_b128 v[{vMw}:{vMw+3}], v{vTmp+9} offset:{MX_LDS}
    ds_read_b128 v[{vLw}:{vLw+3}], v{vTmp+9} offset:{LS_LDS}
    ''')
    if o['placechk']:
        a(f'v_mov_b32 v{vTmp+10}, 0\nds_read_b32 v{vTmp+10}, v{vTmp+10} offset:{PV_LDS}')
    for ww in range(4):
        a(f'ds_read_b128 v[{vO+4*ww}:{vO+4*ww+3}], v{vOr} offset:{8192*ww}')
    a('s_waitcnt lgkmcnt(4)' if not o['stamps'] else 's_waitcnt lgkmcnt(0)')
    if o['placechk']: a(f'v_readfirstlane_b32 s{sPV}, v{vTmp+10}')
    a(f'''
    v_max3_f32 v{vTmp+8}, v{vMw}, v{vMw+1}, v{vMw+2}
    v_max_f32 v{vTmp+8}, v{vTmp+8}, v{vMw+3}        ; M
    ''')
    for ww in range(4): a(f'v_sub_f32 v{vFw4[ww]}, v{vMw+ww}, v{vTmp+8}')
    for ww in range(4): a(f'v_exp_f32 v{vFw4[ww]}, v{vFw4[ww]}')
    a(f'v_mul_f32 v{vTmp+9}, v{vFw4[0]}, v{vLw}')
    for ww in range(1, 4): a(f'v_fmac_f32 v{vTmp+9}, v{vFw4[ww]}, v{vLw+ww}')
    a('s_waitcnt lgkmcnt(0)')
    a(f'v_pk_mul_f32 v[{vO}:{vO+1}], v[{vO}:{vO+1}], v[{vFw4[0]}:{vFw4[0]+1}] op_sel_hi:[1,0]')
    a(f'v_pk_mul_f32 v[{vO+2}:{vO+3}], v[{vO+2}:{vO+3}], v[{vFw4[0]}:{vFw4[0]+1}] op_sel_hi:[1,0]')
    for ww in range(1, 4):
        a(f'v_pk_fma_f32 v[{vO}:{vO+1}], v[{vO+4*ww}:{vO+4*ww+1}], v[{vFw4[ww]}:{vFw4[ww]+1}], v[{vO}:{vO+1}] op_sel_hi:[1,0,1]')
        a(f'v_pk_fma_f32 v[{vO+2}:{vO+3}], v[{vO+4*ww+2}:{vO+4*ww+3}], v[{vFw4[ww]}:{vFw4[ww]+1}], v[{vO+2}:{vO+3}] op_sel_hi:[1,0,1]')
    a(f'''
    v_cndmask_b32 v{vO}, v{vO}, v{vTmp+8}, {MS}
    v_cndmask_b32 v{vO+1}, v{vO+1}, v{vTmp+9}, {MS}
    v_cndmask_b32 v{vO+2}, v{vO+2}, v{vTmp+8}, {MS}
    v_cndmask_b32 v{vO+3}, v{vO+3}, v{vTmp+9}, {MS}
    ''')
    tag_insert([vO, vO+1, vO+2, vO+3])
    publish(vm, vOP, vO, 'opub', lazy=True)
    stamp('opub')
    wo_at('pub')
    if o['o_delay']: vm.wait(o['o_delay'])
    vD = vV
    def h2loads(base):
        for k in range(4):
            a(f'global_load_dwordx4 v[{vD+4*k}:{vD+4*k+3}], v{vAd}, {base} offset:{128*k} sc1')
    h2loads(FIRST)
    for k in range(4): vm.issue(f'D{k}')
    wo_at('poll')
    vm.wait('D3')
    stamp('h2f')
    a('L_h2_comp:')
    t = vTmp
    vMk = vV+16
    vWk = [vV+20, vV+22, vV+24, vV+26]
    vMxx, vLp, vX, tt = t, t+1, t+2, t+6
    vBad = t+7
    c = [t+8, t+9, t+10, t+11]; ca, cb = t+12, t+13
    fill = []
    for k in range(4): fill += chk(vD+4*k, ca, cb, c[k])
    fill += [f'v_or3_b32 v{vBad}, v{c[0]}, v{c[1]}, v{c[2]}', f'v_or_b32 v{vBad}, v{vBad}, v{c[3]}']
    def F(n):
        for _ in range(n):
            if fill: a(fill.pop(0))
    for k in range(4):
        a(f'v_mov_b32_dpp v{vMk+k}, v{vD+4*k} row_shl:4 row_mask:0xf bank_mask:0xf bound_ctrl:0')
    untag([vMk, vMk+1, vMk+2, vMk+3])
    a(f'v_max3_f32 v{vMxx}, v{vMk}, v{vMk+1}, v{vMk+2}')
    a(f'v_max_f32 v{vMxx}, v{vMxx}, v{vMk+3}')
    a(f'v_mov_b32 v{tt}, v{vMxx}')
    F(2)
    a(f'v_permlane16_swap_b32 v{vMxx}, v{tt}')
    a(f'v_max_f32 v{vMxx}, v{vMxx}, v{tt}')
    a(f'v_mov_b32 v{tt}, v{vMxx}')
    F(2)
    a(f'v_permlane32_swap_b32 v{vMxx}, v{tt}')
    a(f'v_max_f32 v{vMxx}, v{vMxx}, v{tt}')
    for k in range(4): a(f'v_sub_f32 v{vWk[k]}, v{vMk+k}, v{vMxx}')
    for k in range(4): a(f'v_exp_f32 v{vWk[k]}, v{vWk[k]}')
    F(32)
    a(f'''
    v_cmp_ne_u32 vcc, 0, v{vBad}
    s_cbranch_vccz L_h2_ok
    ''')
    def h2checks():
        for k in range(4):
            for ln in chk(vD+4*k, ca, cb, c[k]): a(ln)
        a(f'v_or3_b32 v{vBad}, v{c[0]}, v{c[1]}, v{c[2]}\nv_or_b32 v{vBad}, v{vBad}, v{c[3]}')
    retry_loop('L_h2_r', h2loads, h2checks, vBad, 'L_h2_ok', own_b=(vOP, vO))
    a('''
    s_mov_b64 exec, -1
    s_branch L_h2_comp
L_h2_ok:
    s_mov_b64 exec, -1
    ''')
    if o['fast'] and o['lazy_b']:
        publish_b(vOP, vO); vm.issue('opub_b')
    stamp('h2'); note(14, 1, sSPIN)
    untag([vD+4*k+1 for k in range(4)] + [vD+4*k+i for k in range(4) for i in (0, 2, 3)])
    a(f'v_mul_f32_dpp v{vLp}, v{vD+1}, v{vWk[0]} row_shl:4 row_mask:0xf bank_mask:0xf bound_ctrl:0')
    a(f'v_pk_mul_f32 v[{vX}:{vX+1}], v[{vD}:{vD+1}], v[{vWk[0]}:{vWk[0]+1}] op_sel_hi:[1,0]')
    a(f'v_pk_mul_f32 v[{vX+2}:{vX+3}], v[{vD+2}:{vD+3}], v[{vWk[0]}:{vWk[0]+1}] op_sel_hi:[1,0]')
    for k in range(1, 4):
        a(f'v_fmac_f32_dpp v{vLp}, v{vD+4*k+1}, v{vWk[k]} row_shl:4 row_mask:0xf bank_mask:0xf bound_ctrl:0')
        a(f'v_pk_fma_f32 v[{vX}:{vX+1}], v[{vD+4*k}:{vD+4*k+1}], v[{vWk[k]}:{vWk[k]+1}], v[{vX}:{vX+1}] op_sel_hi:[1,0,1]')
        a(f'v_pk_fma_f32 v[{vX+2}:{vX+3}], v[{vD+4*k+2}:{vD+4*k+3}], v[{vWk[k]}:{vWk[k]+1}], v[{vX+2}:{vX+3}] op_sel_hi:[1,0,1]')
    a(f'''
    v_mov_b32 v{tt}, v{vLp}
    v_permlane32_swap_b32 v{vX}, v{vX+2}
    v_permlane32_swap_b32 v{vX+1}, v{vX+3}
    v_permlane16_swap_b32 v{vLp}, v{tt}
    v_add_f32 v{vX}, v{vX}, v{vX+2}
    v_add_f32 v{vX+1}, v{vX+1}, v{vX+3}
    v_add_f32 v{vLp}, v{vLp}, v{tt}
    v_mov_b32 v{tt}, v{vLp}
    v_permlane16_swap_b32 v{vX}, v{vX+1}
    v_permlane32_swap_b32 v{vLp}, v{tt}
    v_add_f32 v{vX}, v{vX}, v{vX+1}
    v_add_f32 v{vLp}, v{vLp}, v{tt}
    v_rcp_f32 v{vLp}, v{vLp}
    v_mul_f32 v{vX}, v{vX}, v{vGf}
    v_mul_f32 v{vX}, v{vX}, v{vLp}
    v_cvt_pk_bf16_f32 v{vX}, v{vX}, v{vX}
    v_mov_b32_dpp v{vX}, v{vX} row_shr:4 row_mask:0xf bank_mask:0xa
    ''')
    vAo = vPA
    for g in range(4):
        for k in range(4):
            a(f'v_and_b32_dpp v{vAo+4*g+k}, v{vX}, v{vM+k} quad_perm:[{g},{g},{g},{g}] row_mask:0xf bank_mask:0xf')
    for g in range(4):
        vm.wait(f'wo{g}')
        cc = '0' if g == 0 else f'v[{vAcc}:{vAcc+3}]'
        a(f'v_mfma_f32_16x16x32_bf16 v[{vAcc}:{vAcc+3}], v[{vAo+4*g}:{vAo+4*g+3}], v[{vWO+4*g}:{vWO+4*g+3}], {cc}')
    a(f'''
    ds_write_b128 v{vFw}, v[{vAcc}:{vAcc+3}] offset:4096
    s_waitcnt lgkmcnt(0)
    s_barrier
    s_cmp_lg_u32 s3, 0
    s_cbranch_scc1 L_m_done
    ''')
    for ww in range(4):
        a(f'ds_read_b128 v[{vO+4*ww}:{vO+4*ww+3}], v{vFr} offset:{8192*ww+4096}')
    a(f'''
    ds_read_b128 v[{vO+16}:{vO+19}], v{vFr} offset:{F5_LDS}
    s_waitcnt lgkmcnt(0)
    v_pk_add_f32 v[{vO}:{vO+1}], v[{vO}:{vO+1}], v[{vO+4}:{vO+5}]
    v_pk_add_f32 v[{vO+2}:{vO+3}], v[{vO+2}:{vO+3}], v[{vO+6}:{vO+7}]
    v_pk_add_f32 v[{vO+8}:{vO+9}], v[{vO+8}:{vO+9}], v[{vO+12}:{vO+13}]
    v_pk_add_f32 v[{vO+10}:{vO+11}], v[{vO+10}:{vO+11}], v[{vO+14}:{vO+15}]
    v_pk_add_f32 v[{vO}:{vO+1}], v[{vO}:{vO+1}], v[{vO+16}:{vO+17}]
    v_pk_add_f32 v[{vO+2}:{vO+3}], v[{vO+2}:{vO+3}], v[{vO+18}:{vO+19}]
    v_pk_add_f32 v[{vO}:{vO+1}], v[{vO}:{vO+1}], v[{vO+8}:{vO+9}]
    v_pk_add_f32 v[{vO+2}:{vO+3}], v[{vO+2}:{vO+3}], v[{vO+10}:{vO+11}]
    ''')
    tag_insert([vO, vO+1, vO+2, vO+3])
    a(f'global_store_dwordx4 v{vFP}, v[{vO}:{vO+3}], {WS} sc1')
    stamp('fpub')
    vF = vV
    a(f'''
    s_cmp_ge_u32 s{sH3}, 28
    s_cbranch_scc1 L_m_done
    ''')
    if o['h3_ack']: a('s_waitcnt vmcnt(0)')
    if o['h3_pipe'] == 1:
        a(f'''
L_h3_loop:
    global_load_dwordx4 v[{vF}:{vF+3}], v{vH3}, {WS} sc1
    s_waitcnt vmcnt(0)
    ''')
        tag_check(vF, vTmp+2, vTmp+4)
        a(f'''
    v_cmp_ne_u32 vcc, 0, v{vTmp+4}
    s_cbranch_vccz L_h3_ok
    s_mov_b64 exec, vcc
    s_sub_u32 s{sSPIN}, s{sSPIN}, 1
    s_cmp_lg_u32 s{sSPIN}, 0
    s_cbranch_scc1 L_h3_loop
L_h3_ok:
    s_mov_b64 exec, -1
    ''')
    else:
        G = vF + 8
        a(f'''
    s_mov_b64 s[{sMSK}:{sMSK+1}], -1
    global_load_dwordx4 v[{vF}:{vF+3}], v{vH3}, {WS} sc1
L_h3_loop:
    global_load_dwordx4 v[{vF+4}:{vF+7}], v{vH3}, {WS} sc1
    s_waitcnt vmcnt(1)
    ''')
        def absorb(base):
            tag_check(base, vTmp+2, vTmp+4)
            a(f'''
    v_cmp_eq_u32 vcc, 0, v{vTmp+4}
    s_andn2_b64 s[{sMSK}:{sMSK+1}], s[{sMSK}:{sMSK+1}], vcc
    s_mov_b64 s[{sT0}:{sT0+1}], exec
    s_mov_b64 exec, vcc
    v_mov_b32 v{G}, v{base}
    v_mov_b32 v{G+1}, v{base+1}
    v_mov_b32 v{G+2}, v{base+2}
    v_mov_b32 v{G+3}, v{base+3}
    s_mov_b64 exec, s[{sT0}:{sT0+1}]
    ''')
        absorb(vF)
        a(f'''
    s_cmp_eq_u64 s[{sMSK}:{sMSK+1}], 0
    s_cbranch_scc1 L_h3_ok
    s_mov_b64 exec, s[{sMSK}:{sMSK+1}]
    global_load_dwordx4 v[{vF}:{vF+3}], v{vH3}, {WS} sc1
    s_waitcnt vmcnt(1)
    ''')
        absorb(vF+4)
        a(f'''
    s_cmp_eq_u64 s[{sMSK}:{sMSK+1}], 0
    s_cbranch_scc1 L_h3_ok
    s_mov_b64 exec, s[{sMSK}:{sMSK+1}]
    s_sub_u32 s{sSPIN}, s{sSPIN}, 1
    s_cmp_lg_u32 s{sSPIN}, 0
    s_cbranch_scc1 L_h3_loop
L_h3_ok:
    s_mov_b64 exec, -1
    ''')
        vF = G
    stamp('h3'); note(15, 0, sSPIN)
    untag([vF, vF+1, vF+2, vF+3])
    a(f'''
    v_permlane32_swap_b32 v{vF}, v{vF+2}
    v_permlane32_swap_b32 v{vF+1}, v{vF+3}
    v_add_f32 v{vF}, v{vF}, v{vF+2}
    v_add_f32 v{vF+1}, v{vF+1}, v{vF+3}
    v_permlane16_swap_b32 v{vF}, v{vF+1}
    v_add_f32 v{vF}, v{vF}, v{vF+1}
    v_add_f32_dpp v{vF}, v{vF}, v{vF} row_ror:8 row_mask:0xf bank_mask:0xf
    v_add_f32_dpp v{vF}, v{vF}, v{vF} row_ror:4 row_mask:0xf bank_mask:0xf
    v_add_f32_dpp v{vF}, v{vF}, v{vF} row_ror:2 row_mask:0xf bank_mask:0xf
    v_add_f32_dpp v{vF}, v{vF}, v{vF} row_ror:1 row_mask:0xf bank_mask:0xf
    v_cvt_pk_bf16_f32 v{vF}, v{vF}, v{vF}
    s_mov_b32 exec_lo, 0x00010001
    s_mov_b32 exec_hi, 0x00010001
    global_store_short v{vOut}, v{vF}, s[{sOUT}:{sOUT+1}]
    s_cmp_lg_u32 s2, 0
    s_cbranch_scc1 L_m_done
    v_mov_b32 v{vTmp}, 0
    s_mov_b64 exec, 1
    global_store_dword v{vTmp}, v{vT}, {WS} sc1
L_m_done:
    s_mov_b64 exec, -1
    ''')
    stamp('end')
    a('s_branch L_fin')

    a('L_aux:')
    vm = VM(a)
    if o['prio']:
        a('s_setprio 3')
    vA16, vWqE, vWqO, vXr = 4, 5, 6, 7
    vXB = 8
    vWA = 24
    vQD = 56
    vTr = 72
    vD0, vD1 = 68, 72
    vt = 76
    aM = 96
    aXA = 100
    aW1 = 128
    aW1off, aHP, aQP, aXd, aW2off, aAh, aFw = 156, 157, 158, 159, 160, 161, 162
    aRG = 164
    aW2 = 8
    aH = 40
    aA = 56
    a(f'''
    v_lshlrev_b32 v{vA16}, 4, v{vL}
    v_bfe_u32 v{vt}, v{vL}, 4, 1
    v_lshlrev_b32 v{vt}, 1, v{vt}
    v_and_b32 v{vt+1}, 7, v{vL}
    v_xor_b32 v{vt+1}, v{vt+1}, v{vt}
    v_lshlrev_b32 v{vt+1}, 4, v{vt+1}
    v_lshrrev_b32 v{vt}, 3, v{vL}
    v_lshl_add_u32 v{vWqE}, v{vt}, 13, v{vt+1}
    v_xor_b32 v{vWqO}, 64, v{vWqE}
    s_and_b32 s{sT0}, s{sJ}, 3                      ; rp
    s_lshr_b32 s{sT1}, s{sJ}, 2                     ; ct64
    s_mul_i32 s{sT2}, s{sT0}, {112*8192}
    s_lshl_b32 s{sT3}, s{sHKV}, 10
    s_add_u32 s{sT2}, s{sT2}, s{sT3}
    s_lshl_b32 s{sT3}, s{sT1}, 7
    s_add_u32 s{sT2}, s{sT2}, s{sT3}
    v_mov_b32 v{vt+2}, 0
    s_waitcnt lgkmcnt(0)
    ''')
    stamp('karg')
    a(f'''
    s_add_u32 s{sWQ}, s{sWQ}, s{sT2}
    s_addc_u32 s{sWQ+1}, s{sWQ+1}, 0
    {'' if o['e_late'] else f'global_load_dword v{vT}, v{vt+2}, {WS}{ESC}'}
    s_mov_b32 m0, {X_LDS}
    s_add_u32 s{sWSB}, s{sWS}, {WS_ALT}
    global_load_lds_dwordx4 v{vA16}, s[{sX}:{sX+1}]
    s_addc_u32 s{sWSB+1}, s{sWS+1}, 0
    s_mov_b32 exec_lo, -1
    s_mov_b32 exec_hi, 0x0000ffff
    global_load_lds_dwordx4 v{vA16}, s[{sX}:{sX+1}] offset:1024
    s_mov_b32 m0, {GW_LDS}
    s_mov_b32 exec_hi, 0x00ffffff
    global_load_lds_dwordx4 v{vA16}, s[{sGW}:{sGW+1}]
    s_mov_b64 exec, -1
    ''')
    if o.get('noa'): a(f's_add_u32 s{sDUM}, s{sWS}, 0x800000\ns_addc_u32 s{sDUM+1}, s{sWS+1}, 0')
    for n in (('x0', 'x1', 'gw') if o['e_late'] else ('E', 'x0', 'x1', 'gw')): vm.issue(n)
    for s in range(14):
        a(f's_mov_b32 m0, {WQ_LDS + s*1024}')
        if s > 0:
            a(f's_add_u32 s{sWQ}, s{sWQ}, {8*8192}\ns_addc_u32 s{sWQ+1}, s{sWQ+1}, 0')
        else:
            a('s_nop 0')
        a(f'global_load_lds_dwordx4 v{vWqO if s & 1 else vWqE}, s[{sWQ}:{sWQ+1}]{NT("wq")}')
        vm.issue(f'wq{s}')
    if o['e_late']:
        a(f'global_load_dword v{vT}, v{vt+2}, {WS}{ESC}'); vm.issue('E')
    if o['b1'] and o.get('b1_after') is None:
        a('s_barrier')
    a(f'''
    v_lshrrev_b32 v{vt}, 2, v{vN}                   ; r
    v_lshl_add_u32 v{vt+1}, v{vKS}, 3, v{vt}
    v_lshlrev_b32 v{vt+1}, 7, v{vt+1}
    v_and_b32 v{vt+2}, 3, v{vN}
    v_lshl_add_u32 v{vt+1}, v{vt+2}, 3, v{vt+1}
    v_lshrrev_b32 v{vt}, 1, v{vt}
    v_and_b32 v{vt+2}, 1, v{vKS}
    v_lshl_add_u32 v{vt}, v{vt+2}, 1, v{vt}
    v_lshl_add_u32 v{vTr}, v{vt}, 5, v{vt+1}
    v_xor_b32 v{vTr+1}, 32, v{vTr}
    v_xor_b32 v{vTr+2}, 64, v{vTr}
    v_xor_b32 v{vTr+3}, 96, v{vTr}
    v_lshrrev_b32 v{vt+3}, 3, v{vN}                 ; b = n>>3
    v_mul_u32_u24 v{vt}, 896, v{vt+3}
    v_lshl_add_u32 v{vXr}, v{vKS}, 4, v{vt}
    s_mul_i32 s{sT2}, s{sT0}, 224
    v_add_u32 v{vXr}, s{sT2}, v{vXr}
    s_lshl_b32 s{sT2}, s{sHKV}, 14
    s_lshl_b32 s{sT3}, s{sT0}, 12
    s_add_u32 s{sT2}, s{sT2}, s{sT3}
    s_lshl_b32 s{sT3}, s{sT1}, 8
    s_add_u32 s{sT2}, s{sT2}, s{sT3}
    s_add_u32 s{sT2}, s{sT2}, {WS_QP}
    v_lshlrev_b32 v{aQP}, 11, v{vt+3}
    v_and_b32 v{vt+1}, 3, v{vL}
    v_lshl_add_u32 v{aQP}, v{vt+1}, 6, v{aQP}
    v_lshl_add_u32 v{aQP}, v{vKS}, 4, v{aQP}
    v_add_u32 v{aQP}, s{sT2}, v{aQP}
    v_and_b32 v{vt+1}, 1, v{vL}
    v_cmp_eq_u32 s[{sKB}:{sKB+1}], 1, v{vt+1}
    v_and_b32 v{vt+1}, 2, v{vL}
    v_cmp_eq_u32 s[{sVB}:{sVB+1}], 2, v{vt+1}
    v_cmp_gt_u32 s[{sWO2}:{sWO2+1}], 2, v{vKS}
    ''')
    masks(aM, vt+4)
    a(f'''
    s_mov_b32 s{sFX}, {hex(FXPERM)}
    s_lshl_b32 s{sT2}, s{sHKV}, 2
    s_lshr_b32 s{sFX}, s{sFX}, s{sT2}
    s_and_b32 s{sFX}, s{sFX}, 7
    s_lshl_b32 s{sT2}, s{sFX}, 1
    s_add_u32 s{sT2}, s{sT2}, s{sB}                 ; 2*xcd + (j>>4)
    s_add_u32 s{sT3}, s{sFX}, 6
    s_cmp_lt_u32 s{sFX}, 6
    s_cselect_b32 s{sT3}, s{sT2}, s{sT3}            ; ct128
    s_cselect_b32 s{sF1}, 1, 0
    s_cmp_lt_u32 s{sJ}, 16
    s_cselect_b32 s{sF1}, 1, s{sF1}
    s_mul_i32 s{sT4}, s{sC}, 28                     ; r0 = 28*pi
    s_mul_i32 s{sU}, s{sT4}, 3584
    s_lshl_b32 s{sOI}, s{sT3}, 8
    s_add_u32 s{sU}, s{sU}, s{sOI}
    s_add_u32 s{sW1}, s{sW1}, s{sU}
    s_addc_u32 s{sW1+1}, s{sW1+1}, 0
    v_mul_u32_u24 v{aW1off}, 3584, v{vKS}
    v_lshl_add_u32 v{aW1off}, v{vN}, 4, v{aW1off}
    s_mul_i32 s{sU}, s{sC}, 14336
    s_lshl_b32 s{sOI}, s{sT3}, 9
    s_add_u32 s{sU}, s{sU}, s{sOI}
    s_add_u32 s{sU}, s{sU}, {WS_HP}
    v_lshrrev_b32 v{vt+7}, 5, v{vL}
    v_mul_u32_u24 v{aHP}, 7168, v{vt+7}
    v_and_b32 v{vt+8}, 31, v{vL}
    v_lshl_add_u32 v{aHP}, v{vt+8}, 4, v{aHP}
    v_add_u32 v{aHP}, s{sU}, v{aHP}
    v_mul_u32_u24 v{aXd}, 896, v{vt+3}
    v_lshl_add_u32 v{aXd}, v{vKS}, 1, v{aXd}
    s_lshl_b32 s{sU}, s{sT4}, 1
    v_add_u32 v{aXd}, s{sU}, v{aXd}
    s_lshl_b32 s{sU}, s{sFX}, 3
    s_lshl_b32 s{sT2}, s{sFX}, 2
    s_add_u32 s{sT2}, s{sT2}, 24
    s_cmp_lt_u32 s{sFX}, 6
    s_cselect_b32 s{sU}, s{sU}, s{sT2}
    s_cselect_b32 s{sHASF2}, 1, 0
    s_add_u32 s{sU}, s{sU}, s{sRG}
    s_cmp_lt_u32 s{sRG}, 4
    s_cselect_b32 s{sHASF2}, 1, s{sHASF2}
    s_min_u32 s{sU}, s{sU}, 55
    s_lshr_b32 s{sT2}, s{sU}, 2
    s_lshl_b32 s{sT2}, s{sT2}, 7
    s_and_b32 s{sT3}, s{sU}, 1
    s_lshl_b32 s{sT3}, s{sT3}, 6
    s_add_u32 s{sT2}, s{sT2}, s{sT3}
    s_bfe_u32 s{sT3}, s{sU}, 0x10001
    s_lshl_b32 s{sT3}, s{sT3}, 2
    s_add_u32 s{sT2}, s{sT2}, s{sT3}
    s_mul_i32 s{sT2}, s{sT2}, 896
    s_lshl_b32 s{sT3}, s{sCT}, 8
    s_add_u32 s{sT2}, s{sT2}, s{sT3}
    s_add_u32 s{sW2}, s{sW2}, s{sT2}
    s_addc_u32 s{sW2+1}, s{sW2+1}, 0
    v_and_b32 v{vt+8}, s{sEXW}, v{vN}
    v_mul_u32_u24 v{aW2off}, 896, v{vKS}
    v_lshl_add_u32 v{aW2off}, v{vt+8}, 4, v{aW2off}
    ; H poll address: pi*14336 + b*7168 + u*128 + slot*16 ; pi = 4k + (l>>4), b = (l>>3)&1, slot = l&7
    v_mul_u32_u24 v{aAh}, 14336, v{vKS}
    v_mul_u32_u24 v{vt+8}, 7168, v{vt+3}
    v_add_u32 v{aAh}, v{aAh}, v{vt+8}
    v_and_b32 v{vt+8}, 7, v{vL}
    v_lshl_add_u32 v{aAh}, v{vt+8}, 4, v{aAh}
    s_lshl_b32 s{sT2}, s{sU}, 7
    s_add_u32 s{sT2}, s{sT2}, {WS_HP}
    v_add_u32 v{aAh}, s{sT2}, v{aAh}
    v_and_b32 v{vt+8}, 1, v{vKS}
    v_lshlrev_b32 v{vt+8}, 4, v{vt+8}
    v_lshl_add_u32 v{vt+8}, v{vN}, 5, v{vt+8}
    v_lshl_add_u32 v{aFw}, v{vt+7}, 9, v{vt+8}
    ''')
    vm.wait('gw')
    stamp('qready')
    if not o['e_late']: a(f'v_add_u32 v{vT}, 0x01010101, v{vT}')
    for s in range(4):
        a(f'ds_read_b128 v[{vXB+4*s}:{vXB+4*s+3}], v{vXr} offset:{X_LDS + 64*s}')
    for s in range(4):
        wa = vWA + 16*(s & 1)
        vm.wait(f'wq{min(4*s+3, 13)}')
        if o['b1'] and o.get('b1_after') == s: a('s_barrier')
        if s == 3:
            for cg in range(4): a(f'v_and_b32 v{vTr+cg}, 0xfffff7ff, v{vTr+cg}')
            a('s_waitcnt lgkmcnt(0)')
            for k in range(4): a(f'v_cndmask_b32 v{vXB+12+k}, 0, v{vXB+12+k}, s[{sWO2}:{sWO2+1}]')
        for cg in range(4):
            for hf in range(2):
                a(f'ds_read_b64_tr_b16 v[{wa+4*cg+2*hf}:{wa+4*cg+2*hf+1}], v{vTr+cg} offset:{WQ_LDS + s*4096 + hf*512}')
        for cg in range(4):
            a(f's_waitcnt lgkmcnt({6 - 2*cg})' if not o['stamps'] else ('s_waitcnt lgkmcnt(0)' if cg == 0 else ''))
            d = vQD + 4*cg
            c_ = '0' if s == 0 else f'v[{d}:{d+3}]'
            a(f'v_mfma_f32_16x16x32_bf16 v[{d}:{d+3}], v[{wa+4*cg}:{wa+4*cg+3}], v[{vXB+4*s}:{vXB+4*s+3}], {c_}')
    stamp('a_wq')
    for k in range(4):
        a(f'v_cndmask_b32 v{vQD+k}, v{vQD+k}, v{vQD+4+k}, s[{sKB}:{sKB+1}]')
        a(f'v_cndmask_b32 v{vQD+8+k}, v{vQD+8+k}, v{vQD+12+k}, s[{sKB}:{sKB+1}]')
    for k in range(4):
        a(f'v_cndmask_b32 v{vD0+k}, v{vQD+k}, v{vQD+8+k}, s[{sVB}:{sVB+1}]')
    tag_insert([vD0, vD0+1, vD0+2, vD0+3])
    a('s_mov_b32 exec_lo, 0x0f0f0f0f\ns_mov_b32 exec_hi, 0x0f0f0f0f')
    if o['fast'] and o['placechk'] and not o.get('nob'):
        if o.get('noa'):
            a(f'global_store_dwordx4 v{aQP}, v[{vD0}:{vD0+3}], s[{sDUM}:{sDUM+1}]')
        else:
            a(f'global_store_dwordx4 v{aQP}, v[{vD0}:{vD0+3}], {WS}')
        vm.issue('qpub_a')
        a(f'''
    s_getreg_b32 s{sPV}, hwreg(HW_REG_XCC_ID)
    s_lshl_b32 s{sPV}, s{sPV}, 8
    s_lshl_b32 s{sOI}, s2, 7
    s_add_u32 s{sOI}, s{sOI}, {WS_REG}
    s_mov_b32 exec_lo, 0x00300030
    s_mov_b32 exec_hi, 0x00300030
    v_and_b32 v{vt+16}, 1, v{vL}
    v_lshl_add_u32 v{vt+16}, v{vKS}, 1, v{vt+16}    ; slot = (l>>4)*2 + (l&1)
    v_lshlrev_b32 v{vt+16}, 4, v{vt+16}
    v_add_u32 v{aQP}, s{sOI}, v{vt+16}
    v_mov_b32 v{vD0}, s{sPV}
    v_mov_b32 v{vD0+1}, s{sPV}
    v_mov_b32 v{vD0+2}, s{sPV}
    v_mov_b32 v{vD0+3}, s{sPV}
    ''')
        tag_insert([vD0, vD0+1, vD0+2, vD0+3])
        a(f'''
    s_mov_b32 exec_lo, 0x0f3f0f3f
    s_mov_b32 exec_hi, 0x0f3f0f3f
    global_store_dwordx4 v{aQP}, v[{vD0}:{vD0+3}], {WSB} sc1
    ''')
        vm.issue('qpub')
    else:
        publish(vm, aQP, vD0, 'qpub')
    a('s_mov_b64 exec, -1')
    stamp('kdone')
    if o['aux_lowprio']: a('s_setprio 0')
    if o['fast'] and o['prewrite']:
        a(f'''
    s_cmp_eq_u32 s{sF1}, 0
    s_cbranch_scc1 L_a_nopw
    ''')
        for k in range(4): a(f'v_xor_b32 v{vt+12+k}, 0x80808080, v{vT}')
        for k in range(4): a(f'v_perm_b32 v{vt+12+k}, v{vt+12+k}, v{vt+12+k}, s{sSEL+k}')
        a(f'global_store_dwordx4 v{aHP}, v[{vt+12}:{vt+15}], {WS}')
        a('L_a_nopw:')
    g0 = vXB
    a(f'''
    v_mov_b32 v{vt+8}, 0
    v_mov_b32 v{vt+9}, 0
    s_mov_b32 exec_lo, -1
    s_mov_b32 exec_hi, 0x00ffffff
    ds_read_b128 v[{g0}:{g0+3}], v{vA16} offset:{X_LDS}
    ds_read_b128 v[{g0+4}:{g0+7}], v{vA16} offset:{X_LDS+896}
    ds_read_b128 v[{g0+8}:{g0+11}], v{vA16} offset:{GW_LDS}
    s_waitcnt lgkmcnt(0)
    ''')
    for k in range(4):
        a(f'v_dot2_f32_bf16 v{vt+8}, v{g0+k}, v{g0+8+k}, v{vt+8}')
        a(f'v_dot2_f32_bf16 v{vt+9}, v{g0+4+k}, v{g0+8+k}, v{vt+9}')
    a('s_mov_b64 exec, -1')
    for g in range(7):
        a(f'ds_read_u16 v{g0+12+g}, v{aXd} offset:{X_LDS + 8*g}')
    for n in (8, 4, 2, 1):
        for r in (vt+8, vt+9):
            a(f'v_add_f32_dpp v{r}, v{r}, v{r} row_ror:{n} row_mask:0xf bank_mask:0xf')
    allreduce_rows('v_add_f32', vt+8, vt+10)
    allreduce_rows('v_add_f32', vt+9, vt+10)
    a(f'''
    v_and_b32 v{vt+10}, 1, v{vL}
    v_cmp_eq_u32 vcc, 1, v{vt+10}
    v_cndmask_b32 v{vt+8}, v{vt+8}, v{vt+9}, vcc
    v_cvt_pk_bf16_f32 v{vt+8}, v{vt+8}, v{vt+8}
    v_lshlrev_b32 v{vt+8}, 16, v{vt+8}
    v_mul_f32 v{vt+8}, {hex(f2u(-LOG2E))}, v{vt+8}
    v_exp_f32 v{vt+8}, v{vt+8}
    v_add_f32 v{vt+8}, 1.0, v{vt+8}
    v_rcp_f32 v{vt+8}, v{vt+8}
    v_cvt_pk_bf16_f32 v{vt+8}, v{vt+8}, v{vt+8}
    v_lshlrev_b32 v{vt+8}, 16, v{vt+8}
    v_sub_f32 v{vt+9}, 1.0, v{vt+8}
    v_cvt_pk_bf16_f32 v{vt+9}, v{vt+9}, v{vt+9}
    v_lshlrev_b32 v{vt+9}, 16, v{vt+9}
    v_lshlrev_b32 v{vt+10}, 2, v{vt+10}
    s_mov_b64 exec, 3
    ds_write_b32 v{vt+10}, v{vt+8} offset:{G_LDS}
    s_mov_b64 exec, -1
    v_readlane_b32 s{sT2}, v{vt+9}, 0
    v_readlane_b32 s{sT3}, v{vt+9}, 1
    v_cmp_gt_u32 vcc, 32, v{vL}
    v_mov_b32 v{vt+11}, s{sT3}
    v_mov_b32 v{vt+12}, s{sT2}
    v_cndmask_b32 v{vt+11}, v{vt+11}, v{vt+12}, vcc
    s_waitcnt lgkmcnt(0)
    ''')
    for g in range(7):
        a(f'v_lshl_or_b32 v{g0+12+g}, v{g0+12+g}, 16, v{g0+12+g}')
    for g in range(7):
        for k in range(4):
            a(f'v_and_b32 v{aXA+4*g+k}, v{g0+12+g}, v{aM+k}')
    stamp('qpoll')
    a('s_barrier')
    if o['placechk']:
        a(f'''
    v_and_b32 v{vt+16}, 31, v{vL}
    v_lshlrev_b32 v{vt+16}, 10, v{vt+16}
    s_lshl_b32 s{sOI}, s{sHKV}, 7
    s_add_u32 s{sOI}, s{sOI}, {WS_REG}
    v_add_u32 v{vt+16}, s{sOI}, v{vt+16}
    global_load_dwordx4 v[{aRG}:{aRG+3}], v{vt+16}, {WSB} sc1
    ''')
        vm.issue('regchk')

    def verdict():
        if not o['placechk']: return
        tag_check(aRG, vt+12, vt+14)
        a(f'''
    v_lshrrev_b32 v{vt+15}, 8, v{aRG}
    s_lshr_b32 s{sOI}, s{sPV}, 8
    v_xor_b32 v{vt+15}, s{sOI}, v{vt+15}
    v_or_b32 v{vt+14}, v{vt+14}, v{vt+15}
    v_cmp_ne_u32 vcc, 0, v{vt+14}
    s_cmp_eq_u64 vcc, 0
    s_cselect_b32 s{sPV}, {0 if o.get('noa') else 1}, 0
    v_mov_b32 v{vt+14}, s{sPV}
    v_mov_b32 v{vt+15}, 0
    ds_write_b32 v{vt+15}, v{vt+14} offset:{PV_LDS}
    s_waitcnt lgkmcnt(0)
    ''')
        if o['stamps']: a(f's_mov_b32 s{64+2*14}, s{sPV}')
    a(f'''
    s_cmp_eq_u32 s{sF1}, 0
    s_cbranch_scc1 L_a_none
    ''')
    for g in range(7):
        a(f'global_load_dwordx4 v[{aW1+4*g}:{aW1+4*g+3}], v{aW1off}, s[{sW1}:{sW1+1}]{NT("w1")}')
        vm.issue(f'w1_{g}')
        if g < 6:
            a(f's_add_u32 s{sW1}, s{sW1}, {4*3584}\ns_addc_u32 s{sW1+1}, s{sW1+1}, 0')
    def w2loads():
        for g in range(8):
            a(f'global_load_dwordx4 v[{aW2+4*g}:{aW2+4*g+3}], v{aW2off}, s[{sW2}:{sW2+1}]{NT("w2")}')
            vm.issue(f'w2_{g}')
            if g < 7:
                a(f's_add_u32 s{sW2}, s{sW2}, {8*896}\ns_addc_u32 s{sW2+1}, s{sW2+1}, 0')
    if o.get('w2_at', 'bq') == 'bq': w2loads()
    if o['placechk']:
        vm.wait('regchk'); verdict()
    a('s_barrier')
    vm.wait('w1_6')
    stamp('vdone')
    for g in range(7):
        c_ = '0' if g == 0 else f'v[{vD0}:{vD0+3}]'
        a(f'v_mfma_f32_16x16x32_bf16 v[{vD0}:{vD0+3}], v[{aXA+4*g}:{aXA+4*g+3}], v[{aW1+4*g}:{aW1+4*g+3}], {c_}')
    tag_insert([vD0, vD0+1, vD0+2, vD0+3])
    publish(vm, aHP, vD0, 'hpub', lazy=True)
    stamp('opub')
    if o.get('w2_at', 'bq') == 'pub': w2loads()
    if o['h_delay']: vm.wait(o['h_delay'])
    def hloads(base):
        for k in range(4):
            a(f'v_add_u32 v{vt+12}, {4*k*14336}, v{aAh}\nglobal_load_dwordx4 v[{aH+4*k}:{aH+4*k+3}], v{vt+12}, {base} sc1')
    cc4 = [vt, vt+1, vt+2, vt+3]
    def hchecks():
        for k in range(4):
            for ln in chk(aH+4*k, vt+4, vt+5, cc4[k]): a(ln)
        a(f'v_or3_b32 v{vt}, v{vt}, v{vt+1}, v{vt+2}\nv_or_b32 v{vt}, v{vt}, v{vt+3}')
    hloads(FIRST)
    for k in range(4): vm.issue(f'H{k}')
    if o.get('w2_at', 'bq') == 'poll': w2loads()
    vm.wait('H3')
    stamp('h2f')
    hchecks()
    a(f'''
    v_cmp_ne_u32 vcc, 0, v{vt}
    s_cbranch_vccz L_ah_ok
    ''')
    retry_loop('L_ah_r', hloads, hchecks, vt, 'L_ah_ok', own_b=(aHP, vD0))
    a('L_ah_ok:\ns_mov_b64 exec, -1')
    if o['fast'] and o['lazy_b']:
        publish_b(aHP, vD0); vm.issue('hpub_b')
    stamp('h2'); note(15, 1, sSPIN)
    untag(range(aH, aH+16))
    a(f'''
    v_pk_add_f32 v[{aH}:{aH+1}], v[{aH}:{aH+1}], v[{aH+4}:{aH+5}]
    v_pk_add_f32 v[{aH+2}:{aH+3}], v[{aH+2}:{aH+3}], v[{aH+6}:{aH+7}]
    v_pk_add_f32 v[{aH+8}:{aH+9}], v[{aH+8}:{aH+9}], v[{aH+12}:{aH+13}]
    v_pk_add_f32 v[{aH+10}:{aH+11}], v[{aH+10}:{aH+11}], v[{aH+14}:{aH+15}]
    v_pk_add_f32 v[{aH}:{aH+1}], v[{aH}:{aH+1}], v[{aH+8}:{aH+9}]
    v_pk_add_f32 v[{aH+2}:{aH+3}], v[{aH+2}:{aH+3}], v[{aH+10}:{aH+11}]
    v_permlane32_swap_b32 v{aH}, v{aH+2}
    v_permlane32_swap_b32 v{aH+1}, v{aH+3}
    v_add_f32 v{aH}, v{aH}, v{aH+2}
    v_add_f32 v{aH+1}, v{aH+1}, v{aH+3}
    v_permlane16_swap_b32 v{aH}, v{aH+1}
    v_add_f32 v{aH}, v{aH}, v{aH+1}
    v_max_f32 v{aH}, 0, v{aH}
    v_cvt_pk_bf16_f32 v{aH}, v{aH}, v{aH}
    ''')
    for g in range(8):
        A = aA + 4*(g & 1)
        tb = aH + 1 + (g & 1)
        a(f'v_mov_b32_dpp v{tb}, v{aH} row_newbcast:{g} row_mask:0xf bank_mask:0x3')
        a(f'v_mov_b32_dpp v{tb}, v{aH} row_newbcast:{8+g} row_mask:0xf bank_mask:0xc')
        for k in range(4):
            a(f'v_and_b32 v{A+k}, v{tb}, v{aM+k}')
        vm.wait(f'w2_{g}')
        c_ = '0' if g == 0 else f'v[{vD1}:{vD1+3}]'
        a(f'v_mfma_f32_16x16x32_bf16 v[{vD1}:{vD1+3}], v[{A}:{A+3}], v[{aW2+4*g}:{aW2+4*g+3}], {c_}')
    for k in range(4):
        a(f'v_mul_f32 v{vD1+k}, v{vt+11}, v{vD1+k}')
    a(f'''
L_a_wr:
    ds_write_b128 v{aFw}, v[{vD1}:{vD1+3}] offset:{F5_LDS}
    s_waitcnt lgkmcnt(0)
    ''')
    stamp('fpub')
    a(f'''
    s_barrier
    s_branch L_fin
L_a_none:
    v_mov_b32 v{vD1}, 0
    v_mov_b32 v{vD1+1}, 0
    v_mov_b32 v{vD1+2}, 0
    v_mov_b32 v{vD1+3}, 0
    ''')
    if o['placechk']:
        a('s_waitcnt vmcnt(0)'); verdict()
    a('''
    s_barrier
    s_branch L_a_wr
    ''')
    a('L_fin:')
    if o['probe']:
        pname, K = o['probe']
        i = SI[pname]
        a(f'''
    s_waitcnt lgkmcnt(0)
    s_cmp_lg_u32 s3, 0
    s_cbranch_scc1 L_end
    v_mov_b32 v4, 0
    s_mov_b64 exec, 1
    v_mov_b32 v6, s64
    v_not_b32 v6, v6
    global_atomic_umax v4, v6, s[{sDBG}:{sDBG+1}] sc1
    v_mov_b32 v7, s{64+2*i}
    global_atomic_umax v4, v7, s[{sDBG}:{sDBG+1}] offset:4 sc1
    s_waitcnt vmcnt(0)
    v_mov_b32 v8, 1
    global_atomic_add v9, v4, v8, s[{sDBG}:{sDBG+1}] offset:8 sc0 sc1
    s_waitcnt vmcnt(0)
    v_readfirstlane_b32 s60, v9
    s_cmp_lg_u32 s60, 255
    s_cbranch_scc1 L_end
    global_load_dwordx2 v[10:11], v4, s[{sDBG}:{sDBG+1}] sc1
    s_waitcnt vmcnt(0)
    v_readfirstlane_b32 s60, v10
    v_readfirstlane_b32 s61, v11
    s_not_b32 s60, s60
    s_sub_u32 s61, s61, s60
    s_min_u32 s61, s61, 5000
    v_mov_b32 v12, s61
    global_store_dword v4, v12, s[{sDBG}:{sDBG+1}] offset:12 sc1
    s_mul_i32 s61, s61, {K}
    s_memrealtime s[62:63]
    s_waitcnt lgkmcnt(0)
    s_add_u32 s61, s61, s62
L_probe_spin:
    s_memrealtime s[62:63]
    s_waitcnt lgkmcnt(0)
    s_sub_u32 s60, s61, s62
    s_cmp_gt_i32 s60, 0
    s_cbranch_scc1 L_probe_spin
    ''')
    elif o['stamps']:
        a(f'''
    s_waitcnt lgkmcnt(0)
    s_lshl_b32 s{sT0}, s2, 10
    s_lshl_b32 s{sT1}, s3, 7
    s_add_u32 s{sT0}, s{sT0}, s{sT1}
    s_add_u32 s{sT0}, s{sT0}, {WS_STAMP}
    v_mov_b32 v4, s{sT0}
    s_mov_b64 exec, 1
    ''')
        for i in range(16):
            a(f'''
    v_mov_b32 v6, s{64+2*i}
    v_mov_b32 v7, s{65+2*i}
    global_store_dwordx2 v4, v[6:7], {WS} offset:{8*i}
    s_nop 1
    ''')
    a('''
L_end:
    s_endpgm
    ''')
    body, n = hazard.fix(a.text())
    return wrap(body, (256,1,1), (320,1,1), LDS_BYTES, vgpr=NV, sgpr=102), STAMPS

if __name__ == '__main__':
    opts = json.loads(sys.argv[2]) if len(sys.argv) > 2 else {}
    s, names = gen(opts)
    open(sys.argv[1], 'w').write(s)
```
